```python
import torch

def _softmax(x, axis=-1):
    return torch.softmax(x, dim=axis)
def _gelu(x):
    return torch.nn.functional.gelu(x, approximate="tanh")
def _silu(x):
    return torch.nn.functional.silu(x)
def _sigmoid(x):
    return torch.sigmoid(x)
def _layernorm(x, axis=-1, eps=1e-5):
    m = x.mean(dim=axis, keepdim=True)
    v = x.var(dim=axis, keepdim=True, unbiased=False)
    return (x - m) / torch.sqrt(v + eps)
def _scatter_add(tgt, idx, src, axis=0):
    return tgt.clone().index_add_(axis, idx, src)
def _segment_sum(src, seg, n):
    out = torch.zeros((n,) + src.shape[1:], dtype=src.dtype)
    return out.index_add_(0, seg, src)
def _pad(x, pw):
    flat = tuple(v for pair in reversed(pw) for v in pair)
    return torch.nn.functional.pad(x, flat)

kernel_name = 'parallel_sum__ssm_conv_s4__dense_activation_gelu__prompt'

def setup_inputs():

    _w = (lambda a: (lambda t: t.to(torch.bfloat16) if t.is_floating_point() else t)(torch.as_tensor(a)))
    def _A_setup():
        B, L, D, N = 1, 2048, 448, 256
        A_re = -(lambda _x: torch.exp(torch.as_tensor(_x)))((lambda *s: torch.randn(*s, dtype=torch.bfloat16) * 6.4)(D, N))
        A_im = torch.pi * (lambda *s: torch.randn(*s, dtype=torch.bfloat16) * 0.05)(D, N)
        B_re = (lambda *s: torch.randn(*s, dtype=torch.bfloat16) * 0.1)(D, N)
        B_im = (lambda *s: torch.randn(*s, dtype=torch.bfloat16) * 0.1)(D, N)
        C_re = (lambda *s: torch.randn(*s, dtype=torch.bfloat16) * 0.1)(D, N)
        C_im = (lambda *s: torch.randn(*s, dtype=torch.bfloat16) * 0.1)(D, N)
        log_dt = (lambda *s: torch.randn(*s, dtype=torch.bfloat16) * 0.05)(D) * 0.5 - 4.0
        Dskip = (lambda *s: torch.randn(*s, dtype=torch.bfloat16) * 0.05)(D)
        return {
            "u": _w((lambda *s: torch.randn(*s, dtype=torch.bfloat16) * 0.05)(B, L, D)),
            "A_re": _w(A_re),
            "A_im": _w(A_im),
            "B_re": _w(B_re),
            "B_im": _w(B_im),
            "C_re": _w(C_re),
            "C_im": _w(C_im),
            "log_dt": _w(log_dt),
            "Dskip": _w(Dskip),
        }
    _A_in = _A_setup()

    def _B_setup():
        B, S, D, F = 1, 2048, 448, 1792
        return {
            "x": _w((lambda *s: torch.randn(*s, dtype=torch.bfloat16) * 0.05)(B, S, D)),
            "w1": _w((lambda *s: torch.randn(*s, dtype=torch.bfloat16) * 0.8)(D, F) * (D ** -0.5)),
            "b1": _w((lambda *s: torch.randn(*s, dtype=torch.bfloat16) * 0.2)(F) * 0.01),
            "w2": _w((lambda *s: torch.randn(*s, dtype=torch.bfloat16) * 0.2)(F, D) * (F ** -0.5)),
            "b2": _w((lambda *s: torch.randn(*s, dtype=torch.bfloat16) * 0.2)(D) * 0.01),
        }
    _B_in = _B_setup()

    return {
        "A_u": _A_in["u"],
        "A_A_re": _A_in["A_re"],
        "A_A_im": _A_in["A_im"],
        "A_B_re": _A_in["B_re"],
        "A_B_im": _A_in["B_im"],
        "A_C_re": _A_in["C_re"],
        "A_C_im": _A_in["C_im"],
        "A_log_dt": _A_in["log_dt"],
        "A_Dskip": _A_in["Dskip"],
        "B_x": _B_in["x"],
        "B_w1": _B_in["w1"],
        "B_b1": _B_in["b1"],
        "B_w2": _B_in["w2"],
        "B_b2": _B_in["b2"],
    }

def reference(A_u, A_A_re, A_A_im, A_B_re, A_B_im, A_C_re, A_C_im, A_log_dt, A_Dskip, B_x, B_w1, B_b1, B_w2, B_b2):
    def _A_ref(u, A_re, A_im, B_re, B_im, C_re, C_im, log_dt, Dskip):
        Bsz, L, D = u.shape
        dt = torch.exp(log_dt)[:, None]
        A = A_re + 1j * A_im
        Bc = B_re + 1j * B_im
        Cc = C_re + 1j * C_im
        logdA = dt * A
        dB = dt * Bc
        l = (lambda x, dt: x.to(dt))(torch.arange(L), A_re.dtype)
        P = torch.exp(logdA[:, :, None] * l[None, None, :])
        K = torch.einsum("dn,dnl,dn->dl", Cc, P, dB).real
        L2 = 2 * L
        Kp = _pad(K, ((0, 0), (0, L)))
        up = (lambda x, *d: x.permute(*d))(u, 0, 2, 1)
        up = _pad(up, ((0, 0), (0, 0), (0, L)))
        Kf = (lambda x, axes=(-2,-1): torch.fft.rfft2(x.float(), dim=axes))(Kp[:, None, :], axes=(-2, -1))
        Uf = (lambda x, axes=(-2,-1): torch.fft.rfft2(x.float(), dim=axes))(up[:, :, None, :], axes=(-2, -1))
        Yf = Uf * Kf[None, :, :, :]
        y = (lambda x, s, axes=(-2,-1): torch.fft.irfft2(x, s=s, dim=axes).to(torch.bfloat16))(Yf, (1, L2), axes=(-2, -1))[:, :, 0, :L]
        y = (lambda x, *d: x.permute(*d))(y, 0, 2, 1) + u * Dskip[None, None, :]
        return y

    def _B_ref(x, w1, b1, w2, b2):
        h = torch.einsum("bsd,df->bsf", x, w1) + b1
        h = _gelu(h)
        return torch.einsum("bsf,fd->bsd", h, w2) + b2

    x = A_u
    xn = _layernorm(x, axis=-1)
    return x + _A_ref(xn, A_A_re, A_A_im, A_B_re, A_B_im, A_C_re, A_C_im, A_log_dt, A_Dskip) + _B_ref(xn, B_w1, B_b1, B_w2, B_b2)
```

```python
class Asm:
    def __init__(self):
        self.lines = []
        self.uid = 0
    def __call__(self, s=""):
        for ln in s.split("\n"):
            ln = ln.strip()
            if ln: self.lines.append("    " + ln if not ln.endswith(":") else ln)
    def label(self, l): self.lines.append(l + ":")
    def newlabel(self, base):
        self.uid += 1
        return f"{base}_{self.uid}"
    def comment(self, s): self.lines.append("    ; " + s)
    def text(self): return "\n".join(self.lines) + "\n"

class Regs:
    def __init__(self, prefix, start=0, limit=256):
        self.p = prefix; self.n = start; self.limit = limit; self.hi = start
    def alloc(self, cnt=1, align=1):
        self.n = (self.n + align - 1)//align*align
        r = self.n; self.n += cnt
        assert self.n <= self.limit, f"out of {self.p} regs"
        self.hi = max(self.hi, self.n)
        return r
    def mark(self): return self.n
    def reset(self, m): self.n = m

def vr(r, n=1): return f"v{r}" if n == 1 else f"v[{r}:{r+n-1}]"
def sr(r, n=1): return f"s{r}" if n == 1 else f"s[{r}:{r+n-1}]"

def kernel_wrap(name, body, vgpr, sgpr=96, accum=None):
    if accum is None: accum = (vgpr + 3)//4*4
    return f""".text
.globl {name}
.p2align 8
.type {name},@function
{name}:
{body}    s_endpgm
.section .rodata,"a"
.p2align 6
.amdhsa_kernel {name}
  .amdhsa_next_free_vgpr {vgpr}
  .amdhsa_next_free_sgpr {sgpr}
  .amdhsa_accum_offset {accum}
  .amdhsa_group_segment_fixed_size 0
  .amdhsa_kernarg_size 136
  .amdhsa_user_sgpr_count 2
  .amdhsa_user_sgpr_kernarg_segment_ptr 1
  .amdhsa_system_sgpr_workgroup_id_x 1
  .amdhsa_float_denorm_mode_32 3
.end_amdhsa_kernel
"""

def srd(a, d, b, size):
    a(f"s_mov_b32 s{d}, s{b}\ns_and_b32 s{d+1}, s{b+1}, 0xffff\ns_mov_b32 s{d+2}, {size}\ns_mov_b32 s{d+3}, 0x20000")

class Stamps:
    def __init__(self, a, S, n, enabled):
        self.a = a; self.n = n; self.en = enabled; self.k = 0
        if enabled:
            self.base = S.alloc(2*(n+1), 2)
    def start(self):
        if self.en:
            self.a(f"s_memrealtime s[{self.base}:{self.base+1}]")
            self.stamp()
    def stamp(self):
        if self.en:
            assert self.k < self.n
            b = self.base + 2 + 2*self.k
            self.a(f"s_memtime s[{b}:{b+1}]\ns_waitcnt lgkmcnt(0)")
            self.k += 1
    def flush(self, sWS, wsoff, vtmp, stmp, nwaves_log2):
        if not self.en: return
        a = self.a
        a(f"s_memrealtime s[{stmp}:{stmp+1}]\ns_waitcnt lgkmcnt(0)")
        a(f"v_lshrrev_b32 v{vtmp}, 6, v0\ns_lshl_b32 s{stmp+1}, s2, {nwaves_log2}\nv_add_u32 v{vtmp}, s{stmp+1}, v{vtmp}\nv_lshlrev_b32 v{vtmp}, 6, v{vtmp}\nv_add_u32 v{vtmp}, {wsoff}, v{vtmp}")
        a(f"v_mov_b32 v{vtmp+1}, s{self.base}\nbuffer_store_dword v{vtmp+1}, v{vtmp}, s[{sWS}:{sWS+3}], 0 offen")
        a(f"v_mov_b32 v{vtmp+1}, s{stmp}\nbuffer_store_dword v{vtmp+1}, v{vtmp}, s[{sWS}:{sWS+3}], 0 offen offset:4")
        for k in range(self.k):
            a(f"v_mov_b32 v{vtmp+1}, s{self.base+2+2*k}\nbuffer_store_dword v{vtmp+1}, v{vtmp}, s[{sWS}:{sWS+3}], 0 offen offset:{8+4*k}")
        a("s_waitcnt vmcnt(0)")

def srd_fix(a, d, size):
    a(f"s_and_b32 s{d+1}, s{d+1}, 0xffff\ns_mov_b32 s{d+2}, {size}\ns_mov_b32 s{d+3}, 0x20000")
```

```python
WS_H   = 0
WS_W2T = 0x700000
WS_XNT = 0x888000
WS_Y   = 0xA48000
WS_FLAG= 0xC08000
WS_STATS=0xC09000
WS_CS   =0xC0D000
WS_STAMP=0xC10000
WS_STAMP2=0xC40000
WS_SIZE= 0xD00000
X_BYTES = 2048*448*2
W_BYTES = 448*1792*2
P_BYTES = 448*256*2
GELU_C0 = -2.0*1.4426950408889634*0.7978845608028654
GELU_C1 = GELU_C0*0.044715
import struct
def f2u(x): return struct.unpack("<I", struct.pack("<f", x))[0]
def fhex(x): return "0x%08x" % f2u(x)
```

```python
from asm import *
from common import *

def gen_ln(a, V0, S0, ST, end, sWSsz):
    V = Regs("v", 1, 256); S = Regs("s", S0, 100)
    sX = S.alloc(4,4); sW1 = S.alloc(4,4); sWS = S.alloc(4,4); sDB = S.alloc(4,4)
    pX = S.alloc(2,2); pW1 = S.alloc(2,2); pWS = S.alloc(2,2); pDB = S.alloc(2,2)
    sw = S.alloc(); st = [S.alloc() for _ in range(6)]
    a(f"s_load_dwordx2 {sr(pX,2)}, s[0:1], 0\ns_load_dwordx2 {sr(pW1,2)}, s[0:1], 80\ns_load_dwordx2 {sr(pWS,2)}, s[0:1], 128\ns_load_dwordx2 {sr(pDB,2)}, s[0:1], 120")
    vl = V.alloc(); vt0 = V.alloc(); vt1 = V.alloc(); vt2 = V.alloc(); vt3 = V.alloc()
    vXo = V.alloc(); vWo = V.alloc(); vR = V.alloc(); vP = V.alloc()
    a(f"v_lshrrev_b32 {vr(vt0)}, 6, v0\nv_and_b32 {vr(vl)}, 63, v0\nv_readfirstlane_b32 s{sw}, {vr(vt0)}")
    a(f"v_lshrrev_b32 {vr(vR)}, 3, {vr(vl)}\nv_and_b32 {vr(vP)}, 7, {vr(vl)}")
    a(f"s_lshl_b32 s{st[0]}, s2, 6\ns_lshl_b32 s{st[1]}, s{sw}, 3\ns_add_u32 s{st[0]}, s{st[0]}, s{st[1]}")
    a(f"v_add_u32 {vr(vt0)}, s{st[0]}, {vr(vR)}\nv_mul_u32_u24 {vr(vt0)}, 896, {vr(vt0)}\nv_lshl_add_u32 {vr(vXo)}, {vr(vP)}, 4, {vr(vt0)}")
    a(f"s_mul_i32 s{st[1]}, s{sw}, 56\nv_add_u32 {vr(vt0)}, s{st[1]}, {vr(vR)}\nv_mul_u32_u24 {vr(vt0)}, 3584, {vr(vt0)}\nv_lshl_add_u32 {vr(vt0)}, {vr(vP)}, 4, {vr(vt0)}")
    a(f"s_min_u32 s{st[2]}, s2, 27\ns_lshl_b32 s{st[2]}, s{st[2]}, 7\nv_add_u32 {vr(vWo)}, s{st[2]}, {vr(vt0)}")
    a("s_waitcnt lgkmcnt(0)")
    srd(a, sX, pX, X_BYTES); srd(a, sW1, pW1, W_BYTES); srd(a, sWS, pWS, WS_SIZE); srd(a, sDB, pDB, 256)
    vx = V.alloc(28,4); vw = V.alloc(28,4)
    for m in range(7):
        a(f"buffer_load_dwordx4 {vr(vx+4*m,4)}, {vr(vXo)}, {sr(sX,4)}, 0 offen offset:{128*m}")
    for m in range(7):
        a(f"s_mov_b32 s{st[3]}, {m*8*3584}\nbuffer_load_dwordx4 {vr(vw+4*m,4)}, {vr(vWo)}, {sr(sW1,4)}, s{st[3]} offen")
    ST.stamp()
    sOnes = S.alloc(); sLo = S.alloc(); sHi = S.alloc()
    a(f"s_mov_b32 s{sOnes}, 0x3f803f80\ns_mov_b32 s{sLo}, 0x00003f80\ns_mov_b32 s{sHi}, 0x3f800000")
    v1 = [V.alloc(), V.alloc()]; v2 = [V.alloc(), V.alloc()]
    for r in v1+v2: a(f"v_mov_b32 {vr(r)}, 0")
    for m in range(7):
        a(f"s_waitcnt vmcnt({13-m})")
        for q in range(4):
            a(f"v_dot2c_f32_bf16 {vr(v2[q&1])}, {vr(vx+4*m+q)}, {vr(vx+4*m+q)}")
            a(f"v_dot2c_f32_bf16 {vr(v1[q&1])}, s{sOnes}, {vr(vx+4*m+q)}")
    a("s_nop 2")
    a(f"v_add_f32 {vr(v1[0])}, {vr(v1[0])}, {vr(v1[1])}\nv_add_f32 {vr(v2[0])}, {vr(v2[0])}, {vr(v2[1])}\ns_nop 1")
    for ctl in ("quad_perm:[1,0,3,2]", "quad_perm:[2,3,0,1]", "row_half_mirror"):
        a(f"v_add_f32_dpp {vr(v1[0])}, {vr(v1[0])}, {vr(v1[0])} {ctl} row_mask:0xf bank_mask:0xf")
        a(f"v_add_f32_dpp {vr(v2[0])}, {vr(v2[0])}, {vr(v2[0])} {ctl} row_mask:0xf bank_mask:0xf")
        a("s_nop 1")
    vMean = v1[0]; vE2 = v2[0]; vRstd = v1[1]; vMr = v2[1]
    inv = fhex(1.0/448)
    a(f"v_mul_f32 {vr(vMean)}, {inv}, {vr(vMean)}\nv_mul_f32 {vr(vE2)}, {inv}, {vr(vE2)}")
    a(f"v_fma_f32 {vr(vE2)}, -{vr(vMean)}, {vr(vMean)}, {vr(vE2)}\nv_max_f32 {vr(vE2)}, 0, {vr(vE2)}")
    a(f"v_cvt_pk_bf16_f32 {vr(vt2)}, {vr(vMean)}, {vr(vE2)}")
    a(f"v_lshlrev_b32 {vr(vMean)}, 16, {vr(vt2)}\nv_and_b32 {vr(vE2)}, 0xffff0000, {vr(vt2)}")
    a(f"v_add_f32 {vr(vE2)}, {fhex(1e-5)}, {vr(vE2)}\nv_cvt_pk_bf16_f32 {vr(vE2)}, {vr(vE2)}, {vr(vE2)}\nv_lshlrev_b32 {vr(vE2)}, 16, {vr(vE2)}")
    a(f"v_sqrt_f32 {vr(vE2)}, {vr(vE2)}\ns_nop 0\nv_cvt_pk_bf16_f32 {vr(vE2)}, {vr(vE2)}, {vr(vE2)}\nv_lshlrev_b32 {vr(vE2)}, 16, {vr(vE2)}")
    a(f"v_rcp_f32 {vr(vRstd)}, {vr(vE2)}\ns_nop 0\nv_mul_f32 {vr(vMr)}, {vr(vMean)}, {vr(vRstd)}")
    vms = V.alloc(2,2)
    a(f"v_mov_b32 {vr(vms)}, {vr(vMr)}\nv_mov_b32 {vr(vms+1)}, {vr(vRstd)}")
    a(f"v_add_u32 {vr(vt0)}, s{st[0]}, {vr(vR)}\nv_lshlrev_b32 {vr(vt0)}, 3, {vr(vt0)}")
    a(f"v_cmp_eq_u32 vcc, 0, {vr(vP)}\nv_mov_b32 {vr(vt1)}, 0x7ff00000\ns_nop 0\nv_cndmask_b32 {vr(vt0)}, {vr(vt1)}, {vr(vt0)}, vcc")
    a(f"s_mov_b32 s{st[3]}, {WS_STATS}\nbuffer_store_dwordx2 {vr(vms,2)}, {vr(vt0)}, {sr(sWS,4)}, s{st[3]} offen sc0 sc1")
    ST.stamp()
    vc = V.alloc(8,4)
    for e in range(8): a(f"v_mov_b32 {vr(vc+e)}, 0")
    for m in range(7):
        a(f"s_waitcnt vmcnt({7-m})")
        for q in range(4):
            a(f"v_dot2c_f32_bf16 {vr(vc+2*q)}, s{sLo}, {vr(vw+4*m+q)}")
            a(f"v_dot2c_f32_bf16 {vr(vc+2*q+1)}, s{sHi}, {vr(vw+4*m+q)}")
    a(f"s_lshl_b32 s{st[1]}, s{sw}, 3\nv_add_u32 {vr(vt0)}, s{st[1]}, {vr(vR)}\nv_lshlrev_b32 {vr(vt0)}, 8, {vr(vt0)}\nv_lshl_add_u32 {vr(vt0)}, {vr(vP)}, 5, {vr(vt0)}")
    a(f"s_nop 1\nds_write_b128 {vr(vt0)}, {vr(vc,4)}\nds_write_b128 {vr(vt0)}, {vr(vc+4,4)} offset:16")
    a("s_waitcnt lgkmcnt(0)\ns_barrier")
    vs = V.alloc(8,4)
    a(f"s_lshl_b32 s{st[1]}, s{sw}, 11\nv_lshlrev_b32 {vr(vt0)}, 2, {vr(vl)}\nv_add_u32 {vr(vt1)}, s{st[1]}, {vr(vt0)}")
    for k in range(8): a(f"ds_read_b32 {vr(vs+k)}, {vr(vt1)} offset:{256*k}")
    a("s_waitcnt lgkmcnt(0)")
    for k in (0,2,4,6): a(f"v_add_f32 {vr(vs+k)}, {vr(vs+k)}, {vr(vs+k+1)}")
    a(f"v_add_f32 {vr(vs)}, {vr(vs)}, {vr(vs+2)}\nv_add_f32 {vr(vs+4)}, {vr(vs+4)}, {vr(vs+6)}\nv_add_f32 {vr(vs)}, {vr(vs)}, {vr(vs+4)}")
    a(f"s_lshl_b32 s{st[1]}, s{sw}, 8\nv_add_u32 {vr(vt1)}, s{st[1]}, {vr(vt0)}\nds_write_b32 {vr(vt1)}, {vr(vs)} offset:16384")
    a("s_waitcnt lgkmcnt(0)\ns_barrier")
    l1 = a.newlabel("LN_cs")
    a(f"s_cmp_lg_u32 s{sw}, 0\ns_cbranch_scc1 {l1}")
    for k in range(8): a(f"ds_read_b32 {vr(vs+k)}, {vr(vt0)} offset:{16384+256*k}")
    a("s_waitcnt lgkmcnt(0)")
    for k in (0,2,4,6): a(f"v_add_f32 {vr(vs+k)}, {vr(vs+k)}, {vr(vs+k+1)}")
    a(f"v_add_f32 {vr(vs)}, {vr(vs)}, {vr(vs+2)}\nv_add_f32 {vr(vs+4)}, {vr(vs+4)}, {vr(vs+6)}\nv_add_f32 {vr(vs)}, {vr(vs)}, {vr(vs+4)}")
    l2 = a.newlabel("LN_cs2")
    a(f"s_cmp_ge_u32 s2, 28\ns_cbranch_scc1 {l2}")
    a(f"s_lshl_b32 s{st[1]}, s2, 8\ns_add_u32 s{st[1]}, s{st[1]}, {WS_CS}\nbuffer_store_dword {vr(vs)}, {vr(vt0)}, {sr(sWS,4)}, s{st[1]} offen sc0 sc1")
    a.label(l2)
    a.label(l1)
    a("s_waitcnt vmcnt(0)\ns_barrier")
    l3 = a.newlabel("LN_fl")
    a(f"s_cmp_lg_u32 s{sw}, 0\ns_cbranch_scc1 {l3}")
    a(f"v_mov_b32 {vr(vt1)}, 1\ns_lshl_b32 s{st[1]}, s2, 2\nv_mov_b32 {vr(vt2)}, s{st[1]}")
    a(f"v_cmp_eq_u32 vcc, 0, {vr(vl)}\nv_mov_b32 {vr(vt3)}, 0x7ff00000\ns_nop 0\nv_cndmask_b32 {vr(vt2)}, {vr(vt3)}, {vr(vt2)}, vcc")
    a(f"buffer_store_dword {vr(vt1)}, {vr(vt2)}, {sr(sDB,4)}, 0 offen sc0 sc1")
    a.label(l3)
    ST.stamp()
    LX = 20480
    tmp = V.alloc(8,4)
    a(f"s_lshl_b32 s{st[1]}, s{sw}, 3\nv_add_u32 {vr(vt0)}, s{st[1]}, {vr(vR)}\nv_mul_u32_u24 {vr(vt0)}, 912, {vr(vt0)}\nv_lshl_add_u32 {vr(vt0)}, {vr(vP)}, 4, {vr(vt0)}\nv_add_u32 {vr(vt0)}, {LX}, {vr(vt0)}")
    for m in range(7):
        for q in range(4):
            src = vx+4*m+q
            a(f"v_lshlrev_b32 {vr(tmp+2*q)}, 16, {vr(src)}\nv_and_b32 {vr(tmp+2*q+1)}, 0xffff0000, {vr(src)}")
        for e in range(8): a(f"v_fma_f32 {vr(tmp+e)}, {vr(tmp+e)}, {vr(vRstd)}, -{vr(vMr)}")
        for q in range(4): a(f"v_cvt_pk_bf16_f32 {vr(vx+4*m+q)}, {vr(tmp+2*q)}, {vr(tmp+2*q+1)}")
        a(f"ds_write_b128 {vr(vt0)}, {vr(vx+4*m,4)} offset:{128*m}")
    a("s_waitcnt lgkmcnt(0)\ns_barrier")
    vA = V.alloc(); vO = V.alloc()
    a(f"v_lshrrev_b32 {vr(vt0)}, 4, {vr(vl)}\nv_lshlrev_b32 {vr(vt0)}, 3, {vr(vt0)}\nv_bfe_u32 {vr(vt1)}, {vr(vl)}, 2, 2\nv_add_u32 {vr(vt0)}, {vr(vt0)}, {vr(vt1)}\nv_mul_u32_u24 {vr(vt0)}, 912, {vr(vt0)}")
    a(f"v_and_b32 {vr(vt1)}, 3, {vr(vl)}\nv_lshl_add_u32 {vr(vt0)}, {vr(vt1)}, 3, {vr(vt0)}\ns_lshl_b32 s{st[1]}, s{sw}, 5\ns_add_u32 s{st[1]}, s{st[1]}, {LX}\nv_add_u32 {vr(vA)}, s{st[1]}, {vr(vt0)}")
    a(f"v_and_b32 {vr(vt0)}, 15, {vr(vl)}\ns_lshl_b32 s{st[1]}, s{sw}, 4\nv_add_u32 {vr(vt0)}, s{st[1]}, {vr(vt0)}\nv_lshlrev_b32 {vr(vt0)}, 12, {vr(vt0)}")
    a(f"v_lshrrev_b32 {vr(vt1)}, 4, {vr(vl)}\nv_lshl_add_u32 {vr(vt0)}, {vr(vt1)}, 4, {vr(vt0)}\ns_lshl_b32 s{st[1]}, s2, 7\ns_add_u32 s{st[1]}, s{st[1]}, {WS_XNT}\nv_add_u32 {vr(vO)}, s{st[1]}, {vr(vt0)}")
    vo = [V.alloc(4,4) for _ in range(8)]
    ldone = a.newlabel("LN_x")
    for n in range(4):
        if n == 3: a(f"s_cmp_ge_u32 s{sw}, 4\ns_cbranch_scc1 {ldone}")
        for v in range(2):
            for u in range(2):
                a(f"ds_read_b64_tr_b16 {vr(vo[2*n+v]+2*u,2)}, {vr(vA)} offset:{n*256 + (32*v+4*u)*912}")
        a("s_waitcnt lgkmcnt(0)")
        for v in range(2):
            a(f"s_mov_b32 s{st[3]}, {n*128*4096}\nbuffer_store_dwordx4 {vr(vo[2*n+v],4)}, {vr(vO)}, {sr(sWS,4)}, s{st[3]} offen offset:{64*v}")
    a.label(ldone)
    a("s_waitcnt vmcnt(0)")
    ST.stamp()
    ST.flush(sWS, WS_STAMP, vt0, 2*((st[0]+1)//2), 3)
    a(f"s_branch {end}")
    return V.hi, S.hi

def gen_k1(name="g1_kernel", stamp=False, nomfma=False, noreads=False, nostore=False, stagest=False):
    a = Asm()
    V = Regs("v", 1, 256); S = Regs("s", 3, 100)
    end = "G1_END"
    ST = Stamps(a, S, 14, stamp)
    s0 = S.mark()
    a(f"s_cmp_ge_u32 s2, 256\ns_cbranch_scc1 {end}")
    ST.start()
    a("s_cmp_ge_u32 s2, 32\ns_cbranch_scc1 G1_MAIN")
    k0 = ST.k
    lnv, lns = gen_ln(a, 1, s0, ST, end, WS_SIZE)
    ST.k = k0
    a.label("G1_MAIN")
    XR = 0; WR = 114688; SP = 155648
    L_CS = SP; L_B1 = SP+512
    sX = S.alloc(4,4); sW1 = S.alloc(4,4); sWS = S.alloc(4,4); sW2 = S.alloc(4,4); sB1 = S.alloc(4,4); sDB = S.alloc(4,4)
    pX = S.alloc(2,2); pW1 = S.alloc(2,2); pB1 = S.alloc(2,2); pW2 = S.alloc(2,2); pWS = S.alloc(2,2); pDB = S.alloc(2,2)
    sw = S.alloc(); swf = S.alloc(); swt = S.alloc(); si = S.alloc(); sj = S.alloc(); sid = S.alloc()
    st = [S.alloc() for _ in range(8)]
    sM0x = S.alloc(); sM0w = S.alloc()
    a(f"s_load_dwordx2 {sr(pX,2)}, s[0:1], 0")
    a(f"s_load_dwordx2 {sr(pW1,2)}, s[0:1], 80")
    a(f"s_load_dwordx2 {sr(pB1,2)}, s[0:1], 88")
    a(f"s_load_dwordx2 {sr(pW2,2)}, s[0:1], 96")
    a(f"s_load_dwordx2 {sr(pWS,2)}, s[0:1], 128")
    a(f"s_load_dwordx2 {sr(pDB,2)}, s[0:1], 120")
    vl = V.alloc(); vt0 = V.alloc(); vt1 = V.alloc(); vt2 = V.alloc(); vt3 = V.alloc()
    a(f"v_lshrrev_b32 {vr(vt0)}, 6, v0")
    a(f"v_and_b32 {vr(vl)}, 63, v0")
    a(f"v_readfirstlane_b32 s{sw}, {vr(vt0)}")
    a(f"s_sub_u32 s{sid}, s2, 32")
    a(f"s_and_b32 s{st[0]}, s{sid}, 7\ns_lshr_b32 s{st[1]}, s{sid}, 3")
    a(f"s_lshr_b32 s{st[2]}, s{st[0]}, 1\ns_lshl_b32 s{st[2]}, s{st[2]}, 2\ns_and_b32 s{st[3]}, s{st[1]}, 3\ns_add_u32 s{si}, s{st[2]}, s{st[3]}")
    a(f"s_and_b32 s{st[2]}, s{st[0]}, 1\ns_mul_i32 s{st[2]}, s{st[2]}, 7\ns_lshr_b32 s{st[3]}, s{st[1]}, 2\ns_add_u32 s{sj}, s{st[2]}, s{st[3]}")
    a(f"s_and_b32 s{swf}, s{sw}, 1\ns_lshr_b32 s{swt}, s{sw}, 1")
    vXo = [V.alloc(), V.alloc()]; vWo = V.alloc()
    a(f"v_lshrrev_b32 {vr(vt0)}, 3, {vr(vl)}")
    a(f"v_and_b32 {vr(vt1)}, 7, {vr(vl)}")
    a(f"s_lshl_b32 s{st[0]}, s{sw}, 4\ns_lshl_b32 s{st[1]}, s{si}, 7\ns_add_u32 s{st[0]}, s{st[0]}, s{st[1]}")
    for u in range(2):
        a(f"v_lshrrev_b32 {vr(vt2)}, 1, {vr(vt0)}")
        if u: a(f"v_add_u32 {vr(vt2)}, 4, {vr(vt2)}")
        a(f"v_xor_b32 {vr(vt2)}, {vr(vt2)}, {vr(vt1)}")
        a(f"v_add_u32 {vr(vt3)}, s{st[0]}, {vr(vt0)}")
        if u: a(f"v_add_u32 {vr(vt3)}, 8, {vr(vt3)}")
        a(f"v_mul_u32_u24 {vr(vt3)}, 896, {vr(vt3)}")
        a(f"v_lshl_add_u32 {vr(vXo[u])}, {vr(vt2)}, 4, {vr(vt3)}")
    a(f"v_lshrrev_b32 {vr(vt0)}, 4, {vr(vl)}")
    a(f"v_and_b32 {vr(vt1)}, 15, {vr(vl)}")
    a(f"v_lshlrev_b32 {vr(vt2)}, 2, {vr(vt0)}")
    a(f"v_xor_b32 {vr(vt2)}, {vr(vt2)}, {vr(vt1)}")
    a(f"s_lshl_b32 s{st[0]}, s{sw}, 2")
    a(f"v_add_u32 {vr(vt3)}, s{st[0]}, {vr(vt0)}")
    a(f"v_mul_u32_u24 {vr(vt3)}, 3584, {vr(vt3)}")
    a(f"v_lshl_add_u32 {vr(vWo)}, {vr(vt2)}, 4, {vr(vt3)}")
    a(f"s_lshl_b32 s{st[1]}, s{sj}, 8")
    a(f"v_add_u32 {vr(vWo)}, s{st[1]}, {vr(vWo)}")
    a(f"s_lshl_b32 s{sM0x}, s{sw}, 11")
    a(f"s_lshl_b32 s{sM0w}, s{sw}, 10\ns_add_u32 s{sM0w}, s{sM0w}, {WR}")
    a("s_waitcnt lgkmcnt(0)")
    srd(a, sX, pX, X_BYTES); srd(a, sW1, pW1, W_BYTES)
    vm = []
    def issue_group(s):
        if s % 2 == 0:
            c = s//2
            for u in range(2):
                a(f"s_add_u32 m0, s{sM0x}, {c*16384 + u*1024}")
                a(f"s_movk_i32 s{st[4]}, {c*128}")
                a(f"buffer_load_dwordx4 {vr(vXo[u])}, {sr(sX,4)}, s{st[4]} offen lds")
                vm.append(("G", s))
        a(f"s_add_u32 m0, s{sM0w}, {(s%5)*8192}")
        a(f"s_mov_b32 s{st[5]}, {s*114688}")
        a(f"buffer_load_dwordx4 {vr(vWo)}, {sr(sW1,4)}, s{st[5]} offen lds")
        vm.append(("G", s))
    def wait_for(tag):
        last = max(i for i,e in enumerate(vm) if e == tag)
        a(f"s_waitcnt vmcnt({len(vm) - 1 - last})")
    issue_group(0); issue_group(1)
    srd(a, sWS, pWS, WS_SIZE); srd(a, sW2, pW2, W_BYTES); srd(a, sB1, pB1, 3584); srd(a, sDB, pDB, 256)
    vB1 = V.alloc(); vW2 = V.alloc(4,2); vW2o = V.alloc()
    a(f"v_and_b32 {vr(vt0)}, 127, v0\nv_lshlrev_b32 {vr(vt0)}, 1, {vr(vt0)}\nv_add_u32 {vr(vt0)}, s{st[1]}, {vr(vt0)}")
    a(f"buffer_load_ushort {vr(vB1)}, {vr(vt0)}, {sr(sB1,4)}, 0 offen"); vm.append("b1")
    sKap = S.alloc(); sDb = S.alloc()
    a(f"s_lshr_b32 s{sKap}, s{sid}, 1\ns_and_b32 s{sDb}, s{sid}, 1\ns_mul_i32 s{sDb}, s{sDb}, 7\ns_min_u32 s{st[0]}, s{sw}, 6\ns_add_u32 s{sDb}, s{sDb}, s{st[0]}")
    a(f"v_lshrrev_b32 {vr(vt0)}, 2, {vr(vl)}\ns_lshl_b32 s{st[0]}, s{sKap}, 4\nv_add_u32 {vr(vt0)}, s{st[0]}, {vr(vt0)}\nv_mul_u32_u24 {vr(vt0)}, 896, {vr(vt0)}")
    a(f"v_and_b32 {vr(vt1)}, 3, {vr(vl)}\nv_lshl_add_u32 {vr(vt0)}, {vr(vt1)}, 4, {vr(vt0)}\ns_lshl_b32 s{st[0]}, s{sDb}, 6\nv_add_u32 {vr(vW2o)}, s{st[0]}, {vr(vt0)}")
    a(f"buffer_load_dwordx4 {vr(vW2,4)}, {vr(vW2o)}, {sr(sW2,4)}, 0 offen"); vm.append("w2")
    for s in range(2,5): issue_group(s)
    vA = [V.alloc(), V.alloc()]; vB = [V.alloc() for _ in range(4)]
    vg = vt0; vr_ = vt1; vcq = vt2
    a(f"v_lshrrev_b32 {vr(vg)}, 4, {vr(vl)}\nv_bfe_u32 {vr(vr_)}, {vr(vl)}, 2, 2\nv_and_b32 {vr(vcq)}, 3, {vr(vl)}")
    a(f"v_and_b32 {vr(vt3)}, 1, {vr(vg)}\nv_lshlrev_b32 {vr(vt3)}, 1, {vr(vt3)}\nv_lshrrev_b32 {vr(vA[0])}, 1, {vr(vcq)}\nv_add_u32 {vr(vt3)}, {vr(vt3)}, {vr(vA[0])}")
    a(f"s_lshl_b32 s{st[0]}, s{swf}, 3\nv_add_u32 {vr(vt3)}, s{st[0]}, {vr(vt3)}")
    a(f"v_lshlrev_b32 {vr(vA[0])}, 2, {vr(vr_)}\nv_xor_b32 {vr(vt3)}, {vr(vt3)}, {vr(vA[0])}")
    a(f"v_lshlrev_b32 {vr(vt3)}, 4, {vr(vt3)}")
    a(f"v_and_b32 {vr(vcq)}, 1, {vr(vcq)}\nv_lshl_add_u32 {vr(vt3)}, {vr(vcq)}, 3, {vr(vt3)}")
    a(f"v_lshrrev_b32 {vr(vg)}, 1, {vr(vg)}\nv_lshl_add_u32 {vr(vg)}, {vr(vg)}, 3, {vr(vr_)}")
    a(f"v_lshl_add_u32 {vr(vt3)}, {vr(vg)}, 8, {vr(vt3)}")
    a(f"v_add_u32 {vr(vA[0])}, {WR}, {vr(vt3)}\nv_xor_b32 {vr(vt3)}, 64, {vr(vt3)}\nv_add_u32 {vr(vA[1])}, {WR}, {vr(vt3)}")
    vT = V.alloc()
    a(f"v_and_b32 {vr(vT)}, 31, {vr(vl)}\ns_lshl_b32 s{st[0]}, s{swt}, 5\nv_add_u32 {vr(vT)}, s{st[0]}, {vr(vT)}")
    a(f"v_bfe_u32 {vr(vt0)}, {vr(vT)}, 1, 3\nv_lshrrev_b32 {vr(vt1)}, 5, {vr(vl)}")
    for k in range(4):
        a(f"v_add_u32 {vr(vt2)}, {2*k}, {vr(vt1)}\nv_xor_b32 {vr(vt2)}, {vr(vt2)}, {vr(vt0)}\nv_lshlrev_b32 {vr(vt2)}, 4, {vr(vt2)}\nv_lshl_add_u32 {vr(vB[k])}, {vr(vT)}, 7, {vr(vt2)}")
    acc = [V.alloc(16,4), V.alloc(16,4)]
    fr = [dict(A0=V.alloc(4,2), A1=V.alloc(4,2), B=V.alloc(4,2)) for _ in range(2)]
    first = [True, True]
    def reads(s, ks, st_):
        if noreads: return
        f = fr[st_]; slot = s % 5; c = s//2; ks4 = 2*(s%2) + ks
        off = slot*8192 + ks*4096
        a(f"ds_read_b64_tr_b16 {vr(f['A0'],2)}, {vr(vA[0])} offset:{off}")
        a(f"ds_read_b64_tr_b16 {vr(f['A0']+2,2)}, {vr(vA[0])} offset:{off+1024}")
        a(f"ds_read_b128 {vr(f['B'],4)}, {vr(vB[ks4])} offset:{(c%4)*16384}")
        a(f"ds_read_b64_tr_b16 {vr(f['A1'],2)}, {vr(vA[1])} offset:{off}")
        a(f"ds_read_b64_tr_b16 {vr(f['A1']+2,2)}, {vr(vA[1])} offset:{off+1024}")
    def mfmas(st_):
        if nomfma: return
        f = fr[st_]
        for q, key in ((0,'A0'), (1,'A1')):
            c = "0" if first[q] else vr(acc[q],16)
            first[q] = False
            a(f"v_mfma_f32_32x32x16_bf16 {vr(acc[q],16)}, {vr(f[key],4)}, {vr(f['B'],4)}, {c}")
    ST.stamp()
    wait_for("b1")
    ST.stamp()
    a(f"v_lshlrev_b32 {vr(vB1)}, 16, {vr(vB1)}")
    a(f"v_and_b32 {vr(vt0)}, 127, v0\nv_lshlrev_b32 {vr(vt0)}, 2, {vr(vt0)}\nv_add_u32 {vr(vt0)}, {L_B1}, {vr(vt0)}")
    a(f"ds_write_b32 {vr(vt0)}, {vr(vB1)}")
    a("s_waitcnt lgkmcnt(0)\ns_barrier")
    reads(0, 0, 0)
    vFl = V.alloc(); vFo = V.alloc(); vms = V.alloc(2,2); vcsl = V.alloc(); vso = V.alloc(); vco = V.alloc()
    for s in range(14):
        reads(s, 1, 1)
        a("s_waitcnt lgkmcnt(5)")
        mfmas(0)
        if s == 9:
            a(f"v_and_b32 {vr(vt0)}, 1, {vr(vl)}\ns_lshl_b32 s{st[0]}, s{si}, 1\ns_lshl_b32 s{st[1]}, s{sj}, 1\nv_mov_b32 {vr(vt1)}, s{st[0]}\nv_mov_b32 {vr(vt2)}, s{st[1]}")
            a(f"v_and_b32 {vr(vt3)}, 2, {vr(vl)}\nv_cmp_eq_u32 vcc, 0, {vr(vt3)}\ns_nop 1\nv_cndmask_b32 {vr(vt1)}, {vr(vt2)}, {vr(vt1)}, vcc\nv_add_u32 {vr(vt1)}, {vr(vt1)}, {vr(vt0)}\nv_lshlrev_b32 {vr(vFo)}, 2, {vr(vt1)}")
            a(f"buffer_load_dword {vr(vFl)}, {vr(vFo)}, {sr(sDB,4)}, 0 offen sc0 sc1"); vm.append("fl")
            a(f"s_lshl_b32 s{st[0]}, s{si}, 7\nv_add_u32 {vr(vso)}, s{st[0]}, {vr(vT)}\nv_lshlrev_b32 {vr(vso)}, 3, {vr(vso)}")
            a(f"v_and_b32 {vr(vco)}, 127, v0\ns_lshl_b32 s{st[0]}, s{sj}, 7\nv_add_u32 {vr(vco)}, s{st[0]}, {vr(vco)}\nv_lshlrev_b32 {vr(vco)}, 2, {vr(vco)}")
        if s == 11:
            lok = a.newlabel("G1_fok"); lsp = a.newlabel("G1_spin")
            wait_for("fl")
            a(f"s_mov_b32 s{st[6]}, 0x400000")
            a.label(lsp)
            a(f"v_cmp_eq_u32 vcc, 0, {vr(vFl)}\ns_nop 1\ns_cmp_eq_u64 vcc, 0\ns_cbranch_scc1 {lok}")
            a(f"s_sub_u32 s{st[6]}, s{st[6]}, 1\ns_cmp_eq_u32 s{st[6]}, 0\ns_cbranch_scc1 {lok}")
            a(f"s_sleep 2\nbuffer_load_dword {vr(vFl)}, {vr(vFo)}, {sr(sDB,4)}, 0 offen sc0 sc1\ns_waitcnt vmcnt(0)\ns_branch {lsp}")
            a.label(lok)
            a(f"s_mov_b32 s{st[0]}, {WS_STATS}\nbuffer_load_dwordx2 {vr(vms,2)}, {vr(vso)}, {sr(sWS,4)}, s{st[0]} offen sc0 sc1"); vm.append("ms")
            a(f"s_mov_b32 s{st[1]}, {WS_CS}\nbuffer_load_dword {vr(vcsl)}, {vr(vco)}, {sr(sWS,4)}, s{st[1]} offen sc0 sc1"); vm.append("cs")
        if s < 13:
            a("s_waitcnt lgkmcnt(0)")
            wait_for(("G", s+1))
            a("s_barrier")
            if stagest and s in (0,4,8,12): ST.stamp()
            if s+5 < 14: issue_group(s+5)
            if s+1 == 8:
                for k in range(4): a(f"v_add_u32 {vr(vB[k])}, 0x10000, {vr(vB[k])}")
            reads(s+1, 0, 0)
        else:
            a("s_waitcnt lgkmcnt(0)")
        mfmas(1)
    ST.stamp()
    wait_for("cs")
    a(f"v_and_b32 {vr(vt0)}, 127, v0\nv_lshlrev_b32 {vr(vt0)}, 2, {vr(vt0)}\nv_add_u32 {vr(vt0)}, {L_CS}, {vr(vt0)}\nds_write_b32 {vr(vt0)}, {vr(vcsl)}")
    vst = V.alloc()
    a(f"v_lshlrev_b32 {vr(vst)}, 4, {vr(vl)}\nv_add_u32 {vr(vst)}, s{sM0w}, {vr(vst)}")
    a(f"ds_write_b128 {vr(vst)}, {vr(vW2,4)}")
    a(f"v_lshrrev_b32 {vr(vt0)}, 5, {vr(vl)}\nv_lshlrev_b32 {vr(vt0)}, 2, {vr(vt0)}\nv_bfe_u32 {vr(vt2)}, {vr(vl)}, 2, 2\nv_add_u32 {vr(vt0)}, {vr(vt0)}, {vr(vt2)}\nv_lshlrev_b32 {vr(vt0)}, 6, {vr(vt0)}")
    a(f"v_bfe_u32 {vr(vt2)}, {vr(vl)}, 4, 1\nv_lshl_add_u32 {vr(vt0)}, {vr(vt2)}, 5, {vr(vt0)}\nv_and_b32 {vr(vt2)}, 3, {vr(vl)}\nv_lshl_add_u32 {vr(vt0)}, {vr(vt2)}, 3, {vr(vt0)}\nv_add_u32 {vr(vt0)}, s{sM0w}, {vr(vt0)}")
    a(f"ds_read_b64_tr_b16 {vr(vW2,2)}, {vr(vt0)}\nds_read_b64_tr_b16 {vr(vW2+2,2)}, {vr(vt0)} offset:512")
    a("s_waitcnt lgkmcnt(0)\ns_barrier")
    lskip = a.newlabel("G1_w2s")
    a(f"s_cmp_eq_u32 s{sw}, 7\ns_cbranch_scc1 {lskip}")
    a(f"s_mul_i32 s{st[0]}, s{sDb}, 112\ns_add_u32 s{st[0]}, s{st[0]}, s{sKap}\ns_lshl_b32 s{st[0]}, s{st[0]}, 10\ns_add_u32 s{st[0]}, s{st[0]}, {WS_W2T}")
    a(f"v_lshlrev_b32 {vr(vt0)}, 4, {vr(vl)}")
    a(f"buffer_store_dwordx4 {vr(vW2,4)}, {vr(vt0)}, {sr(sWS,4)}, s{st[0]} offen")
    a.label(lskip)
    ST.stamp()
    vMr = vms; vRstd = vms+1
    vcs = V.alloc(4,4); vb = V.alloc(4,4); vcs2 = V.alloc(4,4); vb2 = V.alloc(4,4)
    tmp = V.alloc(8,4); vH = V.alloc(4,4)
    a(f"v_lshrrev_b32 {vr(vt0)}, 5, {vr(vl)}\nv_lshlrev_b32 {vr(vt0)}, 4, {vr(vt0)}\ns_lshl_b32 s{st[0]}, s{swf}, 8\nv_add_u32 {vr(vt0)}, s{st[0]}, {vr(vt0)}\nv_add_u32 {vr(vt0)}, {L_CS}, {vr(vt0)}")
    vHo = V.alloc()
    a(f"s_lshl_b32 s{st[0]}, s{si}, 2\ns_add_u32 s{st[0]}, s{st[0]}, s{swt}\ns_mul_i32 s{st[0]}, s{st[0]}, 112\ns_lshl_b32 s{st[1]}, s{sj}, 3\ns_add_u32 s{st[0]}, s{st[0]}, s{st[1]}\ns_lshl_b32 s{st[1]}, s{swf}, 2\ns_add_u32 s{st[0]}, s{st[0]}, s{st[1]}\ns_lshl_b32 s{st[0]}, s{st[0]}, 10")
    a(f"v_lshlrev_b32 {vr(vHo)}, 4, {vr(vl)}\nv_add_u32 {vr(vHo)}, s{st[0]}, {vr(vHo)}")
    vC0 = V.alloc(); vC1 = V.alloc()
    a(f"v_mov_b32 {vr(vC0)}, {fhex(GELU_C0)}\nv_mov_b32 {vr(vC1)}, {fhex(GELU_C1)}")
    bufs = [(vcs, vb), (vcs2, vb2)]
    sub = [(fb, kk, gg) for fb in range(2) for kk in range(2) for gg in range(2)]
    def rds(k):
        fb, kk, gg = sub[k]; dcs, db = bufs[k&1]
        off = (32*fb + 16*kk + 8*gg)*4
        a(f"ds_read_b128 {vr(dcs,4)}, {vr(vt0)} offset:{off}")
        a(f"ds_read_b128 {vr(db,4)}, {vr(vt0)} offset:{off+512}")
    rds(0)
    for k in range(8):
        fb, kk, gg = sub[k]; dcs, db = bufs[k&1]
        if k+1 < 8:
            rds(k+1); a("s_waitcnt lgkmcnt(2)")
        else: a("s_waitcnt lgkmcnt(0)")
        base = acc[fb] + 8*kk + 4*gg
        hv = [tmp+e for e in range(4)]; p = [tmp+4+e for e in range(4)]
        for e in range(4): a(f"v_fma_f32 {vr(hv[e])}, -{vr(vMr)}, {vr(dcs+e)}, {vr(db+e)}")
        for e in range(4): a(f"v_fmac_f32 {vr(hv[e])}, {vr(base+e)}, {vr(vRstd)}")
        for e in range(4): a(f"v_mul_f32 {vr(p[e])}, {vr(hv[e])}, {vr(hv[e])}")
        for e in range(4): a(f"v_fma_f32 {vr(p[e])}, {vr(p[e])}, {vr(vC1)}, {vr(vC0)}")
        for e in range(4): a(f"v_mul_f32 {vr(p[e])}, {vr(p[e])}, {vr(hv[e])}")
        for e in range(4): a(f"v_exp_f32 {vr(p[e])}, {vr(p[e])}")
        for e in range(4): a(f"v_add_f32 {vr(p[e])}, 1.0, {vr(p[e])}")
        for e in range(4): a(f"v_rcp_f32 {vr(p[e])}, {vr(p[e])}")
        for e in range(4): a(f"v_mul_f32 {vr(hv[e])}, {vr(hv[e])}, {vr(p[e])}")
        a(f"v_cvt_pk_bf16_f32 {vr(vH+2*gg)}, {vr(hv[0])}, {vr(hv[1])}\nv_cvt_pk_bf16_f32 {vr(vH+2*gg+1)}, {vr(hv[2])}, {vr(hv[3])}")
        if gg == 1:
            a(f"buffer_store_dwordx4 {vr(vH,4)}, {vr(vHo)}, {sr(sWS,4)}, 0 offen offset:{(2*fb+kk)*1024}")
            a("s_nop 1")
    lz = a.newlabel("G1_fz")
    a(f"s_cmp_lg_u32 s2, 32\ns_cbranch_scc1 {lz}")
    a(f"v_mov_b32 {vr(vt2)}, 0\nv_lshlrev_b32 {vr(vt0)}, 2, v0\ns_mov_b32 s{st[0]}, {WS_FLAG}\nbuffer_store_dword {vr(vt2)}, {vr(vt0)}, {sr(sWS,4)}, s{st[0]} offen")
    a.label(lz)
    ST.stamp()
    a("s_waitcnt vmcnt(0)")
    ST.stamp()
    ST.flush(sWS, WS_STAMP, vt0, 2*((st[0]+1)//2), 3)
    a.label(end)
    if nostore:
        a.lines = [l for l in a.lines if not ("buffer_store_dwordx4" in l)]
    hv_ = max(V.hi, lnv); hs = max(S.hi, lns)
    print("K1 vgprs", V.hi, lnv, "sgprs", S.hi, lns)
    return kernel_wrap(name, a.text(), hv_, sgpr=max(hs, 16))

if __name__ == "__main__":
    t = gen_k1()
    open("k1.s","w").write('.amdgcn_target "amdgcn-amd-amdhsa--gfx950"\n' + t)
```

```python
from asm import *
from common import *
LOG2E = 1.4426950408889634
INV2PI = 0.15915494309189535

def gen_g2(a, s0, ST, end, depth=4):
    V = Regs("v", 1, 168); S = Regs("s", s0, 100)
    sWS = S.alloc(4,4); sX = S.alloc(4,4); sB2 = S.alloc(4,4); sO = S.alloc(4,4)
    pWS = S.alloc(2,2); pX = S.alloc(2,2); pB2 = S.alloc(2,2); pO = S.alloc(2,2)
    sw = S.alloc(); stt = S.alloc(); sdt = S.alloc(); sdb = S.alloc(); stb = S.alloc()
    st = [S.alloc() for _ in range(6)]
    a(f"s_load_dwordx2 {sr(pWS,2)}, s[0:1], 128\ns_load_dwordx2 {sr(pX,2)}, s[0:1], 0\ns_load_dwordx2 {sr(pB2,2)}, s[0:1], 104\ns_load_dwordx2 {sr(pO,2)}, s[0:1], 112")
    vl = V.alloc(); vt0 = V.alloc(); vt1 = V.alloc(); vt2 = V.alloc()
    a(f"v_lshrrev_b32 {vr(vt0)}, 6, v0\nv_and_b32 {vr(vl)}, 63, v0\nv_readfirstlane_b32 s{sw}, {vr(vt0)}")
    a(f"s_and_b32 s{stt}, s2, 31\ns_lshr_b32 s{sdt}, s2, 5")
    a(f"v_lshlrev_b32 {vr(vt0)}, 4, {vr(vl)}")
    a(f"s_lshr_b32 s{sdb}, s{sw}, 1\ns_and_b32 s{stb}, s{sw}, 1")
    vA = [V.alloc(), V.alloc()]; vB = [V.alloc(), V.alloc()]
    a(f"s_mul_i32 s{st[0]}, s{sw}, {28*1024}")
    for i in range(2):
        a(f"s_xor_b32 s{st[1]}, s{sdb}, {i}\ns_lshl_b32 s{st[2]}, s{sdt}, 1\ns_add_u32 s{st[1]}, s{st[1]}, s{st[2]}\ns_mul_i32 s{st[1]}, s{st[1]}, 114688\ns_add_u32 s{st[1]}, s{st[1]}, s{st[0]}\ns_add_u32 s{st[1]}, s{st[1]}, {WS_W2T}")
        a(f"v_add_u32 {vr(vA[i])}, s{st[1]}, {vr(vt0)}")
        a(f"s_xor_b32 s{st[1]}, s{stb}, {i}\ns_lshl_b32 s{st[2]}, s{stt}, 1\ns_add_u32 s{st[1]}, s{st[1]}, s{st[2]}\ns_mul_i32 s{st[1]}, s{st[1]}, 114688\ns_add_u32 s{st[1]}, s{st[1]}, s{st[0]}")
        a(f"v_add_u32 {vr(vB[i])}, s{st[1]}, {vr(vt0)}")
    a("s_waitcnt lgkmcnt(0)")
    srd(a, sWS, pWS, WS_SIZE)
    ring = [V.alloc(16,4) for _ in range(depth)]
    acc = [[V.alloc(16,4) for _ in range(2)] for _ in range(2)]
    vm = []
    sK = S.alloc()
    def loads(k):
        r = ring[k % depth]; off = (k % 4)*1024
        if k % 4 == 0: a(f"s_mov_b32 s{sK}, {(k//4)*4096}")
        for q, v in enumerate((vA[0], vB[0], vA[1], vB[1])):
            a(f"buffer_load_dwordx4 {vr(r+4*q,4)}, {vr(v)}, {sr(sWS,4)}, s{sK} offen offset:{off}"); vm.append(("k",k))
    def wait_for(tag):
        last = max(i for i,e in enumerate(vm) if e == tag)
        a(f"s_waitcnt vmcnt({len(vm)-1-last})")
    for k in range(depth-1): loads(k)
    ST.stamp()
    srd(a, sX, pX, X_BYTES); srd(a, sB2, pB2, 896); srd(a, sO, pO, X_BYTES)
    vx = V.alloc(8,2); vb2 = V.alloc(8,2); vXo = V.alloc(); vYo = V.alloc(); vFo = V.alloc(); vFl = V.alloc()
    sd0 = S.alloc(); st0 = S.alloc()
    a(f"s_lshl_b32 s{sd0}, s{sdt}, 6\ns_lshl_b32 s{st[0]}, s{sdb}, 5\ns_add_u32 s{sd0}, s{sd0}, s{st[0]}")
    a(f"s_lshl_b32 s{st0}, s{stt}, 6\ns_lshl_b32 s{st[0]}, s{stb}, 5\ns_add_u32 s{st0}, s{st0}, s{st[0]}")
    a(f"v_and_b32 {vr(vt0)}, 31, {vr(vl)}\nv_lshrrev_b32 {vr(vt1)}, 5, {vr(vl)}")
    a(f"v_add_u32 {vr(vt2)}, s{st0}, {vr(vt0)}\nv_mul_u32_u24 {vr(vt2)}, 896, {vr(vt2)}\nv_lshl_add_u32 {vr(vt2)}, {vr(vt1)}, 3, {vr(vt2)}\ns_lshl_b32 s{st[0]}, s{sd0}, 1\nv_add_u32 {vr(vXo)}, s{st[0]}, {vr(vt2)}")
    for g in range(4):
        a(f"buffer_load_dwordx2 {vr(vx+2*g,2)}, {vr(vXo)}, {sr(sX,4)}, 0 offen offset:{16*g}"); vm.append("x")
    a(f"v_lshlrev_b32 {vr(vt2)}, 3, {vr(vt1)}\nv_add_u32 {vr(vt2)}, s{st[0]}, {vr(vt2)}")
    for g in range(4):
        a(f"buffer_load_dwordx2 {vr(vb2+2*g,2)}, {vr(vt2)}, {sr(sB2,4)}, 0 offen offset:{16*g}"); vm.append("b2")
    a(f"v_and_b32 {vr(vt2)}, 30, {vr(vt0)}\nv_lshlrev_b32 {vr(vt2)}, 1, {vr(vt2)}\nv_lshl_add_u32 {vr(vt2)}, {vr(vt1)}, 9, {vr(vt2)}")
    a(f"s_mul_i32 s{st[0]}, s{stt}, 57344\ns_lshl_b32 s{st[1]}, s{sd0}, 7\ns_add_u32 s{st[0]}, s{st[0]}, s{st[1]}\ns_lshl_b32 s{st[1]}, s{stb}, 6\ns_add_u32 s{st[0]}, s{st[0]}, s{st[1]}\ns_add_u32 s{st[0]}, s{st[0]}, {WS_Y}")
    a(f"v_add_u32 {vr(vYo)}, s{st[0]}, {vr(vt2)}")
    a(f"v_add_u32 {vr(vt2)}, s{sd0}, {vr(vt0)}\nv_lshlrev_b32 {vr(vt2)}, 2, {vr(vt2)}\nv_add_u32 {vr(vFo)}, {WS_FLAG}, {vr(vt2)}")
    vy = ring[3]
    assert depth == 4
    first = [[True,True],[True,True]]
    NK = 28
    for k in range(NK):
        if k + depth - 1 < NK: loads(k + depth - 1)
        wait_for(("k",k))
        r = ring[k % depth]
        for i in range(2):
            for j in range(2):
                c = "0" if first[i][j] else vr(acc[i][j],16)
                first[i][j] = False
                a(f"v_mfma_f32_32x32x16_bf16 {vr(acc[i][j],16)}, {vr(r+8*i,4)}, {vr(r+4+8*j,4)}, {c}")
        if k == NK - depth:
            a(f"buffer_load_dword {vr(vFl)}, {vr(vFo)}, {sr(sWS,4)}, 0 offen sc0 sc1"); vm.append("fl")
    ST.stamp()
    lok = a.newlabel("G2_fok"); lsp = a.newlabel("G2_spin")
    wait_for("fl")
    a(f"s_mov_b32 s{st[4]}, 0x400000")
    a.label(lsp)
    a(f"v_cmp_eq_u32 vcc, 0, {vr(vFl)}\ns_nop 1\ns_cmp_eq_u64 vcc, 0\ns_cbranch_scc1 {lok}")
    a(f"s_sub_u32 s{st[4]}, s{st[4]}, 1\ns_cmp_eq_u32 s{st[4]}, 0\ns_cbranch_scc1 {lok}")
    a(f"s_sleep 2\nbuffer_load_dword {vr(vFl)}, {vr(vFo)}, {sr(sWS,4)}, 0 offen sc0 sc1\ns_waitcnt vmcnt(0)\ns_branch {lsp}")
    a.label(lok)
    for g in range(4):
        for i in range(4):
            a(f"buffer_load_dword {vr(vy+4*g+i)}, {vr(vYo)}, {sr(sWS,4)}, 0 offen offset:{(8*g+i)*128} sc0 sc1")
    ST.stamp()
    vXw = V.alloc(); vXr = V.alloc()
    a(f"v_lshlrev_b32 {vr(vt0)}, 4, {vr(vl)}")
    a("s_nop 7")
    for (i,j) in ((0,1),(1,0),(1,1)):
        sl = 2*i+j
        a(f"s_xor_b32 s{st[0]}, s{sw}, {sl}\ns_mul_i32 s{st[0]}, s{st[0]}, 12288\ns_add_u32 s{st[0]}, s{st[0]}, {(sl-1)*4096}\nv_add_u32 {vr(vXw)}, s{st[0]}, {vr(vt0)}")
        for q in range(4):
            a(f"ds_write_b128 {vr(vXw)}, {vr(acc[i][j]+4*q,4)} offset:{1024*q}")
    a(f"s_mul_i32 s{st[0]}, s{sw}, 12288\nv_add_u32 {vr(vXr)}, s{st[0]}, {vr(vt0)}")
    a("s_waitcnt lgkmcnt(0)\ns_barrier")
    pr = ring[0]
    for sl in range(3):
        for q in range(4):
            a(f"ds_read_b128 {vr(ring[sl]+4*q,4)}, {vr(vXr)} offset:{sl*4096+1024*q}")
    o = acc[0][0]
    for sl in range(3):
        a(f"s_waitcnt lgkmcnt({4*(2-sl)})")
        for e in range(16): a(f"v_add_f32 {vr(o+e)}, {vr(o+e)}, {vr(ring[sl]+e)}")
    tmp = ring[0]
    for g in range(4):
        for src in (vb2, vx):
            a(f"v_lshlrev_b32 {vr(tmp)}, 16, {vr(src+2*g)}\nv_and_b32 {vr(tmp+1)}, 0xffff0000, {vr(src+2*g)}\nv_lshlrev_b32 {vr(tmp+2)}, 16, {vr(src+2*g+1)}\nv_and_b32 {vr(tmp+3)}, 0xffff0000, {vr(src+2*g+1)}")
            for i in range(4): a(f"v_add_f32 {vr(o+4*g+i)}, {vr(o+4*g+i)}, {vr(tmp+i)}")
    a(f"v_and_b32 {vr(vt1)}, 1, {vr(vl)}\nv_xor_b32 {vr(vt1)}, 1, {vr(vt1)}\nv_lshlrev_b32 {vr(vt1)}, 4, {vr(vt1)}")
    a("s_waitcnt vmcnt(0)")
    ST.stamp()
    for e in range(16):
        a(f"v_lshlrev_b32 {vr(vy+e)}, {vr(vt1)}, {vr(vy+e)}\nv_and_b32 {vr(vy+e)}, 0xffff0000, {vr(vy+e)}\nv_add_f32 {vr(o+e)}, {vr(o+e)}, {vr(vy+e)}")
    for g in range(4):
        a(f"v_cvt_pk_bf16_f32 {vr(tmp+2*g)}, {vr(o+4*g)}, {vr(o+4*g+1)}\nv_cvt_pk_bf16_f32 {vr(tmp+2*g+1)}, {vr(o+4*g+2)}, {vr(o+4*g+3)}")
    for g in range(4):
        a(f"buffer_store_dwordx2 {vr(tmp+2*g,2)}, {vr(vXo)}, {sr(sO,4)}, 0 offen offset:{16*g}")
    a("s_waitcnt vmcnt(0)")
    ST.stamp()
    ST.flush(sWS, WS_STAMP, vt0, 2*((st[0]+1)//2), 2)
    a(f"s_branch {end}")
    return V.hi, S.hi

def cmul(a, nr, ni, xr, xi, yr, yi, t):
    a(f"v_mul_f32 {vr(t)}, {vr(xi)}, {vr(yi)}")
    a(f"v_mul_f32 {vr(ni)}, {vr(xi)}, {vr(yr)}")
    a(f"v_fma_f32 {vr(nr)}, {vr(xr)}, {vr(yr)}, -{vr(t)}")
    a(f"v_fmac_f32 {vr(ni)}, {vr(xr)}, {vr(yi)}")

def gen_cv(a, s0, ST, end):
    V = Regs("v", 1, 168); S = Regs("s", s0, 100)
    L_U = 0; L_K = 4608; KS = 4160; L_ST = 4608; STW = 32*288; L_T = L_ST + 4*STW; TS = 80
    assert L_T + 32*TS <= 53760
    sWS = S.alloc(4,4); sP = [S.alloc(4,4) for _ in range(6)]
    pWS = S.alloc(2,2); pP = [S.alloc(2,2) for _ in range(6)]; pDt = S.alloc(2,2); pDs = S.alloc(2,2)
    sw = S.alloc(); sd = S.alloc(); st = [S.alloc() for _ in range(6)]; sLd = S.alloc(); sDs = S.alloc()
    a(f"s_load_dwordx2 {sr(pWS,2)}, s[0:1], 128")
    for k in range(6): a(f"s_load_dwordx2 {sr(pP[k],2)}, s[0:1], {8+8*k}")
    a(f"s_load_dwordx2 {sr(pDt,2)}, s[0:1], 56\ns_load_dwordx2 {sr(pDs,2)}, s[0:1], 64")
    vl = V.alloc(); vt0 = V.alloc(); vt1 = V.alloc(); vt2 = V.alloc(); vt3 = V.alloc()
    a(f"v_lshrrev_b32 {vr(vt0)}, 6, v0\nv_and_b32 {vr(vl)}, 63, v0\nv_readfirstlane_b32 s{sw}, {vr(vt0)}")
    a(f"s_sub_u32 s{sd}, s2, 224")
    vPo = V.alloc()
    a(f"s_lshl_b32 s{st[0]}, s{sd}, 9\nv_lshlrev_b32 {vr(vPo)}, 1, v0\nv_add_u32 {vr(vPo)}, s{st[0]}, {vr(vPo)}")
    a("s_waitcnt lgkmcnt(0)")
    for k in range(6): srd(a, sP[k], pP[k], P_BYTES)
    vP = [V.alloc() for _ in range(6)]
    for k in range(6): a(f"buffer_load_ushort {vr(vP[k])}, {vr(vPo)}, {sr(sP[k],4)}, 0 offen")
    a(f"s_lshr_b32 s{st[0]}, s{sd}, 1\ns_lshl_b32 s{st[0]}, s{st[0]}, 2")
    a(f"s_load_dword s{sLd}, {sr(pDt,2)}, s{st[0]}\ns_load_dword s{sDs}, {sr(pDs,2)}, s{st[0]}")
    srd(a, sWS, pWS, WS_SIZE)
    a(f"v_lshlrev_b32 {vr(vt0)}, 4, {vr(vl)}\ns_lshl_b32 s{st[1]}, s{sd}, 12\ns_lshl_b32 s{st[2]}, s{sw}, 10\ns_add_u32 s{st[1]}, s{st[1]}, s{st[2]}\ns_add_u32 s{st[1]}, s{st[1]}, {WS_XNT}")
    a(f"s_add_u32 m0, s{st[2]}, {L_U+512}\ns_nop 0\nbuffer_load_dwordx4 {vr(vt0)}, {sr(sWS,4)}, s{st[1]} offen lds")
    vz = V.alloc(4,4)
    for e in range(4): a(f"v_mov_b32 {vr(vz+e)}, 0")
    a(f"v_and_b32 {vr(vt1)}, 31, {vr(vl)}\nv_lshlrev_b32 {vr(vt1)}, 4, {vr(vt1)}\nds_write_b128 {vr(vt1)}, {vr(vz,4)} offset:{L_U}")
    ST.stamp()
    a("s_waitcnt lgkmcnt(0)")
    a(f"s_and_b32 s{st[0]}, s{sd}, 1\ns_lshl_b32 s{st[0]}, s{st[0]}, 4")
    a(f"s_lshr_b32 s{sLd}, s{sLd}, s{st[0]}\ns_lshl_b32 s{sLd}, s{sLd}, 16\ns_lshr_b32 s{sDs}, s{sDs}, s{st[0]}\ns_lshl_b32 s{sDs}, s{sDs}, 16")
    vdt = V.alloc()
    a(f"v_mov_b32 {vr(vdt)}, s{sLd}\nv_mul_f32 {vr(vdt)}, {fhex(LOG2E)}, {vr(vdt)}\nv_exp_f32 {vr(vdt)}, {vr(vdt)}\ns_nop 0\nv_cvt_pk_bf16_f32 {vr(vdt)}, {vr(vdt)}, {vr(vdt)}\nv_lshlrev_b32 {vr(vdt)}, 16, {vr(vdt)}")
    a("s_waitcnt vmcnt(1)")
    for k in range(6): a(f"v_lshlrev_b32 {vr(vP[k])}, 16, {vr(vP[k])}")
    Are, Aim, Bre, Bim, Cre, Cim = vP
    vlr = V.alloc(); vli = V.alloc()
    a(f"v_mul_f32 {vr(vlr)}, {vr(vdt)}, {vr(Are)}\nv_mul_f32 {vr(vli)}, {vr(vdt)}, {vr(Aim)}\nv_mul_f32 {vr(Bre)}, {vr(vdt)}, {vr(Bre)}\nv_mul_f32 {vr(Bim)}, {vr(vdt)}, {vr(Bim)}")
    a(f"v_mul_f32 {vr(vlr)}, {fhex(LOG2E)}, {vr(vlr)}\nv_mul_f32 {vr(vli)}, {fhex(INV2PI)}, {vr(vli)}")
    cr = V.alloc(); ci = V.alloc()
    cmul(a, cr, ci, Cre, Cim, Bre, Bim, vt0)
    E = {}
    for p in (8, 1, 256):
        er = V.alloc(); ei = V.alloc(); E[p] = (er, ei)
        a(f"v_mul_f32 {vr(vt0)}, {fhex(float(p))}, {vr(vlr)}\nv_mul_f32 {vr(vt1)}, {fhex(float(p))}, {vr(vli)}")
        a(f"v_exp_f32 {vr(vt0)}, {vr(vt0)}\nv_fract_f32 {vr(vt1)}, {vr(vt1)}\ns_nop 0\nv_cos_f32 {vr(er)}, {vr(vt1)}\nv_sin_f32 {vr(ei)}, {vr(vt1)}\ns_nop 0")
        a(f"v_mul_f32 {vr(er)}, {vr(er)}, {vr(vt0)}\nv_mul_f32 {vr(ei)}, {vr(ei)}, {vr(vt0)}")
    vSw = V.alloc()
    a(f"s_mul_i32 s{st[0]}, s{sw}, {STW}\ns_add_u32 s{st[0]}, s{st[0]}, {L_ST}\nv_lshlrev_b32 {vr(vSw)}, 2, {vr(vl)}\nv_add_u32 {vr(vSw)}, s{st[0]}, {vr(vSw)}")
    vSr = V.alloc()
    a(f"v_and_b32 {vr(vt0)}, 15, {vr(vl)}\nv_mul_u32_u24 {vr(vt0)}, 288, {vr(vt0)}\nv_lshrrev_b32 {vr(vt1)}, 4, {vr(vl)}\nv_lshl_add_u32 {vr(vt0)}, {vr(vt1)}, 4, {vr(vt0)}\nv_add_u32 {vr(vSr)}, s{st[0]}, {vr(vt0)}")
    x = [(V.alloc(), V.alloc()), (V.alloc(), V.alloc())]
    pk = [V.alloc(), V.alloc()]
    wr, wi = E[8]
    a(f"v_mov_b32 {vr(pk[0])}, 0x00003f80\nds_write_b32 {vr(vSw)}, {vr(pk[0])}")
    a(f"v_cvt_pk_bf16_f32 {vr(pk[1])}, {vr(wr)}, {vr(wi)}\nds_write_b32 {vr(vSw)}, {vr(pk[1])} offset:288")
    cur = (wr, wi)
    for j in range(2, 32):
        nx = x[j&1]
        cmul(a, nx[0], nx[1], cur[0], cur[1], wr, wi, vt0)
        a(f"v_cvt_pk_bf16_f32 {vr(pk[j&1])}, {vr(nx[0])}, {vr(nx[1])}\nds_write_b32 {vr(vSw)}, {vr(pk[j&1])} offset:{288*j}")
        cur = nx
    fB = V.alloc(32,4); fA = V.alloc(32,4); kacc = V.alloc(16,4)
    for tb in range(2):
        for k4 in range(4):
            a(f"ds_read_b128 {vr(fB+16*tb+4*k4,4)}, {vr(vSr)} offset:{tb*16*288 + k4*64}")
    ST.stamp()
    zr, zi = E[1]; hr, hi = E[256]
    z2 = (V.alloc(), V.alloc()); z4 = (V.alloc(), V.alloc())
    cmul(a, z2[0], z2[1], zr, zi, zr, zi, vt0)
    cmul(a, z4[0], z4[1], z2[0], z2[1], z2[0], z2[1], vt0)
    row = [0]
    def emit(v):
        r = row[0]; row[0] += 1
        a(f"v_cvt_pk_bf16_f32 {vr(pk[r&1])}, {vr(v[0])}, -{vr(v[1])}\nds_write_b32 {vr(vSw)}, {vr(pk[r&1])} offset:{288*r}")
    def mul(dst, src, m): cmul(a, dst[0], dst[1], src[0], src[1], m[0], m[1], vt0)
    y0 = (V.alloc(), V.alloc()); y1 = (V.alloc(), V.alloc())
    c0 = (cr, ci)
    emit(c0)
    cur = c0
    for i in range(1, 8):
        nx = x[i&1]; mul(nx, cur, (zr, zi)); emit(nx); cur = nx
    mul(y0, c0, (hr, hi)); emit(y0)
    cur = y0
    for i in range(3):
        nx = x[i&1]; mul(nx, cur, z2); emit(nx); cur = nx
    mul(y1, y0, (hr, hi)); emit(y1)
    mul(x[0], y1, z4); emit(x[0])
    mul(y0, y1, (hr, hi)); emit(y0)
    mul(x[1], y0, z4); emit(x[1])
    cur = y0; oth = y1
    for i in range(5):
        mul(oth, cur, (hr, hi)); emit(oth); cur, oth = oth, cur
    assert row[0] == 21
    for ta in range(2):
        for k4 in range(4):
            a(f"ds_read_b128 {vr(fA+16*ta+4*k4,4)}, {vr(vSr)} offset:{ta*16*288 + k4*64}")
    a("s_waitcnt lgkmcnt(0)")
    for k4 in range(4):
        for ta in range(2):
            for tb in range(2):
                d_ = kacc + 4*(2*ta+tb)
                c = "0" if k4 == 0 else vr(d_,4)
                a(f"v_mfma_f32_16x16x32_bf16 {vr(d_,4)}, {vr(fA+16*ta+4*k4,4)}, {vr(fB+16*tb+4*k4,4)}, {c}")
    ST.stamp()
    a(f"s_mul_i32 s{st[0]}, s{sw}, {STW}\ns_add_u32 s{st[0]}, s{st[0]}, {L_ST}\nv_lshlrev_b32 {vr(vt0)}, 4, {vr(vl)}\nv_add_u32 {vr(vt1)}, s{st[0]}, {vr(vt0)}")
    a("s_nop 7")
    for t in range(4): a(f"ds_write_b128 {vr(vt1)}, {vr(kacc+4*t,4)} offset:{1024*t}")
    a("s_waitcnt lgkmcnt(0)\ns_barrier")
    a(f"s_lshl_b32 s{st[0]}, s{sw}, 10\ns_add_u32 s{st[0]}, s{st[0]}, {L_ST}\nv_add_u32 {vr(vt1)}, s{st[0]}, {vr(vt0)}")
    pr = fA
    for w in range(4): a(f"ds_read_b128 {vr(pr+4*w,4)}, {vr(vt1)} offset:{STW*w}")
    a("s_waitcnt lgkmcnt(0)")
    for e in range(4):
        a(f"v_add_f32 {vr(pr+e)}, {vr(pr+e)}, {vr(pr+4+e)}\nv_add_f32 {vr(pr+8+e)}, {vr(pr+8+e)}, {vr(pr+12+e)}")
    for e in range(4): a(f"v_add_f32 {vr(pr+e)}, {vr(pr+e)}, {vr(pr+8+e)}")
    a(f"v_mov_b32 {vr(vt2)}, s{sDs}\nv_cmp_eq_u32 vcc, 0, v0\nv_mov_b32 {vr(vt3)}, 0\ns_nop 0\nv_cndmask_b32 {vr(vt2)}, {vr(vt3)}, {vr(vt2)}, vcc\nv_add_f32 {vr(pr)}, {vr(pr)}, {vr(vt2)}")
    a(f"v_cvt_pk_bf16_f32 {vr(pr)}, {vr(pr)}, {vr(pr+1)}\nv_cvt_pk_bf16_f32 {vr(pr+1)}, {vr(pr+2)}, {vr(pr+3)}")
    a(f"v_and_b32 {vr(vt1)}, 15, {vr(vl)}\ns_and_b32 s{st[0]}, s{sw}, 1\ns_lshl_b32 s{st[0]}, s{st[0]}, 4\nv_add_u32 {vr(vt1)}, s{st[0]}, {vr(vt1)}\nv_mul_u32_u24 {vr(vt1)}, {TS}, {vr(vt1)}")
    a(f"v_lshrrev_b32 {vr(vt2)}, 4, {vr(vl)}\nv_lshl_add_u32 {vr(vt1)}, {vr(vt2)}, 3, {vr(vt1)}\ns_lshr_b32 s{st[0]}, s{sw}, 1\ns_lshl_b32 s{st[0]}, s{st[0]}, 5\ns_add_u32 s{st[0]}, s{st[0]}, {L_T}\nv_add_u32 {vr(vt1)}, s{st[0]}, {vr(vt1)}")
    a(f"ds_write_b64 {vr(vt1)}, {vr(pr,2)}")
    a("s_waitcnt lgkmcnt(0)\ns_barrier")
    LUTlo = 0 | (8<<8) | (12<<16) | (14<<24); LUThi = 16 | (17<<8) | (18<<16) | (19<<24)
    sLo = S.alloc();
    vLh = V.alloc()
    a(f"s_mov_b32 s{sLo}, {LUTlo}\nv_mov_b32 {vr(vLh)}, {LUThi}")
    R = V.alloc(4,4); vF = V.alloc(); va0 = V.alloc()
    a(f"v_lshrrev_b32 {vr(vt0)}, 5, v0\nv_perm_b32 {vr(va0)}, {vr(vLh)}, s{sLo}, {vr(vt0)}\nv_and_b32 {vr(va0)}, 0xff, {vr(va0)}")
    a(f"v_and_b32 {vr(vt1)}, 31, v0\nv_mul_u32_u24 {vr(vt1)}, {TS}, {vr(vt1)}\nv_and_b32 {vr(vt2)}, 0x18, {vr(va0)}\nv_lshl_add_u32 {vr(vt1)}, {vr(vt2)}, 1, {vr(vt1)}\nv_add_u32 {vr(vt1)}, {L_T}, {vr(vt1)}")
    a(f"ds_read_b128 {vr(R,4)}, {vr(vt1)}")
    a(f"v_add_u32 {vr(vt0)}, 1, v0\nv_lshrrev_b32 {vr(vt2)}, 5, {vr(vt0)}\nv_min_u32 {vr(vt3)}, 7, {vr(vt2)}\nv_perm_b32 {vr(vt3)}, {vr(vLh)}, s{sLo}, {vr(vt3)}\nv_and_b32 {vr(vt3)}, 0xff, {vr(vt3)}\nv_lshrrev_b32 {vr(vt2)}, 3, {vr(vt2)}\nv_add_u32 {vr(vt3)}, {vr(vt3)}, {vr(vt2)}")
    a(f"v_and_b32 {vr(vt0)}, 31, {vr(vt0)}\nv_mul_u32_u24 {vr(vt0)}, {TS}, {vr(vt0)}\nv_lshl_add_u32 {vr(vt0)}, {vr(vt3)}, 1, {vr(vt0)}\nv_add_u32 {vr(vt0)}, {L_T}, {vr(vt0)}")
    a(f"ds_read_u16 {vr(vF)}, {vr(vt0)}")
    a(f"v_bfe_u32 {vr(vt0)}, {vr(vl)}, 1, 2\nv_mul_u32_u24 {vr(vt0)}, {KS}, {vr(vt0)}\nv_and_b32 {vr(vt2)}, 1, {vr(vl)}\nv_lshl_add_u32 {vr(vt0)}, {vr(vt2)}, 4, {vr(vt0)}")
    a(f"ds_write_b128 {vr(vt0)}, {vr(vz,4)} offset:{L_K}")
    m0 = V.alloc(2,2); o = V.alloc(4,4)
    sSel = [S.alloc() for _ in range(3)]
    a(f"s_mov_b32 s{sSel[0]}, 0x01000100\ns_mov_b32 s{sSel[1]}, 0x03020302\ns_mov_b32 s{sSel[2]}, 0x05040302")
    lw1 = a.newlabel("CV_w1"); lw2 = a.newlabel("CV_w2"); lwe = a.newlabel("CV_we")
    a("s_waitcnt lgkmcnt(1)")
    a(f"s_cmp_eq_u32 s{sw}, 1\ns_cbranch_scc1 {lw1}\ns_cmp_ge_u32 s{sw}, 2\ns_cbranch_scc1 {lw2}")
    a(f"v_perm_b32 {vr(o)}, {vr(R)}, {vr(R)}, s{sSel[0]}")
    a(f"v_perm_b32 {vr(o+1)}, {vr(R+1)}, {vr(R)}, s{sSel[2]}")
    a(f"v_perm_b32 {vr(o+2)}, {vr(R+1)}, {vr(R+1)}, s{sSel[0]}")
    a(f"v_perm_b32 {vr(o+3)}, {vr(vF)}, {vr(R+1)}, s{sSel[2]}")
    a(f"v_cmp_gt_u32 vcc, 32, {vr(vl)}\ns_nop 1")
    for e in range(4): a(f"v_cndmask_b32 {vr(o+e)}, {vr(o+e)}, {vr(R+e)}, vcc")
    a(f"s_branch {lwe}")
    a.label(lw1)
    a(f"v_cmp_gt_u32 vcc, 32, {vr(vl)}\ns_nop 1\nv_cndmask_b32 {vr(vt0)}, {vr(R+3)}, {vr(R+2)}, vcc")
    a(f"v_perm_b32 {vr(o)}, {vr(vt0)}, {vr(vt0)}, s{sSel[0]}\nv_mov_b32 {vr(o+1)}, {vr(vt0)}\nv_perm_b32 {vr(o+2)}, {vr(vt0)}, {vr(vt0)}, s{sSel[1]}\nv_perm_b32 {vr(o+3)}, {vr(vF)}, {vr(vF)}, s{sSel[0]}")
    a(f"s_branch {lwe}")
    a.label(lw2)
    a(f"s_cmp_eq_u32 s{sw}, 2\ns_cselect_b64 vcc, -1, 0\ns_nop 1\nv_cndmask_b32 {vr(vt0)}, {vr(R+1)}, {vr(R)}, vcc")
    a(f"v_lshrrev_b32 {vr(vt1)}, 5, {vr(vl)}\nv_lshlrev_b32 {vr(vt1)}, 4, {vr(vt1)}\nv_lshrrev_b32 {vr(vt0)}, {vr(vt1)}, {vr(vt0)}")
    a(f"v_perm_b32 {vr(o)}, {vr(vt0)}, {vr(vt0)}, s{sSel[0]}\nv_mov_b32 {vr(o+1)}, {vr(o)}\nv_perm_b32 {vr(o+3)}, {vr(vF)}, {vr(vF)}, s{sSel[0]}")
    a(f"v_and_b32 {vr(vt1)}, 1, {vr(vl)}\nv_cmp_eq_u32 vcc, 0, {vr(vt1)}\ns_nop 1\nv_cndmask_b32 {vr(vt1)}, {vr(vF)}, {vr(vt0)}, vcc")
    a(f"s_mov_b32 s{st[0]}, 0x05040100\nv_perm_b32 {vr(o+2)}, {vr(vF)}, {vr(vt1)}, s{st[0]}")
    a.label(lwe)
    vKw = V.alloc()
    a(f"v_lshlrev_b32 {vr(vKw)}, 4, v0\nv_add_u32 {vr(vKw)}, {L_K+32}, {vr(vKw)}")
    a(f"ds_write_b128 {vr(vKw)}, {vr(o,4)}")
    a("s_waitcnt lgkmcnt(0)\ns_barrier")
    a(f"v_add_u32 {vr(vt0)}, -8, {vr(vKw)}\nds_read_b64 {vr(m0,2)}, {vr(vt0)}")
    c1 = V.alloc(4,4); c2 = V.alloc(4,4); c3 = V.alloc(4,4)
    a(f"v_alignbit_b32 {vr(c1+1)}, {vr(o+1)}, {vr(o)}, 16\nv_alignbit_b32 {vr(c1+2)}, {vr(o+2)}, {vr(o+1)}, 16\nv_alignbit_b32 {vr(c1+3)}, {vr(o+3)}, {vr(o+2)}, 16")
    a(f"v_mov_b32 {vr(c2+1)}, {vr(o)}\nv_mov_b32 {vr(c2+2)}, {vr(o+1)}\nv_mov_b32 {vr(c2+3)}, {vr(o+2)}")
    a(f"v_mov_b32 {vr(c3+2)}, {vr(c1+1)}\nv_mov_b32 {vr(c3+3)}, {vr(c1+2)}")
    a("s_waitcnt lgkmcnt(0)")
    a(f"v_alignbit_b32 {vr(c1)}, {vr(o)}, {vr(m0+1)}, 16\nv_mov_b32 {vr(c2)}, {vr(m0+1)}\nv_alignbit_b32 {vr(c3)}, {vr(m0+1)}, {vr(m0)}, 16\nv_mov_b32 {vr(c3+1)}, {vr(c1)}")
    a(f"ds_write_b128 {vr(vKw)}, {vr(c1,4)} offset:{KS}\nds_write_b128 {vr(vKw)}, {vr(c2,4)} offset:{2*KS}\nds_write_b128 {vr(vKw)}, {vr(c3,4)} offset:{3*KS}")
    a("s_waitcnt vmcnt(0) lgkmcnt(0)\ns_barrier")
    ST.stamp()
    V.reset(vz)
    vKA = V.alloc(); vKB = V.alloc()
    A = V.alloc(32,4); B = V.alloc(32,4); acc = V.alloc(32,4)
    a(f"v_bfe_u32 {vr(vt0)}, {vr(vl)}, 2, 2\nv_mul_u32_u24 {vr(vt0)}, {KS}, {vr(vt0)}\nv_and_b32 {vr(vt1)}, 3, {vr(vl)}\nv_lshl_add_u32 {vr(vt0)}, {vr(vt1)}, 3, {vr(vt0)}")
    a(f"v_lshrrev_b32 {vr(vt1)}, 5, {vr(vl)}\nv_lshl_add_u32 {vr(vt0)}, {vr(vt1)}, 5, {vr(vt0)}\nv_bfe_u32 {vr(vt2)}, {vr(vl)}, 4, 1\nv_lshlrev_b32 {vr(vt2)}, 4, {vr(vt2)}\nv_sub_u32 {vr(vt0)}, {vr(vt0)}, {vr(vt2)}")
    a(f"s_lshl_b32 s{st[0]}, s{sw}, 7\ns_add_u32 s{st[1]}, s{st[0]}, {L_K+32-8}\nv_add_u32 {vr(vKA)}, s{st[1]}, {vr(vt0)}")
    a(f"v_and_b32 {vr(vt0)}, 15, {vr(vl)}\nv_lshlrev_b32 {vr(vt0)}, 5, {vr(vt0)}\nv_lshlrev_b32 {vr(vt1)}, 5, {vr(vt1)}\nv_sub_u32 {vr(vt0)}, {vr(vt0)}, {vr(vt1)}\nv_add_u32 {vr(vt0)}, {vr(vt0)}, {vr(vt2)}")
    a(f"s_sub_u32 s{st[1]}, {L_U+512-64}, s{st[0]}\nv_add_u32 {vr(vKB)}, s{st[1]}, {vr(vt0)}")
    for rs in range(2):
        order = []
        for g in range(8):
            a(f"ds_read_b64_tr_b16 {vr(A+4*g,2)}, {vr(vKA)} offset:{512*g + 64*rs + 8}")
            a(f"ds_read_b64_tr_b16 {vr(A+4*g+2,2)}, {vr(vKA)} offset:{512*g + 64*rs}")
            a(f"ds_read_b128 {vr(B+4*g,4)}, {vr(vKB)} offset:{512*g + 64*(1-rs)}")
            if g >= 1:
                a("s_waitcnt lgkmcnt(3)")
                gg = g-1
                prs = [(gg, h) for h in range(gg+1)] + [(ga, gg) for ga in range(gg)]
                for (ga, hb) in prs:
                    if ga + hb <= 7:
                        c = ga + hb
                        cin = "0" if (rs == 0 and (ga, hb) not in order and not any((x_+y_) == c for (x_,y_) in order)) else vr(acc+4*c,4)
                        order.append((ga,hb))
                        a(f"v_mfma_f32_16x16x32_bf16 {vr(acc+4*c,4)}, {vr(A+4*ga,4)}, {vr(B+4*hb,4)}, {cin}")
        a("s_waitcnt lgkmcnt(0)")
        gg = 7
        prs = [(gg, h) for h in range(gg+1)] + [(ga, gg) for ga in range(gg)]
        for (ga, hb) in prs:
            if ga + hb <= 7:
                c = ga + hb
                cin = "0" if (rs == 0 and not any((x_+y_) == c for (x_,y_) in order)) else vr(acc+4*c,4)
                order.append((ga,hb))
                a(f"v_mfma_f32_16x16x32_bf16 {vr(acc+4*c,4)}, {vr(A+4*ga,4)}, {vr(B+4*hb,4)}, {cin}")
        assert len(order) == 36
    ST.stamp()
    a("s_barrier")
    a(f"v_lshlrev_b32 {vr(vt0)}, 4, {vr(vl)}\ns_lshl_b32 s{st[0]}, s{sw}, 10\nv_add_u32 {vr(vt1)}, s{st[0]}, {vr(vt0)}")
    a("s_nop 4")
    for c in range(8): a(f"ds_write_b128 {vr(vt1)}, {vr(acc+4*c,4)} offset:{c*4096}")
    a("s_waitcnt lgkmcnt(0)\ns_barrier")
    a(f"s_lshl_b32 s{st[0]}, s{sw}, 13\nv_add_u32 {vr(vt1)}, s{st[0]}, {vr(vt0)}")
    for cc in range(2):
        for w in range(4): a(f"ds_read_b128 {vr(A+16*cc+4*w,4)}, {vr(vt1)} offset:{cc*4096 + w*1024}")
    a(f"v_bfe_u32 {vr(vt2)}, {vr(vl)}, 2, 2\nv_mul_u32_u24 {vr(vt2)}, 57344, {vr(vt2)}\nv_and_b32 {vr(vt3)}, 3, {vr(vl)}\nv_lshl_add_u32 {vr(vt2)}, {vr(vt3)}, 5, {vr(vt2)}\nv_lshrrev_b32 {vr(vt3)}, 4, {vr(vl)}\nv_lshl_add_u32 {vr(vt2)}, {vr(vt3)}, 3, {vr(vt2)}")
    a(f"s_lshl_b32 s{st[0]}, s{sd}, 7\ns_mul_i32 s{st[1]}, s{sw}, {8*57344}\ns_add_u32 s{st[0]}, s{st[0]}, s{st[1]}\ns_add_u32 s{st[0]}, s{st[0]}, {WS_Y}\ns_add_u32 s{st[1]}, s{st[0]}, {4*57344}")
    for cc in range(2):
        a(f"s_waitcnt lgkmcnt({4*(1-cc)})")
        b = A+16*cc
        for e in range(4):
            a(f"v_add_f32 {vr(b+e)}, {vr(b+e)}, {vr(b+4+e)}\nv_add_f32 {vr(b+8+e)}, {vr(b+8+e)}, {vr(b+12+e)}")
        for e in range(4): a(f"v_add_f32 {vr(b+e)}, {vr(b+e)}, {vr(b+8+e)}")
        a(f"v_cvt_pk_bf16_f32 {vr(b)}, {vr(b)}, {vr(b+1)}\nv_cvt_pk_bf16_f32 {vr(b+1)}, {vr(b+2)}, {vr(b+3)}")
        a(f"buffer_store_dwordx2 {vr(b,2)}, {vr(vt2)}, {sr(sWS,4)}, s{st[cc]} offen sc0 sc1")
    a("s_waitcnt vmcnt(0)\ns_barrier")
    lf = a.newlabel("CV_fl")
    a(f"s_cmp_lg_u32 s{sw}, 0\ns_cbranch_scc1 {lf}")
    a(f"v_mov_b32 {vr(vt1)}, 1\ns_lshl_b32 s{st[0]}, s{sd}, 2\ns_add_u32 s{st[0]}, s{st[0]}, {WS_FLAG}")
    a(f"v_cmp_eq_u32 vcc, 0, {vr(vl)}\nv_mov_b32 {vr(vt3)}, 0x7ff00000\nv_mov_b32 {vr(vt2)}, 0\ns_nop 0\nv_cndmask_b32 {vr(vt2)}, {vr(vt3)}, {vr(vt2)}, vcc")
    a(f"buffer_store_dword {vr(vt1)}, {vr(vt2)}, {sr(sWS,4)}, s{st[0]} offen sc0 sc1\ns_waitcnt vmcnt(0)")
    a.label(lf)
    ST.stamp()
    ST.flush(sWS, WS_STAMP, vt0, 2*((st[0]+1)//2), 2)
    a(f"s_branch {end}")
    return V.hi, S.hi

def gen_k2(name="g2_kernel", stamp=False):
    a = Asm()
    S = Regs("s", 3, 100)
    end = "G2_END"
    ST = Stamps(a, S, 8, stamp)
    s0 = S.mark()
    a(f"s_cmp_ge_u32 s2, 672\ns_cbranch_scc1 {end}")
    ST.start()
    a("s_cmp_ge_u32 s2, 224\ns_cbranch_scc1 CV_MAIN")
    k0 = ST.k
    v1, s1 = gen_g2(a, s0, ST, end)
    ST.k = k0
    a.label("CV_MAIN")
    v2, s2 = gen_cv(a, s0, ST, end)
    a.label(end)
    print("K2 vgprs", v1, v2, "sgprs", s1, s2)
    return kernel_wrap(name, a.text(), max(v1,v2), sgpr=max(s1,s2))

if __name__ == "__main__":
    t = gen_k2()
    open("k2.s","w").write('.amdgcn_target "amdgcn-amd-amdhsa--gfx950"\n' + t)
```

```python
import sys
from asm import *
from common import *
import k1, k2
HDR = open('parallel_sum__ssm_conv_s4__dense_activation_gelu__prompt.s.ref').read()
lines = []
for ln in HDR.split("\n"):
    if ln.startswith("; @launch") or ln.startswith("; Override launch") or ln.startswith("; grid=ceil"): continue
    if not ln.startswith(";"): break
    lines.append(ln)
def build(extra_launches=(), k1kw={}, k2kw={}, pre="", extra_text=""):
    s = "\n".join(lines) + "\n"
    s += "; Two launches: g1_kernel (LayerNorm statistics + GEMM1/GELU), g2_kernel (S4 kernel generation + causal conv + GEMM2)\n"
    launches = [("g1_kernel", (256,1,1), (512,1,1), 163840), ("g2_kernel", (672,1,1), (256,1,1), 53760)] + list(extra_launches)
    for (k,g,b,l) in launches:
        s += f"; @launch kernel={k} grid=({g[0]},{g[1]},{g[2]}) block=({b[0]},{b[1]},{b[2]}) lds={l}\n"
    s += '.amdgcn_target "amdgcn-amd-amdhsa--gfx950"\n'
    s += k1.gen_k1(**k1kw) + k2.gen_k2(**k2kw) + extra_text
    return s
if __name__ == "__main__":
    out = sys.argv[1] if len(sys.argv) > 1 else "parallel_sum__ssm_conv_s4__dense_activation_gelu__prompt.s"
    open(out, "w").write(build())
    empty = kernel_wrap("nop_kernel", "    s_nop 0\n", 8, 16)
    open("plus4.s", "w").write(build(extra_launches=[("nop_kernel",(1,1,1),(64,1,1),0)]*4, extra_text=empty))
```

```python
from asm import *
from common import *
LOG2E = 1.4426950408889634
INV2PI = 0.15915494309189535

def gen_g2(a, s0, ST, end, depth=4):
    V = Regs("v", 1, 168); S = Regs("s", s0, 100)
    sWS = S.alloc(4,4); sX = S.alloc(4,4); sB2 = S.alloc(4,4); sO = S.alloc(4,4)
    pWS = S.alloc(2,2); pX = S.alloc(2,2); pB2 = S.alloc(2,2); pO = S.alloc(2,2)
    sw = S.alloc(); stt = S.alloc(); sdt = S.alloc(); sdb = S.alloc(); stb = S.alloc()
    st = [S.alloc() for _ in range(6)]
    a(f"s_load_dwordx2 {sr(pWS,2)}, s[0:1], 128\ns_load_dwordx2 {sr(pX,2)}, s[0:1], 0\ns_load_dwordx2 {sr(pB2,2)}, s[0:1], 104\ns_load_dwordx2 {sr(pO,2)}, s[0:1], 112")
    vl = V.alloc(); vt0 = V.alloc(); vt1 = V.alloc(); vt2 = V.alloc()
    a(f"v_lshrrev_b32 {vr(vt0)}, 6, v0\nv_and_b32 {vr(vl)}, 63, v0\nv_readfirstlane_b32 s{sw}, {vr(vt0)}")
    a(f"s_and_b32 s{stt}, s2, 31\ns_lshr_b32 s{sdt}, s2, 5")
    a(f"v_lshlrev_b32 {vr(vt0)}, 4, {vr(vl)}")
    a(f"s_lshr_b32 s{sdb}, s{sw}, 1\ns_and_b32 s{stb}, s{sw}, 1")
    vA = [V.alloc(), V.alloc()]; vB = [V.alloc(), V.alloc()]
    a(f"s_mul_i32 s{st[0]}, s{sw}, {28*1024}")
    for i in range(2):
        a(f"s_xor_b32 s{st[1]}, s{sdb}, {i}\ns_lshl_b32 s{st[2]}, s{sdt}, 1\ns_add_u32 s{st[1]}, s{st[1]}, s{st[2]}\ns_mul_i32 s{st[1]}, s{st[1]}, 114688\ns_add_u32 s{st[1]}, s{st[1]}, s{st[0]}\ns_add_u32 s{st[1]}, s{st[1]}, {WS_W2T}")
        a(f"v_add_u32 {vr(vA[i])}, s{st[1]}, {vr(vt0)}")
        a(f"s_xor_b32 s{st[1]}, s{stb}, {i}\ns_lshl_b32 s{st[2]}, s{stt}, 1\ns_add_u32 s{st[1]}, s{st[1]}, s{st[2]}\ns_mul_i32 s{st[1]}, s{st[1]}, 114688\ns_add_u32 s{st[1]}, s{st[1]}, s{st[0]}")
        a(f"v_add_u32 {vr(vB[i])}, s{st[1]}, {vr(vt0)}")
    a("s_waitcnt lgkmcnt(0)")
    srd(a, sWS, pWS, WS_SIZE)
    ring = [V.alloc(16,4) for _ in range(depth)]
    acc = [[V.alloc(16,4) for _ in range(2)] for _ in range(2)]
    vm = []
    sK = S.alloc()
    def loads(k):
        r = ring[k % depth]; off = (k % 4)*1024
        if k % 4 == 0: a(f"s_mov_b32 s{sK}, {(k//4)*4096}")
        for q, v in enumerate((vA[0], vB[0], vA[1], vB[1])):
            a(f"buffer_load_dwordx4 {vr(r+4*q,4)}, {vr(v)}, {sr(sWS,4)}, s{sK} offen offset:{off}"); vm.append(("k",k))
    def wait_for(tag):
        last = max(i for i,e in enumerate(vm) if e == tag)
        a(f"s_waitcnt vmcnt({len(vm)-1-last})")
    for k in range(depth-1): loads(k)
    ST.stamp()
    srd(a, sX, pX, X_BYTES); srd(a, sB2, pB2, 896); srd(a, sO, pO, X_BYTES)
    vx = V.alloc(8,2); vb2 = V.alloc(8,2); vXo = V.alloc(); vYo = V.alloc(); vFo = V.alloc(); vFl = V.alloc()
    sd0 = S.alloc(); st0 = S.alloc()
    a(f"s_lshl_b32 s{sd0}, s{sdt}, 6\ns_lshl_b32 s{st[0]}, s{sdb}, 5\ns_add_u32 s{sd0}, s{sd0}, s{st[0]}")
    a(f"s_lshl_b32 s{st0}, s{stt}, 6\ns_lshl_b32 s{st[0]}, s{stb}, 5\ns_add_u32 s{st0}, s{st0}, s{st[0]}")
    a(f"v_and_b32 {vr(vt0)}, 31, {vr(vl)}\nv_lshrrev_b32 {vr(vt1)}, 5, {vr(vl)}")
    a(f"v_add_u32 {vr(vt2)}, s{st0}, {vr(vt0)}\nv_mul_u32_u24 {vr(vt2)}, 896, {vr(vt2)}\nv_lshl_add_u32 {vr(vt2)}, {vr(vt1)}, 3, {vr(vt2)}\ns_lshl_b32 s{st[0]}, s{sd0}, 1\nv_add_u32 {vr(vXo)}, s{st[0]}, {vr(vt2)}")
    for g in range(4):
        a(f"buffer_load_dwordx2 {vr(vx+2*g,2)}, {vr(vXo)}, {sr(sX,4)}, 0 offen offset:{16*g}"); vm.append("x")
    a(f"v_lshlrev_b32 {vr(vt2)}, 3, {vr(vt1)}\nv_add_u32 {vr(vt2)}, s{st[0]}, {vr(vt2)}")
    for g in range(4):
        a(f"buffer_load_dwordx2 {vr(vb2+2*g,2)}, {vr(vt2)}, {sr(sB2,4)}, 0 offen offset:{16*g}"); vm.append("b2")
    a(f"v_and_b32 {vr(vt2)}, 30, {vr(vt0)}\nv_lshlrev_b32 {vr(vt2)}, 1, {vr(vt2)}\nv_lshl_add_u32 {vr(vt2)}, {vr(vt1)}, 9, {vr(vt2)}")
    a(f"s_mul_i32 s{st[0]}, s{stt}, 57344\ns_lshl_b32 s{st[1]}, s{sd0}, 7\ns_add_u32 s{st[0]}, s{st[0]}, s{st[1]}\ns_lshl_b32 s{st[1]}, s{stb}, 6\ns_add_u32 s{st[0]}, s{st[0]}, s{st[1]}\ns_add_u32 s{st[0]}, s{st[0]}, {WS_Y}")
    a(f"v_add_u32 {vr(vYo)}, s{st[0]}, {vr(vt2)}")
    a(f"v_add_u32 {vr(vt2)}, s{sd0}, {vr(vt0)}\nv_lshlrev_b32 {vr(vt2)}, 2, {vr(vt2)}\nv_add_u32 {vr(vFo)}, {WS_FLAG}, {vr(vt2)}")
    vy = ring[3]
    assert depth == 4
    first = [[True,True],[True,True]]
    NK = 28
    for k in range(NK):
        if k + depth - 1 < NK: loads(k + depth - 1)
        wait_for(("k",k))
        r = ring[k % depth]
        for i in range(2):
            for j in range(2):
                c = "0" if first[i][j] else vr(acc[i][j],16)
                first[i][j] = False
                a(f"v_mfma_f32_32x32x16_bf16 {vr(acc[i][j],16)}, {vr(r+8*i,4)}, {vr(r+4+8*j,4)}, {c}")
        if k == NK - depth:
            a(f"buffer_load_dword {vr(vFl)}, {vr(vFo)}, {sr(sWS,4)}, 0 offen sc0 sc1"); vm.append("fl")
    ST.stamp()
    lok = a.newlabel("G2_fok"); lsp = a.newlabel("G2_spin")
    wait_for("fl")
    a(f"s_mov_b32 s{st[4]}, 0x400000")
    a.label(lsp)
    a(f"v_cmp_eq_u32 vcc, 0, {vr(vFl)}\ns_nop 1\ns_cmp_eq_u64 vcc, 0\ns_cbranch_scc1 {lok}")
    a(f"s_sub_u32 s{st[4]}, s{st[4]}, 1\ns_cmp_eq_u32 s{st[4]}, 0\ns_cbranch_scc1 {lok}")
    a(f"s_sleep 2\nbuffer_load_dword {vr(vFl)}, {vr(vFo)}, {sr(sWS,4)}, 0 offen sc0 sc1\ns_waitcnt vmcnt(0)\ns_branch {lsp}")
    a.label(lok)
    for g in range(4):
        for i in range(4):
            a(f"buffer_load_dword {vr(vy+4*g+i)}, {vr(vYo)}, {sr(sWS,4)}, 0 offen offset:{(8*g+i)*128} sc0 sc1")
    ST.stamp()
    vXw = V.alloc(); vXr = V.alloc()
    a(f"v_lshlrev_b32 {vr(vt0)}, 4, {vr(vl)}")
    a("s_nop 7")
    for (i,j) in ((0,1),(1,0),(1,1)):
        sl = 2*i+j
        a(f"s_xor_b32 s{st[0]}, s{sw}, {sl}\ns_mul_i32 s{st[0]}, s{st[0]}, 12288\ns_add_u32 s{st[0]}, s{st[0]}, {(sl-1)*4096}\nv_add_u32 {vr(vXw)}, s{st[0]}, {vr(vt0)}")
        for q in range(4):
            a(f"ds_write_b128 {vr(vXw)}, {vr(acc[i][j]+4*q,4)} offset:{1024*q}")
    a(f"s_mul_i32 s{st[0]}, s{sw}, 12288\nv_add_u32 {vr(vXr)}, s{st[0]}, {vr(vt0)}")
    a("s_waitcnt lgkmcnt(0)\ns_barrier")
    pr = ring[0]
    for sl in range(3):
        for q in range(4):
            a(f"ds_read_b128 {vr(ring[sl]+4*q,4)}, {vr(vXr)} offset:{sl*4096+1024*q}")
    o = acc[0][0]
    for sl in range(3):
        a(f"s_waitcnt lgkmcnt({4*(2-sl)})")
        for e in range(16): a(f"v_add_f32 {vr(o+e)}, {vr(o+e)}, {vr(ring[sl]+e)}")
    tmp = ring[0]
    for g in range(4):
        for src in (vb2, vx):
            a(f"v_lshlrev_b32 {vr(tmp)}, 16, {vr(src+2*g)}\nv_and_b32 {vr(tmp+1)}, 0xffff0000, {vr(src+2*g)}\nv_lshlrev_b32 {vr(tmp+2)}, 16, {vr(src+2*g+1)}\nv_and_b32 {vr(tmp+3)}, 0xffff0000, {vr(src+2*g+1)}")
            for i in range(4): a(f"v_add_f32 {vr(o+4*g+i)}, {vr(o+4*g+i)}, {vr(tmp+i)}")
    a(f"v_and_b32 {vr(vt1)}, 1, {vr(vl)}\nv_xor_b32 {vr(vt1)}, 1, {vr(vt1)}\nv_lshlrev_b32 {vr(vt1)}, 4, {vr(vt1)}")
    a("s_waitcnt vmcnt(0)")
    ST.stamp()
    for e in range(16):
        a(f"v_lshlrev_b32 {vr(vy+e)}, {vr(vt1)}, {vr(vy+e)}\nv_and_b32 {vr(vy+e)}, 0xffff0000, {vr(vy+e)}\nv_add_f32 {vr(o+e)}, {vr(o+e)}, {vr(vy+e)}")
    for g in range(4):
        a(f"v_cvt_pk_bf16_f32 {vr(tmp+2*g)}, {vr(o+4*g)}, {vr(o+4*g+1)}\nv_cvt_pk_bf16_f32 {vr(tmp+2*g+1)}, {vr(o+4*g+2)}, {vr(o+4*g+3)}")
    for g in range(4):
        a(f"buffer_store_dwordx2 {vr(tmp+2*g,2)}, {vr(vXo)}, {sr(sO,4)}, 0 offen offset:{16*g}")
    a("s_waitcnt vmcnt(0)")
    ST.stamp()
    ST.flush(sWS, SB, vt0, 2*((st[0]+1)//2), 2)
    a(f"s_branch {end}")
    return V.hi, S.hi

def cmul(a, nr, ni, xr, xi, yr, yi, t):
    a(f"v_mul_f32 {vr(t)}, {vr(xi)}, {vr(yi)}")
    a(f"v_mul_f32 {vr(ni)}, {vr(xi)}, {vr(yr)}")
    a(f"v_fma_f32 {vr(nr)}, {vr(xr)}, {vr(yr)}, -{vr(t)}")
    a(f"v_fmac_f32 {vr(ni)}, {vr(xr)}, {vr(yi)}")

def gen_cv(a, s0, ST, end):
    V = Regs("v", 1, 168); S = Regs("s", s0, 100)
    L_U = 0; L_K = 4608; KS = 4160; L_ST = 4608; STW = 32*288; L_T = L_ST + 4*STW; TS = 80
    assert L_T + 32*TS <= 53760
    sWS = S.alloc(4,4); sP = [S.alloc(4,4) for _ in range(6)]
    pWS = S.alloc(2,2); pP = [S.alloc(2,2) for _ in range(6)]; pDt = S.alloc(2,2); pDs = S.alloc(2,2)
    sw = S.alloc(); sd = S.alloc(); st = [S.alloc() for _ in range(6)]; sLd = S.alloc(); sDs = S.alloc()
    a(f"s_load_dwordx2 {sr(pWS,2)}, s[0:1], 128")
    for k in range(6): a(f"s_load_dwordx2 {sr(pP[k],2)}, s[0:1], {8+8*k}")
    a(f"s_load_dwordx2 {sr(pDt,2)}, s[0:1], 56\ns_load_dwordx2 {sr(pDs,2)}, s[0:1], 64")
    vl = V.alloc(); vt0 = V.alloc(); vt1 = V.alloc(); vt2 = V.alloc(); vt3 = V.alloc()
    a(f"v_lshrrev_b32 {vr(vt0)}, 6, v0\nv_and_b32 {vr(vl)}, 63, v0\nv_readfirstlane_b32 s{sw}, {vr(vt0)}")
    a(f"s_sub_u32 s{sd}, s2, 224")
    vPo = V.alloc()
    a(f"s_lshl_b32 s{st[0]}, s{sd}, 9\nv_lshlrev_b32 {vr(vPo)}, 1, v0\nv_add_u32 {vr(vPo)}, s{st[0]}, {vr(vPo)}")
    a("s_waitcnt lgkmcnt(0)")
    for k in range(6): srd(a, sP[k], pP[k], P_BYTES)
    vP = [V.alloc() for _ in range(6)]
    for k in range(6): a(f"buffer_load_ushort {vr(vP[k])}, {vr(vPo)}, {sr(sP[k],4)}, 0 offen")
    a(f"s_lshr_b32 s{st[0]}, s{sd}, 1\ns_lshl_b32 s{st[0]}, s{st[0]}, 2")
    a(f"s_load_dword s{sLd}, {sr(pDt,2)}, s{st[0]}\ns_load_dword s{sDs}, {sr(pDs,2)}, s{st[0]}")
    srd(a, sWS, pWS, WS_SIZE)
    a(f"v_lshlrev_b32 {vr(vt0)}, 4, {vr(vl)}\ns_lshl_b32 s{st[1]}, s{sd}, 12\ns_lshl_b32 s{st[2]}, s{sw}, 10\ns_add_u32 s{st[1]}, s{st[1]}, s{st[2]}\ns_add_u32 s{st[1]}, s{st[1]}, {WS_XNT}")
    a(f"s_add_u32 m0, s{st[2]}, {L_U+512}\ns_nop 0\nbuffer_load_dwordx4 {vr(vt0)}, {sr(sWS,4)}, s{st[1]} offen lds")
    vz = V.alloc(4,4)
    for e in range(4): a(f"v_mov_b32 {vr(vz+e)}, 0")
    a(f"v_and_b32 {vr(vt1)}, 31, {vr(vl)}\nv_lshlrev_b32 {vr(vt1)}, 4, {vr(vt1)}\nds_write_b128 {vr(vt1)}, {vr(vz,4)} offset:{L_U}")
    ST.stamp()
    a("s_waitcnt lgkmcnt(0)")
    a(f"s_and_b32 s{st[0]}, s{sd}, 1\ns_lshl_b32 s{st[0]}, s{st[0]}, 4")
    a(f"s_lshr_b32 s{sLd}, s{sLd}, s{st[0]}\ns_lshl_b32 s{sLd}, s{sLd}, 16\ns_lshr_b32 s{sDs}, s{sDs}, s{st[0]}\ns_lshl_b32 s{sDs}, s{sDs}, 16")
    vdt = V.alloc()
    a(f"v_mov_b32 {vr(vdt)}, s{sLd}\nv_mul_f32 {vr(vdt)}, {fhex(LOG2E)}, {vr(vdt)}\nv_exp_f32 {vr(vdt)}, {vr(vdt)}\ns_nop 0\nv_cvt_pk_bf16_f32 {vr(vdt)}, {vr(vdt)}, {vr(vdt)}\nv_lshlrev_b32 {vr(vdt)}, 16, {vr(vdt)}")
    a("s_waitcnt vmcnt(1)")
    for k in range(6): a(f"v_lshlrev_b32 {vr(vP[k])}, 16, {vr(vP[k])}")
    Are, Aim, Bre, Bim, Cre, Cim = vP
    vlr = V.alloc(); vli = V.alloc()
    a(f"v_mul_f32 {vr(vlr)}, {vr(vdt)}, {vr(Are)}\nv_mul_f32 {vr(vli)}, {vr(vdt)}, {vr(Aim)}\nv_mul_f32 {vr(Bre)}, {vr(vdt)}, {vr(Bre)}\nv_mul_f32 {vr(Bim)}, {vr(vdt)}, {vr(Bim)}")
    a(f"v_mul_f32 {vr(vlr)}, {fhex(LOG2E)}, {vr(vlr)}\nv_mul_f32 {vr(vli)}, {fhex(INV2PI)}, {vr(vli)}")
    cr = V.alloc(); ci = V.alloc()
    cmul(a, cr, ci, Cre, Cim, Bre, Bim, vt0)
    E = {}
    for p in (8, 1, 256):
        er = V.alloc(); ei = V.alloc(); E[p] = (er, ei)
        a(f"v_mul_f32 {vr(vt0)}, {fhex(float(p))}, {vr(vlr)}\nv_mul_f32 {vr(vt1)}, {fhex(float(p))}, {vr(vli)}")
        a(f"v_exp_f32 {vr(vt0)}, {vr(vt0)}\nv_fract_f32 {vr(vt1)}, {vr(vt1)}\ns_nop 0\nv_cos_f32 {vr(er)}, {vr(vt1)}\nv_sin_f32 {vr(ei)}, {vr(vt1)}\ns_nop 0")
        a(f"v_mul_f32 {vr(er)}, {vr(er)}, {vr(vt0)}\nv_mul_f32 {vr(ei)}, {vr(ei)}, {vr(vt0)}")
    vSw = V.alloc()
    a(f"s_mul_i32 s{st[0]}, s{sw}, {STW}\ns_add_u32 s{st[0]}, s{st[0]}, {L_ST}\nv_lshlrev_b32 {vr(vSw)}, 2, {vr(vl)}\nv_add_u32 {vr(vSw)}, s{st[0]}, {vr(vSw)}")
    vSr = V.alloc()
    a(f"v_and_b32 {vr(vt0)}, 15, {vr(vl)}\nv_mul_u32_u24 {vr(vt0)}, 288, {vr(vt0)}\nv_lshrrev_b32 {vr(vt1)}, 4, {vr(vl)}\nv_lshl_add_u32 {vr(vt0)}, {vr(vt1)}, 4, {vr(vt0)}\nv_add_u32 {vr(vSr)}, s{st[0]}, {vr(vt0)}")
    x = [(V.alloc(), V.alloc()), (V.alloc(), V.alloc())]
    pk = [V.alloc(), V.alloc()]
    wr, wi = E[8]
    a(f"v_mov_b32 {vr(pk[0])}, 0x00003f80\nds_write_b32 {vr(vSw)}, {vr(pk[0])}")
    a(f"v_cvt_pk_bf16_f32 {vr(pk[1])}, {vr(wr)}, {vr(wi)}\nds_write_b32 {vr(vSw)}, {vr(pk[1])} offset:288")
    cur = (wr, wi)
    for j in range(2, 32):
        nx = x[j&1]
        cmul(a, nx[0], nx[1], cur[0], cur[1], wr, wi, vt0)
        a(f"v_cvt_pk_bf16_f32 {vr(pk[j&1])}, {vr(nx[0])}, {vr(nx[1])}\nds_write_b32 {vr(vSw)}, {vr(pk[j&1])} offset:{288*j}")
        cur = nx
    fB = V.alloc(32,4); fA = V.alloc(32,4); kacc = V.alloc(16,4)
    for tb in range(2):
        for k4 in range(4):
            a(f"ds_read_b128 {vr(fB+16*tb+4*k4,4)}, {vr(vSr)} offset:{tb*16*288 + k4*64}")
    ST.stamp()
    zr, zi = E[1]; hr, hi = E[256]
    z2 = (V.alloc(), V.alloc()); z4 = (V.alloc(), V.alloc())
    cmul(a, z2[0], z2[1], zr, zi, zr, zi, vt0)
    cmul(a, z4[0], z4[1], z2[0], z2[1], z2[0], z2[1], vt0)
    row = [0]
    def emit(v):
        r = row[0]; row[0] += 1
        a(f"v_cvt_pk_bf16_f32 {vr(pk[r&1])}, {vr(v[0])}, -{vr(v[1])}\nds_write_b32 {vr(vSw)}, {vr(pk[r&1])} offset:{288*r}")
    def mul(dst, src, m): cmul(a, dst[0], dst[1], src[0], src[1], m[0], m[1], vt0)
    y0 = (V.alloc(), V.alloc()); y1 = (V.alloc(), V.alloc())
    c0 = (cr, ci)
    emit(c0)
    cur = c0
    for i in range(1, 8):
        nx = x[i&1]; mul(nx, cur, (zr, zi)); emit(nx); cur = nx
    mul(y0, c0, (hr, hi)); emit(y0)
    cur = y0
    for i in range(3):
        nx = x[i&1]; mul(nx, cur, z2); emit(nx); cur = nx
    mul(y1, y0, (hr, hi)); emit(y1)
    mul(x[0], y1, z4); emit(x[0])
    mul(y0, y1, (hr, hi)); emit(y0)
    mul(x[1], y0, z4); emit(x[1])
    cur = y0; oth = y1
    for i in range(5):
        mul(oth, cur, (hr, hi)); emit(oth); cur, oth = oth, cur
    assert row[0] == 21
    for ta in range(2):
        for k4 in range(4):
            a(f"ds_read_b128 {vr(fA+16*ta+4*k4,4)}, {vr(vSr)} offset:{ta*16*288 + k4*64}")
    a("s_waitcnt lgkmcnt(0)")
    for k4 in range(4):
        for ta in range(2):
            for tb in range(2):
                d_ = kacc + 4*(2*ta+tb)
                c = "0" if k4 == 0 else vr(d_,4)
                a(f"v_mfma_f32_16x16x32_bf16 {vr(d_,4)}, {vr(fA+16*ta+4*k4,4)}, {vr(fB+16*tb+4*k4,4)}, {c}")
    ST.stamp()
    a(f"s_mul_i32 s{st[0]}, s{sw}, {STW}\ns_add_u32 s{st[0]}, s{st[0]}, {L_ST}\nv_lshlrev_b32 {vr(vt0)}, 4, {vr(vl)}\nv_add_u32 {vr(vt1)}, s{st[0]}, {vr(vt0)}")
    a("s_nop 7")
    for t in range(4): a(f"ds_write_b128 {vr(vt1)}, {vr(kacc+4*t,4)} offset:{1024*t}")
    a("s_waitcnt lgkmcnt(0)\ns_barrier")
    a(f"s_lshl_b32 s{st[0]}, s{sw}, 10\ns_add_u32 s{st[0]}, s{st[0]}, {L_ST}\nv_add_u32 {vr(vt1)}, s{st[0]}, {vr(vt0)}")
    pr = fA
    for w in range(4): a(f"ds_read_b128 {vr(pr+4*w,4)}, {vr(vt1)} offset:{STW*w}")
    a("s_waitcnt lgkmcnt(0)")
    for e in range(4):
        a(f"v_add_f32 {vr(pr+e)}, {vr(pr+e)}, {vr(pr+4+e)}\nv_add_f32 {vr(pr+8+e)}, {vr(pr+8+e)}, {vr(pr+12+e)}")
    for e in range(4): a(f"v_add_f32 {vr(pr+e)}, {vr(pr+e)}, {vr(pr+8+e)}")
    a(f"v_mov_b32 {vr(vt2)}, s{sDs}\nv_cmp_eq_u32 vcc, 0, v0\nv_mov_b32 {vr(vt3)}, 0\ns_nop 0\nv_cndmask_b32 {vr(vt2)}, {vr(vt3)}, {vr(vt2)}, vcc\nv_add_f32 {vr(pr)}, {vr(pr)}, {vr(vt2)}")
    a(f"v_cvt_pk_bf16_f32 {vr(pr)}, {vr(pr)}, {vr(pr+1)}\nv_cvt_pk_bf16_f32 {vr(pr+1)}, {vr(pr+2)}, {vr(pr+3)}")
    a(f"v_and_b32 {vr(vt1)}, 15, {vr(vl)}\ns_and_b32 s{st[0]}, s{sw}, 1\ns_lshl_b32 s{st[0]}, s{st[0]}, 4\nv_add_u32 {vr(vt1)}, s{st[0]}, {vr(vt1)}\nv_mul_u32_u24 {vr(vt1)}, {TS}, {vr(vt1)}")
    a(f"v_lshrrev_b32 {vr(vt2)}, 4, {vr(vl)}\nv_lshl_add_u32 {vr(vt1)}, {vr(vt2)}, 3, {vr(vt1)}\ns_lshr_b32 s{st[0]}, s{sw}, 1\ns_lshl_b32 s{st[0]}, s{st[0]}, 5\ns_add_u32 s{st[0]}, s{st[0]}, {L_T}\nv_add_u32 {vr(vt1)}, s{st[0]}, {vr(vt1)}")
    a(f"ds_write_b64 {vr(vt1)}, {vr(pr,2)}")
    a("s_waitcnt lgkmcnt(0)\ns_barrier")
    LUTlo = 0 | (8<<8) | (12<<16) | (14<<24); LUThi = 16 | (17<<8) | (18<<16) | (19<<24)
    sLo = S.alloc();
    vLh = V.alloc()
    a(f"s_mov_b32 s{sLo}, {LUTlo}\nv_mov_b32 {vr(vLh)}, {LUThi}")
    R = V.alloc(4,4); vF = V.alloc(); va0 = V.alloc()
    a(f"v_lshrrev_b32 {vr(vt0)}, 5, v0\nv_perm_b32 {vr(va0)}, {vr(vLh)}, s{sLo}, {vr(vt0)}\nv_and_b32 {vr(va0)}, 0xff, {vr(va0)}")
    a(f"v_and_b32 {vr(vt1)}, 31, v0\nv_mul_u32_u24 {vr(vt1)}, {TS}, {vr(vt1)}\nv_and_b32 {vr(vt2)}, 0x18, {vr(va0)}\nv_lshl_add_u32 {vr(vt1)}, {vr(vt2)}, 1, {vr(vt1)}\nv_add_u32 {vr(vt1)}, {L_T}, {vr(vt1)}")
    a(f"ds_read_b128 {vr(R,4)}, {vr(vt1)}")
    a(f"v_add_u32 {vr(vt0)}, 1, v0\nv_lshrrev_b32 {vr(vt2)}, 5, {vr(vt0)}\nv_min_u32 {vr(vt3)}, 7, {vr(vt2)}\nv_perm_b32 {vr(vt3)}, {vr(vLh)}, s{sLo}, {vr(vt3)}\nv_and_b32 {vr(vt3)}, 0xff, {vr(vt3)}\nv_lshrrev_b32 {vr(vt2)}, 3, {vr(vt2)}\nv_add_u32 {vr(vt3)}, {vr(vt3)}, {vr(vt2)}")
    a(f"v_and_b32 {vr(vt0)}, 31, {vr(vt0)}\nv_mul_u32_u24 {vr(vt0)}, {TS}, {vr(vt0)}\nv_lshl_add_u32 {vr(vt0)}, {vr(vt3)}, 1, {vr(vt0)}\nv_add_u32 {vr(vt0)}, {L_T}, {vr(vt0)}")
    a(f"ds_read_u16 {vr(vF)}, {vr(vt0)}")
    a(f"v_bfe_u32 {vr(vt0)}, {vr(vl)}, 1, 2\nv_mul_u32_u24 {vr(vt0)}, {KS}, {vr(vt0)}\nv_and_b32 {vr(vt2)}, 1, {vr(vl)}\nv_lshl_add_u32 {vr(vt0)}, {vr(vt2)}, 4, {vr(vt0)}")
    a(f"ds_write_b128 {vr(vt0)}, {vr(vz,4)} offset:{L_K}")
    m0 = V.alloc(2,2); o = V.alloc(4,4)
    sSel = [S.alloc() for _ in range(3)]
    a(f"s_mov_b32 s{sSel[0]}, 0x01000100\ns_mov_b32 s{sSel[1]}, 0x03020302\ns_mov_b32 s{sSel[2]}, 0x05040302")
    lw1 = a.newlabel("CV_w1"); lw2 = a.newlabel("CV_w2"); lwe = a.newlabel("CV_we")
    a("s_waitcnt lgkmcnt(1)")
    a(f"s_cmp_eq_u32 s{sw}, 1\ns_cbranch_scc1 {lw1}\ns_cmp_ge_u32 s{sw}, 2\ns_cbranch_scc1 {lw2}")
    a(f"v_perm_b32 {vr(o)}, {vr(R)}, {vr(R)}, s{sSel[0]}")
    a(f"v_perm_b32 {vr(o+1)}, {vr(R+1)}, {vr(R)}, s{sSel[2]}")
    a(f"v_perm_b32 {vr(o+2)}, {vr(R+1)}, {vr(R+1)}, s{sSel[0]}")
    a(f"v_perm_b32 {vr(o+3)}, {vr(vF)}, {vr(R+1)}, s{sSel[2]}")
    a(f"v_cmp_gt_u32 vcc, 32, {vr(vl)}\ns_nop 1")
    for e in range(4): a(f"v_cndmask_b32 {vr(o+e)}, {vr(o+e)}, {vr(R+e)}, vcc")
    a(f"s_branch {lwe}")
    a.label(lw1)
    a(f"v_cmp_gt_u32 vcc, 32, {vr(vl)}\ns_nop 1\nv_cndmask_b32 {vr(vt0)}, {vr(R+3)}, {vr(R+2)}, vcc")
    a(f"v_perm_b32 {vr(o)}, {vr(vt0)}, {vr(vt0)}, s{sSel[0]}\nv_mov_b32 {vr(o+1)}, {vr(vt0)}\nv_perm_b32 {vr(o+2)}, {vr(vt0)}, {vr(vt0)}, s{sSel[1]}\nv_perm_b32 {vr(o+3)}, {vr(vF)}, {vr(vF)}, s{sSel[0]}")
    a(f"s_branch {lwe}")
    a.label(lw2)
    a(f"s_cmp_eq_u32 s{sw}, 2\ns_cselect_b64 vcc, -1, 0\ns_nop 1\nv_cndmask_b32 {vr(vt0)}, {vr(R+1)}, {vr(R)}, vcc")
    a(f"v_lshrrev_b32 {vr(vt1)}, 5, {vr(vl)}\nv_lshlrev_b32 {vr(vt1)}, 4, {vr(vt1)}\nv_lshrrev_b32 {vr(vt0)}, {vr(vt1)}, {vr(vt0)}")
    a(f"v_perm_b32 {vr(o)}, {vr(vt0)}, {vr(vt0)}, s{sSel[0]}\nv_mov_b32 {vr(o+1)}, {vr(o)}\nv_perm_b32 {vr(o+3)}, {vr(vF)}, {vr(vF)}, s{sSel[0]}")
    a(f"v_and_b32 {vr(vt1)}, 1, {vr(vl)}\nv_cmp_eq_u32 vcc, 0, {vr(vt1)}\ns_nop 1\nv_cndmask_b32 {vr(vt1)}, {vr(vF)}, {vr(vt0)}, vcc")
    a(f"s_mov_b32 s{st[0]}, 0x05040100\nv_perm_b32 {vr(o+2)}, {vr(vF)}, {vr(vt1)}, s{st[0]}")
    a.label(lwe)
    vKw = V.alloc()
    a(f"v_lshlrev_b32 {vr(vKw)}, 4, v0\nv_add_u32 {vr(vKw)}, {L_K+32}, {vr(vKw)}")
    a(f"ds_write_b128 {vr(vKw)}, {vr(o,4)}")
    a("s_waitcnt lgkmcnt(0)\ns_barrier")
    a(f"v_add_u32 {vr(vt0)}, -8, {vr(vKw)}\nds_read_b64 {vr(m0,2)}, {vr(vt0)}")
    c1 = V.alloc(4,4); c2 = V.alloc(4,4); c3 = V.alloc(4,4)
    a(f"v_alignbit_b32 {vr(c1+1)}, {vr(o+1)}, {vr(o)}, 16\nv_alignbit_b32 {vr(c1+2)}, {vr(o+2)}, {vr(o+1)}, 16\nv_alignbit_b32 {vr(c1+3)}, {vr(o+3)}, {vr(o+2)}, 16")
    a(f"v_mov_b32 {vr(c2+1)}, {vr(o)}\nv_mov_b32 {vr(c2+2)}, {vr(o+1)}\nv_mov_b32 {vr(c2+3)}, {vr(o+2)}")
    a(f"v_mov_b32 {vr(c3+2)}, {vr(c1+1)}\nv_mov_b32 {vr(c3+3)}, {vr(c1+2)}")
    a("s_waitcnt lgkmcnt(0)")
    a(f"v_alignbit_b32 {vr(c1)}, {vr(o)}, {vr(m0+1)}, 16\nv_mov_b32 {vr(c2)}, {vr(m0+1)}\nv_alignbit_b32 {vr(c3)}, {vr(m0+1)}, {vr(m0)}, 16\nv_mov_b32 {vr(c3+1)}, {vr(c1)}")
    a(f"ds_write_b128 {vr(vKw)}, {vr(c1,4)} offset:{KS}\nds_write_b128 {vr(vKw)}, {vr(c2,4)} offset:{2*KS}\nds_write_b128 {vr(vKw)}, {vr(c3,4)} offset:{3*KS}")
    a("s_waitcnt vmcnt(0) lgkmcnt(0)\ns_barrier")
    ST.stamp()
    V.reset(vz)
    vKA = V.alloc(); vKB = V.alloc()
    A = V.alloc(32,4); B = V.alloc(32,4); acc = V.alloc(32,4)
    a(f"v_bfe_u32 {vr(vt0)}, {vr(vl)}, 2, 2\nv_mul_u32_u24 {vr(vt0)}, {KS}, {vr(vt0)}\nv_and_b32 {vr(vt1)}, 3, {vr(vl)}\nv_lshl_add_u32 {vr(vt0)}, {vr(vt1)}, 3, {vr(vt0)}")
    a(f"v_lshrrev_b32 {vr(vt1)}, 5, {vr(vl)}\nv_lshl_add_u32 {vr(vt0)}, {vr(vt1)}, 5, {vr(vt0)}\nv_bfe_u32 {vr(vt2)}, {vr(vl)}, 4, 1\nv_lshlrev_b32 {vr(vt2)}, 4, {vr(vt2)}\nv_sub_u32 {vr(vt0)}, {vr(vt0)}, {vr(vt2)}")
    a(f"s_lshl_b32 s{st[0]}, s{sw}, 7\ns_add_u32 s{st[1]}, s{st[0]}, {L_K+32-8}\nv_add_u32 {vr(vKA)}, s{st[1]}, {vr(vt0)}")
    a(f"v_and_b32 {vr(vt0)}, 15, {vr(vl)}\nv_lshlrev_b32 {vr(vt0)}, 5, {vr(vt0)}\nv_lshlrev_b32 {vr(vt1)}, 5, {vr(vt1)}\nv_sub_u32 {vr(vt0)}, {vr(vt0)}, {vr(vt1)}\nv_add_u32 {vr(vt0)}, {vr(vt0)}, {vr(vt2)}")
    a(f"s_sub_u32 s{st[1]}, {L_U+512-64}, s{st[0]}\nv_add_u32 {vr(vKB)}, s{st[1]}, {vr(vt0)}")
    for rs in range(2):
        order = []
        for g in range(8):
            a(f"ds_read_b64_tr_b16 {vr(A+4*g,2)}, {vr(vKA)} offset:{512*g + 64*rs + 8}")
            a(f"ds_read_b64_tr_b16 {vr(A+4*g+2,2)}, {vr(vKA)} offset:{512*g + 64*rs}")
            a(f"ds_read_b128 {vr(B+4*g,4)}, {vr(vKB)} offset:{512*g + 64*(1-rs)}")
            if g >= 1:
                a("s_waitcnt lgkmcnt(3)")
                gg = g-1
                prs = [(gg, h) for h in range(gg+1)] + [(ga, gg) for ga in range(gg)]
                for (ga, hb) in prs:
                    if ga + hb <= 7:
                        c = ga + hb
                        cin = "0" if (rs == 0 and (ga, hb) not in order and not any((x_+y_) == c for (x_,y_) in order)) else vr(acc+4*c,4)
                        order.append((ga,hb))
                        a(f"v_mfma_f32_16x16x32_bf16 {vr(acc+4*c,4)}, {vr(A+4*ga,4)}, {vr(B+4*hb,4)}, {cin}")
        a("s_waitcnt lgkmcnt(0)")
        gg = 7
        prs = [(gg, h) for h in range(gg+1)] + [(ga, gg) for ga in range(gg)]
        for (ga, hb) in prs:
            if ga + hb <= 7:
                c = ga + hb
                cin = "0" if (rs == 0 and not any((x_+y_) == c for (x_,y_) in order)) else vr(acc+4*c,4)
                order.append((ga,hb))
                a(f"v_mfma_f32_16x16x32_bf16 {vr(acc+4*c,4)}, {vr(A+4*ga,4)}, {vr(B+4*hb,4)}, {cin}")
        assert len(order) == 36
    ST.stamp()
    a("s_barrier")
    a(f"v_lshlrev_b32 {vr(vt0)}, 4, {vr(vl)}\ns_lshl_b32 s{st[0]}, s{sw}, 10\nv_add_u32 {vr(vt1)}, s{st[0]}, {vr(vt0)}")
    a("s_nop 4")
    for c in range(8): a(f"ds_write_b128 {vr(vt1)}, {vr(acc+4*c,4)} offset:{c*4096}")
    a("s_waitcnt lgkmcnt(0)\ns_barrier")
    a(f"s_lshl_b32 s{st[0]}, s{sw}, 13\nv_add_u32 {vr(vt1)}, s{st[0]}, {vr(vt0)}")
    for cc in range(2):
        for w in range(4): a(f"ds_read_b128 {vr(A+16*cc+4*w,4)}, {vr(vt1)} offset:{cc*4096 + w*1024}")
    a(f"v_bfe_u32 {vr(vt2)}, {vr(vl)}, 2, 2\nv_mul_u32_u24 {vr(vt2)}, 57344, {vr(vt2)}\nv_and_b32 {vr(vt3)}, 3, {vr(vl)}\nv_lshl_add_u32 {vr(vt2)}, {vr(vt3)}, 5, {vr(vt2)}\nv_lshrrev_b32 {vr(vt3)}, 4, {vr(vl)}\nv_lshl_add_u32 {vr(vt2)}, {vr(vt3)}, 3, {vr(vt2)}")
    a(f"s_lshl_b32 s{st[0]}, s{sd}, 7\ns_mul_i32 s{st[1]}, s{sw}, {8*57344}\ns_add_u32 s{st[0]}, s{st[0]}, s{st[1]}\ns_add_u32 s{st[0]}, s{st[0]}, {WS_Y}\ns_add_u32 s{st[1]}, s{st[0]}, {4*57344}")
    for cc in range(2):
        a(f"s_waitcnt lgkmcnt({4*(1-cc)})")
        b = A+16*cc
        for e in range(4):
            a(f"v_add_f32 {vr(b+e)}, {vr(b+e)}, {vr(b+4+e)}\nv_add_f32 {vr(b+8+e)}, {vr(b+8+e)}, {vr(b+12+e)}")
        for e in range(4): a(f"v_add_f32 {vr(b+e)}, {vr(b+e)}, {vr(b+8+e)}")
        a(f"v_cvt_pk_bf16_f32 {vr(b)}, {vr(b)}, {vr(b+1)}\nv_cvt_pk_bf16_f32 {vr(b+1)}, {vr(b+2)}, {vr(b+3)}")
        a(f"buffer_store_dwordx2 {vr(b,2)}, {vr(vt2)}, {sr(sWS,4)}, s{st[cc]} offen sc0 sc1")
    a("s_waitcnt vmcnt(0)\ns_barrier")
    lf = a.newlabel("CV_fl")
    a(f"s_cmp_lg_u32 s{sw}, 0\ns_cbranch_scc1 {lf}")
    a(f"v_mov_b32 {vr(vt1)}, 1\ns_lshl_b32 s{st[0]}, s{sd}, 2\ns_add_u32 s{st[0]}, s{st[0]}, {WS_FLAG}")
    a(f"v_cmp_eq_u32 vcc, 0, {vr(vl)}\nv_mov_b32 {vr(vt3)}, 0x7ff00000\nv_mov_b32 {vr(vt2)}, 0\ns_nop 0\nv_cndmask_b32 {vr(vt2)}, {vr(vt3)}, {vr(vt2)}, vcc")
    a(f"buffer_store_dword {vr(vt1)}, {vr(vt2)}, {sr(sWS,4)}, s{st[0]} offen sc0 sc1\ns_waitcnt vmcnt(0)")
    a.label(lf)
    ST.stamp()
    ST.flush(sWS, SB, vt0, 2*((st[0]+1)//2), 2)
    a(f"s_branch {end}")
    return V.hi, S.hi

def gen_k2(name="g2_kernel", stamp=False, stampbase=WS_STAMP):
    global SB
    SB = stampbase
    a = Asm()
    S = Regs("s", 3, 100)
    end = "G2_END"
    ST = Stamps(a, S, 8, stamp)
    s0 = S.mark()
    a(f"s_cmp_ge_u32 s2, 672\ns_cbranch_scc1 {end}")
    ST.start()
    a("s_cmp_ge_u32 s2, 224\ns_cbranch_scc1 CV_MAIN")
    k0 = ST.k
    v1, s1 = gen_g2(a, s0, ST, end)
    ST.k = k0
    a.label("CV_MAIN")
    v2, s2 = gen_cv(a, s0, ST, end)
    a.label(end)
    print("K2 vgprs", v1, v2, "sgprs", s1, s2)
    return kernel_wrap(name, a.text(), max(v1,v2), sgpr=max(s1,s2))

if __name__ == "__main__":
    t = gen_k2()
    open("k2.s","w").write('.amdgcn_target "amdgcn-amd-amdhsa--gfx950"\n' + t)
```

```python
import sys
from asm import *
from common import *
import k1, k2, build
def diag_kernel():
    a = Asm()
    a("s_cmp_ge_u32 s2, 1\ns_cbranch_scc1 DG_END")
    a("s_load_dwordx2 s[4:5], s[0:1], 128\ns_load_dwordx2 s[6:7], s[0:1], 120\ns_waitcnt lgkmcnt(0)")
    srd(a, 8, 4, WS_SIZE); srd(a, 12, 6, 256)
    def scan(base, first, count, nw, outidx):
        a("v_mov_b32 v10, -1\nv_mov_b32 v11, 0\nv_mov_b32 v12, 0\nv_mov_b32 v13, -1")
        n = (count + 63)//64
        for k in range(n):
            a(f"v_add_u32 v1, {k*64}, v0\nv_min_u32 v1, {count-1}, v1\nv_add_u32 v1, {first}, v1\nv_mul_u32_u24 v1, {nw*64}, v1\nv_add_u32 v1, {base}, v1")
            a("buffer_load_dwordx2 v[2:3], v1, s[8:11], 0 offen\ns_waitcnt vmcnt(0)")
            a("v_min_u32 v10, v10, v2\nv_max_u32 v11, v11, v3\nv_max_u32 v12, v12, v2\nv_min_u32 v13, v13, v3")
        for r, op in ((10,"min"),(11,"max"),(12,"max"),(13,"min")):
            for sh in (1,2,4,8,16,32):
                a(f"v_xor_b32 v4, {sh}, v0\nv_lshlrev_b32 v4, 2, v4\nds_bpermute_b32 v5, v4, v{r}\ns_waitcnt lgkmcnt(0)\nv_{op}_u32 v{r}, v{r}, v5")
        for q, r in enumerate((10, 12, 13, 11)):
            a(f"v_mov_b32 v6, {4*(outidx+q)}\nbuffer_store_dword v{r}, v6, s[12:15], 0 offen")
    scan(WS_STAMP, 0, 32, 8, 0)
    scan(WS_STAMP, 32, 224, 8, 4)
    scan(WS_STAMP2, 0, 224, 4, 8)
    scan(WS_STAMP2, 224, 448, 4, 12)
    a("s_waitcnt vmcnt(0)")
    a.label("DG_END")
    return kernel_wrap("diag_kernel", a.text(), 24, 24)
if __name__ == "__main__":
    s = build.build(extra_launches=[("diag_kernel",(1,1,1),(64,1,1),0)], k1kw=dict(stamp=True), k2kw=dict(stamp=True, stampbase=WS_STAMP2), extra_text=diag_kernel())
    open("diag.s","w").write(s)
```

```python
WS_H   = 0
WS_W2T = 0x700000
WS_XNT = 0x888000
WS_Y   = 0xA48000
WS_FLAG= 0xC08000
F_HF = WS_FLAG
F_WF = WS_FLAG + 2048
F_XF = WS_FLAG + 2304
F_YF = WS_FLAG + 2560
WS_STATS=0xC0A000
WS_CS   =0xC12000
WS_STAMP=0xC20000
WS_STAMP2=0xC60000
WS_SIZE= 0xD00000
X_BYTES = 2048*448*2
W_BYTES = 448*1792*2
P_BYTES = 448*256*2
GELU_C0 = -2.0*1.4426950408889634*0.7978845608028654
GELU_C1 = GELU_C0*0.044715
LOG2E = 1.4426950408889634
INV2PI = 0.15915494309189535
N_LN, N_CS, N_AUX, N_G = 32, 28, 224, 224
ID_AUX = 32; ID_CS = 256; ID_G = 288; N_WG = 512
LDS_BYTES = 81920
SPIN = 20000
import struct
def f2u(x): return struct.unpack("<I", struct.pack("<f", x))[0]
def fhex(x): return "0x%08x" % f2u(x)
```

```python
from asm import *
from common import *
from roles_small import nonce_issue, nonce_finish, tag_check_loop, set_flag

def cmul(a, nr, ni, xr, xi, yr, yi, t):
    a(f"v_mul_f32 {vr(t)}, {vr(xi)}, {vr(yi)}")
    a(f"v_mul_f32 {vr(ni)}, {vr(xi)}, {vr(yr)}")
    a(f"v_fma_f32 {vr(nr)}, {vr(xr)}, {vr(yr)}, -{vr(t)}")
    a(f"v_fmac_f32 {vr(ni)}, {vr(xr)}, {vr(yi)}")

def role_aux(a, s0, ST, end):
    V = Regs("v", 1, 256); S = Regs("s", s0, 96)
    L_U = 0; L_K = 4608; KS = 4160; L_ST = L_K + 4*KS; STW = 32*288; L_T = L_ST + 4*STW; TS = 80; TSZ = 32*TS
    L_X = L_ST
    assert L_T + 2*TSZ <= LDS_BYTES and L_X + 32768 <= L_T
    sWS = S.alloc(4,4); sP = [S.alloc(4,4) for _ in range(6)]; sDB = S.alloc(4,4)
    pDt = S.alloc(2,2); pDs = S.alloc(2,2); sN = S.alloc(2,2)
    sw = S.alloc(); sa = S.alloc(); sd = S.alloc(); st = [S.alloc() for _ in range(6)]; sLd = S.alloc(); sDs = S.alloc(); sch = S.alloc()
    a(f"s_load_dwordx2 {sr(sWS,2)}, s[0:1], 128\ns_load_dwordx2 {sr(sDB,2)}, s[0:1], 120")
    for k in range(6): a(f"s_load_dwordx2 {sr(sP[k],2)}, s[0:1], {8+8*k}")
    a(f"s_load_dwordx2 {sr(pDt,2)}, s[0:1], 56\ns_load_dwordx2 {sr(pDs,2)}, s[0:1], 64")
    vl = V.alloc(); vt = V.alloc(4,2); vt0, vt1, vt2, vt3 = vt, vt+1, vt+2, vt+3
    vN = V.alloc(2,2); vz0 = V.alloc()
    a(f"v_lshrrev_b32 {vr(vt0)}, 6, v0\nv_and_b32 {vr(vl)}, 63, v0\nv_readfirstlane_b32 s{sw}, {vr(vt0)}")
    a(f"s_sub_u32 s{sa}, s2, {ID_AUX}")
    vPo = V.alloc()
    a(f"s_lshl_b32 s{st[0]}, s{sa}, 10\nv_lshlrev_b32 {vr(vPo)}, 1, v0\nv_add_u32 {vr(vPo)}, s{st[0]}, {vr(vPo)}")
    a("s_waitcnt lgkmcnt(0)")
    for k in range(6): srd_fix(a, sP[k], P_BYTES)
    vP = [[V.alloc() for _ in range(6)] for _ in range(2)]
    for ch in range(2):
        for k in range(6): a(f"buffer_load_ushort {vr(vP[ch][k])}, {vr(vPo)}, {sr(sP[k],4)}, 0 offen offset:{512*ch}")
    a(f"s_lshl_b32 s{st[0]}, s{sa}, 2")
    a(f"s_load_dword s{sLd}, {sr(pDt,2)}, s{st[0]}\ns_load_dword s{sDs}, {sr(pDs,2)}, s{st[0]}")
    srd_fix(a, sWS, WS_SIZE); srd_fix(a, sDB, 256)
    nonce_issue(a, vN, vz0, sDB)
    vz = V.alloc(4,4)
    for e in range(4): a(f"v_mov_b32 {vr(vz+e)}, 0")
    a(f"v_and_b32 {vr(vt1)}, 31, {vr(vl)}\nv_lshlrev_b32 {vr(vt1)}, 4, {vr(vt1)}\nds_write_b128 {vr(vt1)}, {vr(vz,4)} offset:{L_U}")
    a(f"v_bfe_u32 {vr(vt0)}, {vr(vl)}, 1, 2\nv_mul_u32_u24 {vr(vt0)}, {KS}, {vr(vt0)}\nv_and_b32 {vr(vt2)}, 1, {vr(vl)}\nv_lshl_add_u32 {vr(vt0)}, {vr(vt2)}, 4, {vr(vt0)}")
    a(f"ds_write_b128 {vr(vt0)}, {vr(vz,4)} offset:{L_K}")
    ST.stamp()
    vSw = V.alloc(); vSr = V.alloc()
    a(f"s_mul_i32 s{st[0]}, s{sw}, {STW}\ns_add_u32 s{st[0]}, s{st[0]}, {L_ST}\nv_lshlrev_b32 {vr(vSw)}, 2, {vr(vl)}\nv_add_u32 {vr(vSw)}, s{st[0]}, {vr(vSw)}")
    a(f"v_and_b32 {vr(vt0)}, 15, {vr(vl)}\nv_mul_u32_u24 {vr(vt0)}, 288, {vr(vt0)}\nv_lshrrev_b32 {vr(vt1)}, 4, {vr(vl)}\nv_lshl_add_u32 {vr(vt0)}, {vr(vt1)}, 4, {vr(vt0)}\nv_add_u32 {vr(vSr)}, s{st[0]}, {vr(vt0)}")
    mark = V.mark()
    cur_p = [V.alloc() for _ in range(6)]
    a(f"s_mov_b32 s{sch}, 0")
    a("s_waitcnt lgkmcnt(0)")
    a("s_waitcnt vmcnt(1)")
    for k in range(6): a(f"v_mov_b32 {vr(cur_p[k])}, {vr(vP[0][k])}")
    lA = a.newlabel("AX_A")
    a.label(lA)
    sLc = S.alloc(); sDc = S.alloc()
    a(f"s_lshl_b32 s{st[0]}, s{sch}, 4\ns_lshr_b32 s{sLc}, s{sLd}, s{st[0]}\ns_lshl_b32 s{sLc}, s{sLc}, 16\ns_lshr_b32 s{sDc}, s{sDs}, s{st[0]}\ns_lshl_b32 s{sDc}, s{sDc}, 16")
    vdt = V.alloc()
    a(f"v_mov_b32 {vr(vdt)}, s{sLc}\nv_mul_f32 {vr(vdt)}, {fhex(LOG2E)}, {vr(vdt)}\nv_exp_f32 {vr(vdt)}, {vr(vdt)}\ns_nop 0\nv_cvt_pk_bf16_f32 {vr(vdt)}, {vr(vdt)}, {vr(vdt)}\nv_lshlrev_b32 {vr(vdt)}, 16, {vr(vdt)}")
    for k in range(6): a(f"v_lshlrev_b32 {vr(cur_p[k])}, 16, {vr(cur_p[k])}")
    Are, Aim, Bre, Bim, Cre, Cim = cur_p
    vlr = V.alloc(); vli = V.alloc()
    a(f"v_mul_f32 {vr(vlr)}, {vr(vdt)}, {vr(Are)}\nv_mul_f32 {vr(vli)}, {vr(vdt)}, {vr(Aim)}\nv_mul_f32 {vr(Bre)}, {vr(vdt)}, {vr(Bre)}\nv_mul_f32 {vr(Bim)}, {vr(vdt)}, {vr(Bim)}")
    a(f"v_mul_f32 {vr(vlr)}, {fhex(LOG2E)}, {vr(vlr)}\nv_mul_f32 {vr(vli)}, {fhex(INV2PI)}, {vr(vli)}")
    cr = V.alloc(); ci = V.alloc()
    cmul(a, cr, ci, Cre, Cim, Bre, Bim, vt0)
    E = {}
    for p in (8, 1, 256):
        er = V.alloc(); ei = V.alloc(); E[p] = (er, ei)
        a(f"v_mul_f32 {vr(vt0)}, {fhex(float(p))}, {vr(vlr)}\nv_mul_f32 {vr(vt1)}, {fhex(float(p))}, {vr(vli)}")
        a(f"v_exp_f32 {vr(vt0)}, {vr(vt0)}\nv_fract_f32 {vr(vt1)}, {vr(vt1)}\ns_nop 0\nv_cos_f32 {vr(er)}, {vr(vt1)}\nv_sin_f32 {vr(ei)}, {vr(vt1)}\ns_nop 0")
        a(f"v_mul_f32 {vr(er)}, {vr(er)}, {vr(vt0)}\nv_mul_f32 {vr(ei)}, {vr(ei)}, {vr(vt0)}")
    x = [(V.alloc(), V.alloc()), (V.alloc(), V.alloc())]
    pk = [V.alloc(), V.alloc()]
    wr, wi = E[8]
    vSb = V.alloc()
    a(f"v_mov_b32 {vr(pk[0])}, 0x00003f80\nds_write_b32 {vr(vSw)}, {vr(pk[0])}")
    a(f"v_cvt_pk_bf16_f32 {vr(pk[1])}, {vr(wr)}, {vr(wi)}\nds_write_b32 {vr(vSw)}, {vr(pk[1])} offset:288")
    a(f"v_mov_b32 {vr(x[1][0])}, {vr(wr)}\nv_mov_b32 {vr(x[1][1])}, {vr(wi)}\nv_add_u32 {vr(vSb)}, 576, {vr(vSw)}\ns_mov_b32 s{st[1]}, 15")
    lB = a.newlabel("AX_B")
    a.label(lB)
    cmul(a, x[0][0], x[0][1], x[1][0], x[1][1], wr, wi, vt0)
    a(f"v_cvt_pk_bf16_f32 {vr(pk[0])}, {vr(x[0][0])}, {vr(x[0][1])}\nds_write_b32 {vr(vSb)}, {vr(pk[0])}")
    cmul(a, x[1][0], x[1][1], x[0][0], x[0][1], wr, wi, vt0)
    a(f"v_cvt_pk_bf16_f32 {vr(pk[1])}, {vr(x[1][0])}, {vr(x[1][1])}\nds_write_b32 {vr(vSb)}, {vr(pk[1])} offset:288")
    a(f"v_add_u32 {vr(vSb)}, 576, {vr(vSb)}\ns_sub_u32 s{st[1]}, s{st[1]}, 1\ns_cmp_lg_u32 s{st[1]}, 0\ns_cbranch_scc1 {lB}")
    fB = V.alloc(32,4); fA = V.alloc(32,4); kacc = V.alloc(16,4)
    for tb in range(2):
        for k4 in range(4):
            a(f"ds_read_b128 {vr(fB+16*tb+4*k4,4)}, {vr(vSr)} offset:{tb*16*288 + k4*64}")
    zr, zi = E[1]; hr, hi = E[256]
    z2 = (V.alloc(), V.alloc()); z4 = (V.alloc(), V.alloc())
    cmul(a, z2[0], z2[1], zr, zi, zr, zi, vt0)
    cmul(a, z4[0], z4[1], z2[0], z2[1], z2[0], z2[1], vt0)
    row = [0]
    def emit(v):
        r = row[0]; row[0] += 1
        a(f"v_cvt_pk_bf16_f32 {vr(pk[r&1])}, {vr(v[0])}, -{vr(v[1])}\nds_write_b32 {vr(vSw)}, {vr(pk[r&1])} offset:{288*r}")
    def mul(dst, src, m): cmul(a, dst[0], dst[1], src[0], src[1], m[0], m[1], vt0)
    y0 = (V.alloc(), V.alloc()); y1 = (V.alloc(), V.alloc())
    c0 = (cr, ci)
    emit(c0)
    cur = c0
    for i in range(1, 8):
        nx = x[i&1]; mul(nx, cur, (zr, zi)); emit(nx); cur = nx
    mul(y0, c0, (hr, hi)); emit(y0)
    cur = y0
    for i in range(3):
        nx = x[i&1]; mul(nx, cur, z2); emit(nx); cur = nx
    mul(y1, y0, (hr, hi)); emit(y1)
    mul(x[0], y1, z4); emit(x[0])
    mul(y0, y1, (hr, hi)); emit(y0)
    mul(x[1], y0, z4); emit(x[1])
    cur = y0; oth = y1
    for i in range(5):
        mul(oth, cur, (hr, hi)); emit(oth); cur, oth = oth, cur
    assert row[0] == 21
    for ta in range(2):
        for k4 in range(4):
            a(f"ds_read_b128 {vr(fA+16*ta+4*k4,4)}, {vr(vSr)} offset:{ta*16*288 + k4*64}")
    a("s_waitcnt lgkmcnt(0)")
    for k4 in range(4):
        for ta in range(2):
            for tb in range(2):
                d_ = kacc + 4*(2*ta+tb)
                c = "0" if k4 == 0 else vr(d_,4)
                a(f"v_mfma_f32_16x16x32_bf16 {vr(d_,4)}, {vr(fA+16*ta+4*k4,4)}, {vr(fB+16*tb+4*k4,4)}, {c}")
    a(f"s_mul_i32 s{st[0]}, s{sw}, {STW}\ns_add_u32 s{st[0]}, s{st[0]}, {L_ST}\nv_lshlrev_b32 {vr(vt0)}, 4, {vr(vl)}\nv_add_u32 {vr(vt1)}, s{st[0]}, {vr(vt0)}")
    a("s_nop 7")
    for t in range(4): a(f"ds_write_b128 {vr(vt1)}, {vr(kacc+4*t,4)} offset:{1024*t}")
    a("s_waitcnt lgkmcnt(0)\ns_barrier")
    a(f"s_lshl_b32 s{st[0]}, s{sw}, 10\ns_add_u32 s{st[0]}, s{st[0]}, {L_ST}\nv_add_u32 {vr(vt1)}, s{st[0]}, {vr(vt0)}")
    pr = fA
    for w in range(4): a(f"ds_read_b128 {vr(pr+4*w,4)}, {vr(vt1)} offset:{STW*w}")
    a("s_waitcnt lgkmcnt(0)")
    for e in range(4):
        a(f"v_add_f32 {vr(pr+e)}, {vr(pr+e)}, {vr(pr+4+e)}\nv_add_f32 {vr(pr+8+e)}, {vr(pr+8+e)}, {vr(pr+12+e)}")
    for e in range(4): a(f"v_add_f32 {vr(pr+e)}, {vr(pr+e)}, {vr(pr+8+e)}")
    a(f"v_mov_b32 {vr(vt2)}, s{sDc}\nv_cmp_eq_u32 vcc, 0, v0\nv_mov_b32 {vr(vt3)}, 0\ns_nop 0\nv_cndmask_b32 {vr(vt2)}, {vr(vt3)}, {vr(vt2)}, vcc\nv_add_f32 {vr(pr)}, {vr(pr)}, {vr(vt2)}")
    a(f"v_cvt_pk_bf16_f32 {vr(pr)}, {vr(pr)}, {vr(pr+1)}\nv_cvt_pk_bf16_f32 {vr(pr+1)}, {vr(pr+2)}, {vr(pr+3)}")
    a(f"v_and_b32 {vr(vt1)}, 15, {vr(vl)}\ns_and_b32 s{st[0]}, s{sw}, 1\ns_lshl_b32 s{st[0]}, s{st[0]}, 4\nv_add_u32 {vr(vt1)}, s{st[0]}, {vr(vt1)}\nv_mul_u32_u24 {vr(vt1)}, {TS}, {vr(vt1)}")
    a(f"v_lshrrev_b32 {vr(vt2)}, 4, {vr(vl)}\nv_lshl_add_u32 {vr(vt1)}, {vr(vt2)}, 3, {vr(vt1)}\ns_lshr_b32 s{st[0]}, s{sw}, 1\ns_lshl_b32 s{st[0]}, s{st[0]}, 5\ns_mul_i32 s{st[1]}, s{sch}, {TSZ}\ns_add_u32 s{st[0]}, s{st[0]}, s{st[1]}\ns_add_u32 s{st[0]}, s{st[0]}, {L_T}\nv_add_u32 {vr(vt1)}, s{st[0]}, {vr(vt1)}")
    a(f"ds_write_b64 {vr(vt1)}, {vr(pr,2)}")
    a("s_waitcnt lgkmcnt(0)\ns_barrier")
    for k in range(6): a(f"v_mov_b32 {vr(cur_p[k])}, {vr(vP[1][k])}")
    a(f"s_add_u32 s{sch}, s{sch}, 1\ns_cmp_lt_u32 s{sch}, 2\ns_cbranch_scc1 {lA}")
    ST.stamp()
    V.reset(mark)
    a("s_waitcnt vmcnt(0)")
    nonce_finish(a, vN, vz0, sDB, sN, st[2])
    vFl = V.alloc(2,2); vFo = V.alloc()
    a(f"v_and_b32 {vr(vFo)}, 31, {vr(vl)}\nv_lshlrev_b32 {vr(vFo)}, 3, {vr(vFo)}\nv_add_u32 {vr(vFo)}, {F_XF}, {vr(vFo)}")
    def ld_xf(): a(f"buffer_load_dwordx2 {vr(vFl,2)}, {vr(vFo)}, {sr(sWS,4)}, 0 offen sc1")
    ld_xf(); a("s_waitcnt vmcnt(0)")
    tag_check_loop(a, [(vFl, vFl+1)], ld_xf, sN, st[2])
    vU = [V.alloc(4,4), V.alloc(4,4)]
    a(f"v_lshrrev_b32 {vr(vt0)}, 3, v0\nv_mul_u32_u24 {vr(vt0)}, 57344, {vr(vt0)}\nv_and_b32 {vr(vt1)}, 7, v0\nv_lshl_add_u32 {vr(vt0)}, {vr(vt1)}, 4, {vr(vt0)}\ns_lshl_b32 s{st[0]}, s{sa}, 8\ns_add_u32 s{st[0]}, s{st[0]}, {WS_XNT}\ns_add_u32 s{st[1]}, s{st[0]}, 128")
    for ch in range(2): a(f"buffer_load_dwordx4 {vr(vU[ch],4)}, {vr(vt0)}, {sr(sWS,4)}, s{st[ch]} offen sc1")
    ST.stamp()
    LUTlo = 0 | (8<<8) | (12<<16) | (14<<24); LUThi = 16 | (17<<8) | (18<<16) | (19<<24)
    sLo = S.alloc(); vLh = V.alloc(); vRa = V.alloc(); vFa = V.alloc(); va0 = V.alloc()
    a(f"s_mov_b32 s{sLo}, {LUTlo}\nv_mov_b32 {vr(vLh)}, {LUThi}")
    a(f"v_lshrrev_b32 {vr(vt0)}, 5, v0\nv_perm_b32 {vr(va0)}, {vr(vLh)}, s{sLo}, {vr(vt0)}\nv_and_b32 {vr(va0)}, 0xff, {vr(va0)}")
    a(f"v_and_b32 {vr(vt1)}, 31, v0\nv_mul_u32_u24 {vr(vt1)}, {TS}, {vr(vt1)}\nv_and_b32 {vr(vt2)}, 0x18, {vr(va0)}\nv_lshl_add_u32 {vr(vt1)}, {vr(vt2)}, 1, {vr(vt1)}\nv_add_u32 {vr(vRa)}, {L_T}, {vr(vt1)}")
    a(f"v_add_u32 {vr(vt0)}, 1, v0\nv_lshrrev_b32 {vr(vt2)}, 5, {vr(vt0)}\nv_min_u32 {vr(vt3)}, 7, {vr(vt2)}\nv_perm_b32 {vr(vt3)}, {vr(vLh)}, s{sLo}, {vr(vt3)}\nv_and_b32 {vr(vt3)}, 0xff, {vr(vt3)}\nv_lshrrev_b32 {vr(vt2)}, 3, {vr(vt2)}\nv_add_u32 {vr(vt3)}, {vr(vt3)}, {vr(vt2)}")
    a(f"v_and_b32 {vr(vt0)}, 31, {vr(vt0)}\nv_mul_u32_u24 {vr(vt0)}, {TS}, {vr(vt0)}\nv_lshl_add_u32 {vr(vt0)}, {vr(vt3)}, 1, {vr(vt0)}\nv_add_u32 {vr(vFa)}, {L_T}, {vr(vt0)}")
    vKw = V.alloc(); vUw = V.alloc(); vKA = V.alloc(); vKB = V.alloc(); vYo = V.alloc(); vXw = V.alloc(); vXr = V.alloc()
    a(f"v_lshlrev_b32 {vr(vUw)}, 4, v0\nv_add_u32 {vr(vKw)}, {L_K+32}, {vr(vUw)}\nv_add_u32 {vr(vUw)}, {L_U+512}, {vr(vUw)}")
    a(f"v_bfe_u32 {vr(vt0)}, {vr(vl)}, 2, 2\nv_mul_u32_u24 {vr(vt0)}, {KS}, {vr(vt0)}\nv_and_b32 {vr(vt1)}, 3, {vr(vl)}\nv_lshl_add_u32 {vr(vt0)}, {vr(vt1)}, 3, {vr(vt0)}")
    a(f"v_lshrrev_b32 {vr(vt1)}, 5, {vr(vl)}\nv_lshl_add_u32 {vr(vt0)}, {vr(vt1)}, 5, {vr(vt0)}\nv_bfe_u32 {vr(vt2)}, {vr(vl)}, 4, 1\nv_lshlrev_b32 {vr(vt2)}, 4, {vr(vt2)}\nv_sub_u32 {vr(vt0)}, {vr(vt0)}, {vr(vt2)}")
    a(f"s_lshl_b32 s{st[0]}, s{sw}, 7\ns_add_u32 s{st[1]}, s{st[0]}, {L_K+32-8}\nv_add_u32 {vr(vKA)}, s{st[1]}, {vr(vt0)}")
    a(f"v_and_b32 {vr(vt0)}, 15, {vr(vl)}\nv_lshlrev_b32 {vr(vt0)}, 5, {vr(vt0)}\nv_lshlrev_b32 {vr(vt1)}, 5, {vr(vt1)}\nv_sub_u32 {vr(vt0)}, {vr(vt0)}, {vr(vt1)}\nv_add_u32 {vr(vt0)}, {vr(vt0)}, {vr(vt2)}")
    a(f"s_sub_u32 s{st[1]}, {L_U+512-64}, s{st[0]}\nv_add_u32 {vr(vKB)}, s{st[1]}, {vr(vt0)}")
    a(f"v_bfe_u32 {vr(vt2)}, {vr(vl)}, 2, 2\nv_mul_u32_u24 {vr(vt2)}, 57344, {vr(vt2)}\nv_and_b32 {vr(vt3)}, 3, {vr(vl)}\nv_lshl_add_u32 {vr(vt2)}, {vr(vt3)}, 5, {vr(vt2)}\nv_lshrrev_b32 {vr(vt3)}, 4, {vr(vl)}\nv_lshl_add_u32 {vr(vYo)}, {vr(vt3)}, 3, {vr(vt2)}")
    a(f"v_lshlrev_b32 {vr(vt0)}, 4, {vr(vl)}\ns_lshl_b32 s{st[0]}, s{sw}, 10\ns_add_u32 s{st[0]}, s{st[0]}, {L_X}\nv_add_u32 {vr(vXw)}, s{st[0]}, {vr(vt0)}\ns_lshl_b32 s{st[0]}, s{sw}, 13\ns_add_u32 s{st[0]}, s{st[0]}, {L_X}\nv_add_u32 {vr(vXr)}, s{st[0]}, {vr(vt0)}")
    sSel = [S.alloc() for _ in range(4)]
    a(f"s_mov_b32 s{sSel[0]}, 0x01000100\ns_mov_b32 s{sSel[1]}, 0x03020302\ns_mov_b32 s{sSel[2]}, 0x05040302\ns_mov_b32 s{sSel[3]}, 0x05040100")
    sY = S.alloc(); sY2 = S.alloc()
    a(f"s_lshl_b32 s{sY}, s{sa}, 8\ns_mul_i32 s{st[1]}, s{sw}, {8*57344}\ns_add_u32 s{sY}, s{sY}, s{st[1]}\ns_add_u32 s{sY}, s{sY}, {WS_Y}")
    R = V.alloc(4,4); vF = V.alloc(); m0 = V.alloc(2,2); o = V.alloc(4,4); c1 = V.alloc(4,4); c2 = V.alloc(4,4); c3 = V.alloc(4,4)
    A = V.alloc(32,4); B = V.alloc(32,4); acc = V.alloc(32,4)
    a(f"s_mov_b32 s{sch}, 0\ns_waitcnt vmcnt(0)")
    lBm = a.newlabel("AX_M")
    a.label(lBm)
    a(f"ds_read_b128 {vr(R,4)}, {vr(vRa)}\nds_read_u16 {vr(vF)}, {vr(vFa)}")
    a(f"ds_write_b128 {vr(vUw)}, {vr(vU[0],4)}")
    lw1 = a.newlabel("AX_w1"); lw2 = a.newlabel("AX_w2"); lwe = a.newlabel("AX_we")
    a("s_waitcnt lgkmcnt(1)")
    a(f"s_cmp_eq_u32 s{sw}, 1\ns_cbranch_scc1 {lw1}\ns_cmp_ge_u32 s{sw}, 2\ns_cbranch_scc1 {lw2}")
    a(f"v_perm_b32 {vr(o)}, {vr(R)}, {vr(R)}, s{sSel[0]}\nv_perm_b32 {vr(o+1)}, {vr(R+1)}, {vr(R)}, s{sSel[2]}\nv_perm_b32 {vr(o+2)}, {vr(R+1)}, {vr(R+1)}, s{sSel[0]}\nv_perm_b32 {vr(o+3)}, {vr(vF)}, {vr(R+1)}, s{sSel[2]}")
    a(f"v_cmp_gt_u32 vcc, 32, {vr(vl)}\ns_nop 1")
    for e in range(4): a(f"v_cndmask_b32 {vr(o+e)}, {vr(o+e)}, {vr(R+e)}, vcc")
    a(f"s_branch {lwe}")
    a.label(lw1)
    a(f"v_cmp_gt_u32 vcc, 32, {vr(vl)}\ns_nop 1\nv_cndmask_b32 {vr(vt0)}, {vr(R+3)}, {vr(R+2)}, vcc")
    a(f"v_perm_b32 {vr(o)}, {vr(vt0)}, {vr(vt0)}, s{sSel[0]}\nv_mov_b32 {vr(o+1)}, {vr(vt0)}\nv_perm_b32 {vr(o+2)}, {vr(vt0)}, {vr(vt0)}, s{sSel[1]}\nv_perm_b32 {vr(o+3)}, {vr(vF)}, {vr(vF)}, s{sSel[0]}")
    a(f"s_branch {lwe}")
    a.label(lw2)
    a(f"s_cmp_eq_u32 s{sw}, 2\ns_cselect_b64 vcc, -1, 0\ns_nop 1\nv_cndmask_b32 {vr(vt0)}, {vr(R+1)}, {vr(R)}, vcc")
    a(f"v_lshrrev_b32 {vr(vt1)}, 5, {vr(vl)}\nv_lshlrev_b32 {vr(vt1)}, 4, {vr(vt1)}\nv_lshrrev_b32 {vr(vt0)}, {vr(vt1)}, {vr(vt0)}")
    a(f"v_perm_b32 {vr(o)}, {vr(vt0)}, {vr(vt0)}, s{sSel[0]}\nv_mov_b32 {vr(o+1)}, {vr(o)}\nv_perm_b32 {vr(o+3)}, {vr(vF)}, {vr(vF)}, s{sSel[0]}")
    a(f"v_and_b32 {vr(vt1)}, 1, {vr(vl)}\nv_cmp_eq_u32 vcc, 0, {vr(vt1)}\ns_nop 1\nv_cndmask_b32 {vr(vt1)}, {vr(vF)}, {vr(vt0)}, vcc")
    a(f"v_perm_b32 {vr(o+2)}, {vr(vF)}, {vr(vt1)}, s{sSel[3]}")
    a.label(lwe)
    a(f"ds_write_b128 {vr(vKw)}, {vr(o,4)}")
    a("s_waitcnt lgkmcnt(0)\ns_barrier")
    a(f"v_add_u32 {vr(vt0)}, -8, {vr(vKw)}\nds_read_b64 {vr(m0,2)}, {vr(vt0)}")
    a(f"v_alignbit_b32 {vr(c1+1)}, {vr(o+1)}, {vr(o)}, 16\nv_alignbit_b32 {vr(c1+2)}, {vr(o+2)}, {vr(o+1)}, 16\nv_alignbit_b32 {vr(c1+3)}, {vr(o+3)}, {vr(o+2)}, 16")
    a(f"v_mov_b32 {vr(c2+1)}, {vr(o)}\nv_mov_b32 {vr(c2+2)}, {vr(o+1)}\nv_mov_b32 {vr(c2+3)}, {vr(o+2)}")
    a(f"v_mov_b32 {vr(c3+2)}, {vr(c1+1)}\nv_mov_b32 {vr(c3+3)}, {vr(c1+2)}")
    a("s_waitcnt lgkmcnt(0)")
    a(f"v_alignbit_b32 {vr(c1)}, {vr(o)}, {vr(m0+1)}, 16\nv_mov_b32 {vr(c2)}, {vr(m0+1)}\nv_alignbit_b32 {vr(c3)}, {vr(m0+1)}, {vr(m0)}, 16\nv_mov_b32 {vr(c3+1)}, {vr(c1)}")
    a(f"ds_write_b128 {vr(vKw)}, {vr(c1,4)} offset:{KS}\nds_write_b128 {vr(vKw)}, {vr(c2,4)} offset:{2*KS}\nds_write_b128 {vr(vKw)}, {vr(c3,4)} offset:{3*KS}")
    a("s_waitcnt lgkmcnt(0)\ns_barrier")
    for rs in range(2):
        order = []
        def pairs(gg):
            prs = [(gg, h) for h in range(gg+1)] + [(ga, gg) for ga in range(gg)]
            for (ga, hb) in prs:
                if ga + hb <= 7:
                    c = ga + hb
                    cin = "0" if (rs == 0 and not any((x_+y_) == c for (x_,y_) in order)) else vr(acc+4*c,4)
                    order.append((ga,hb))
                    a(f"v_mfma_f32_16x16x32_bf16 {vr(acc+4*c,4)}, {vr(A+4*ga,4)}, {vr(B+4*hb,4)}, {cin}")
        for g in range(8):
            a(f"ds_read_b64_tr_b16 {vr(A+4*g,2)}, {vr(vKA)} offset:{512*g + 64*rs + 8}")
            a(f"ds_read_b64_tr_b16 {vr(A+4*g+2,2)}, {vr(vKA)} offset:{512*g + 64*rs}")
            a(f"ds_read_b128 {vr(B+4*g,4)}, {vr(vKB)} offset:{512*g + 64*(1-rs)}")
            if g >= 1:
                a("s_waitcnt lgkmcnt(3)")
                pairs(g-1)
        a("s_waitcnt lgkmcnt(0)")
        pairs(7)
        assert len(order) == 36
    a("s_nop 7")
    for c in range(8): a(f"ds_write_b128 {vr(vXw)}, {vr(acc+4*c,4)} offset:{c*4096}")
    a("s_waitcnt lgkmcnt(0)\ns_barrier")
    for cc in range(2):
        for w in range(4): a(f"ds_read_b128 {vr(A+16*cc+4*w,4)}, {vr(vXr)} offset:{cc*4096 + w*1024}")
    a(f"s_add_u32 s{sY2}, s{sY}, {4*57344}")
    for cc in range(2):
        a(f"s_waitcnt lgkmcnt({4*(1-cc)})")
        b = A+16*cc
        for e in range(4):
            a(f"v_add_f32 {vr(b+e)}, {vr(b+e)}, {vr(b+4+e)}\nv_add_f32 {vr(b+8+e)}, {vr(b+8+e)}, {vr(b+12+e)}")
        for e in range(4): a(f"v_add_f32 {vr(b+e)}, {vr(b+e)}, {vr(b+8+e)}")
        a(f"v_cvt_pk_bf16_f32 {vr(b)}, {vr(b)}, {vr(b+1)}\nv_cvt_pk_bf16_f32 {vr(b+1)}, {vr(b+2)}, {vr(b+3)}")
        a(f"buffer_store_dwordx2 {vr(b,2)}, {vr(vYo)}, {sr(sWS,4)}, s{sY if cc == 0 else sY2} offen sc1")
    for e in range(4): a(f"v_mov_b32 {vr(vU[0]+e)}, {vr(vU[1]+e)}")
    a(f"v_add_u32 {vr(vRa)}, {TSZ}, {vr(vRa)}\nv_add_u32 {vr(vFa)}, {TSZ}, {vr(vFa)}\ns_add_u32 s{sY}, s{sY}, 128")
    a("s_barrier")
    a(f"s_add_u32 s{sch}, s{sch}, 1\ns_cmp_lt_u32 s{sch}, 2\ns_cbranch_scc1 {lBm}")
    ST.stamp()
    a("s_waitcnt vmcnt(0)\ns_barrier")
    a(f"s_lshl_b32 s{st[0]}, s{sa}, 3\ns_add_u32 s{st[0]}, s{st[0]}, {F_YF}")
    set_flag(a, vt, sWS, st[0], sN, vl, sw)
    a("s_waitcnt vmcnt(0)")
    ST.stamp()
    ST.flush(sWS, WS_STAMP, vt0, 2*((st[0]+1)//2), 2)
    a(f"s_branch {end}")
    return V.hi, S.hi
```

```python
from asm import *
from common import *
from roles_small import nonce_issue, nonce_finish, tag_check_loop, set_flag

def role_g(a, s0, ST, end, depth=5, opts={}):
    V = Regs("v", 1, 256); S = Regs("s", s0, 96)
    sX = S.alloc(4,4); sW1 = S.alloc(4,4); sWS = S.alloc(4,4); sB1 = S.alloc(4,4); sDB = S.alloc(4,4)
    pB2 = S.alloc(2,2); pO = S.alloc(2,2); sN = S.alloc(2,2)
    sw = S.alloc(); swf = S.alloc(); swt = S.alloc(); si = S.alloc(); sj = S.alloc(); sid = S.alloc()
    st = [S.alloc() for _ in range(6)]
    a(f"s_setprio {opts.get('gprio', 3)}")
    a(f"s_load_dwordx2 {sr(sX,2)}, s[0:1], 0\ns_load_dwordx2 {sr(sW1,2)}, s[0:1], 80\ns_load_dwordx2 {sr(sB1,2)}, s[0:1], 88")
    a(f"s_load_dwordx2 {sr(sWS,2)}, s[0:1], 128\ns_load_dwordx2 {sr(sDB,2)}, s[0:1], 120\ns_load_dwordx2 {sr(pB2,2)}, s[0:1], 104\ns_load_dwordx2 {sr(pO,2)}, s[0:1], 112")
    vl = V.alloc(); vt = V.alloc(4,2); vt0, vt1, vt2, vt3 = vt, vt+1, vt+2, vt+3
    a(f"v_lshrrev_b32 {vr(vt0)}, 6, v0\nv_and_b32 {vr(vl)}, 63, v0\nv_readfirstlane_b32 s{sw}, {vr(vt0)}")
    a(f"s_sub_u32 s{sid}, s2, {ID_G}")
    a(f"s_and_b32 s{st[0]}, s{sid}, 7\ns_lshr_b32 s{st[1]}, s{sid}, 3")
    a(f"s_lshr_b32 s{st[2]}, s{st[0]}, 1\ns_lshl_b32 s{st[2]}, s{st[2]}, 2\ns_and_b32 s{st[3]}, s{st[1]}, 3\ns_add_u32 s{si}, s{st[2]}, s{st[3]}")
    a(f"s_and_b32 s{st[2]}, s{st[0]}, 1\ns_mul_i32 s{st[2]}, s{st[2]}, 7\ns_lshr_b32 s{st[3]}, s{st[1]}, 2\ns_add_u32 s{sj}, s{st[2]}, s{st[3]}")
    a(f"s_and_b32 s{swf}, s{sw}, 1\ns_lshr_b32 s{swt}, s{sw}, 1")
    vXo = V.alloc(); vWo = V.alloc()
    a(f"v_lshrrev_b32 {vr(vt0)}, 2, {vr(vl)}\nv_and_b32 {vr(vt1)}, 3, {vr(vl)}\nv_lshrrev_b32 {vr(vt2)}, 4, {vr(vl)}\nv_xor_b32 {vr(vt1)}, {vr(vt1)}, {vr(vt2)}")
    a(f"s_lshl_b32 s{st[0]}, s{sw}, 5\ns_lshl_b32 s{st[1]}, s{si}, 7\ns_add_u32 s{st[0]}, s{st[0]}, s{st[1]}")
    a(f"v_add_u32 {vr(vt0)}, s{st[0]}, {vr(vt0)}\nv_mul_u32_u24 {vr(vt0)}, 896, {vr(vt0)}\nv_lshl_add_u32 {vr(vXo)}, {vr(vt1)}, 4, {vr(vt0)}")
    a(f"v_and_b32 {vr(vt1)}, 15, {vr(vl)}\nv_lshlrev_b32 {vr(vt3)}, 2, {vr(vt2)}\nv_xor_b32 {vr(vt1)}, {vr(vt1)}, {vr(vt3)}")
    a(f"s_lshl_b32 s{st[0]}, s{sw}, 3\nv_add_u32 {vr(vt2)}, s{st[0]}, {vr(vt2)}\nv_mul_u32_u24 {vr(vt2)}, 3584, {vr(vt2)}\nv_lshl_add_u32 {vr(vWo)}, {vr(vt1)}, 4, {vr(vt2)}")
    a(f"s_lshl_b32 s{st[1]}, s{sj}, 8\nv_add_u32 {vr(vWo)}, s{st[1]}, {vr(vWo)}")
    sM0 = S.alloc(); sXs = S.alloc(); sWs = S.alloc(); sCur = S.alloc(); sD = S.alloc(); sCnt = S.alloc()
    a(f"s_lshl_b32 s{sM0}, s{sw}, 11\ns_mov_b32 s{sXs}, 0\ns_mov_b32 s{sWs}, 0")
    a("s_waitcnt lgkmcnt(0)")
    srd_fix(a, sX, X_BYTES); srd_fix(a, sW1, W_BYTES); srd_fix(a, sDB, 256); srd_fix(a, sB1, 3584)
    vN = V.alloc(2,2); vz = V.alloc(); vB1 = V.alloc()
    def dma(slot_expr):
        for (o, vo, srdr, ss, add) in ((0, vXo, sX, sXs, 0), (1024, vXo, sX, sXs, 14336), (8192, vWo, sW1, sWs, 0), (9216, vWo, sW1, sWs, 14336)):
            if isinstance(slot_expr, int): a(f"s_add_u32 m0, s{sM0}, {slot_expr+o}")
            else: a(f"s_add_u32 s{st[4]}, s{sM0}, {slot_expr}\ns_add_u32 m0, s{st[4]}, {o}")
            if add: a(f"s_add_u32 s{st[5]}, s{ss}, {add}"); so = st[5]
            else: a("s_nop 0"); so = ss
            a(f"buffer_load_dwordx4 {vr(vo)}, {sr(srdr,4)}, s{so} offen lds")
        a(f"s_add_u32 s{sXs}, s{sXs}, 64\ns_add_u32 s{sWs}, s{sWs}, 114688")
    dma(0)
    nonce_issue(a, vN, vz, sDB)
    a(f"v_and_b32 {vr(vt0)}, 31, {vr(vl)}\nv_lshlrev_b32 {vr(vt0)}, 2, {vr(vt0)}\ns_lshl_b32 s{st[0]}, s{sj}, 8\ns_lshl_b32 s{st[1]}, s{swf}, 7\ns_add_u32 s{st[0]}, s{st[0]}, s{st[1]}")
    a(f"buffer_load_dword {vr(vB1)}, {vr(vt0)}, {sr(sB1,4)}, s{st[0]} offen")
    for s in range(1,4): dma(s*16384)
    srd_fix(a, sWS, WS_SIZE)
    vA = [V.alloc(), V.alloc()]; vB = [V.alloc(), V.alloc()]
    vg = vt0; vr_ = vt1; vcq = vt2
    a(f"v_lshrrev_b32 {vr(vg)}, 4, {vr(vl)}\nv_bfe_u32 {vr(vr_)}, {vr(vl)}, 2, 2\nv_and_b32 {vr(vcq)}, 3, {vr(vl)}")
    a(f"v_and_b32 {vr(vt3)}, 1, {vr(vg)}\nv_lshlrev_b32 {vr(vt3)}, 1, {vr(vt3)}\nv_lshrrev_b32 {vr(vA[0])}, 1, {vr(vcq)}\nv_add_u32 {vr(vt3)}, {vr(vt3)}, {vr(vA[0])}")
    a(f"s_lshl_b32 s{st[0]}, s{swf}, 3\nv_add_u32 {vr(vt3)}, s{st[0]}, {vr(vt3)}")
    a(f"v_lshlrev_b32 {vr(vA[0])}, 2, {vr(vr_)}\nv_xor_b32 {vr(vt3)}, {vr(vt3)}, {vr(vA[0])}")
    a(f"v_lshlrev_b32 {vr(vt3)}, 4, {vr(vt3)}")
    a(f"v_and_b32 {vr(vcq)}, 1, {vr(vcq)}\nv_lshl_add_u32 {vr(vt3)}, {vr(vcq)}, 3, {vr(vt3)}")
    a(f"v_lshrrev_b32 {vr(vg)}, 1, {vr(vg)}\nv_lshl_add_u32 {vr(vg)}, {vr(vg)}, 3, {vr(vr_)}")
    a(f"v_lshl_add_u32 {vr(vt3)}, {vr(vg)}, 8, {vr(vt3)}")
    a(f"v_add_u32 {vr(vA[0])}, 8192, {vr(vt3)}\nv_xor_b32 {vr(vA[1])}, 64, {vr(vA[0])}")
    vT = V.alloc()
    a(f"v_and_b32 {vr(vT)}, 31, {vr(vl)}\ns_lshl_b32 s{st[0]}, s{swt}, 6\nv_add_u32 {vr(vT)}, s{st[0]}, {vr(vT)}")
    a(f"v_bfe_u32 {vr(vt0)}, {vr(vT)}, 2, 2\nv_lshrrev_b32 {vr(vt1)}, 5, {vr(vl)}\nv_xor_b32 {vr(vt0)}, {vr(vt0)}, {vr(vt1)}\nv_lshlrev_b32 {vr(vt0)}, 4, {vr(vt0)}")
    a(f"v_lshl_add_u32 {vr(vB[0])}, {vr(vT)}, 6, {vr(vt0)}\nv_xor_b32 {vr(vB[1])}, 32, {vr(vB[0])}")
    acc = V.alloc(64,4)
    fr = [dict(A=[V.alloc(4,2), V.alloc(4,2)], B=[V.alloc(4,2), V.alloc(4,2)]) for _ in range(2)]
    def reads(ks, k):
        f = fr[k]
        for fb in range(2):
            a(f"ds_read_b64_tr_b16 {vr(f['A'][fb],2)}, {vr(vA[fb])} offset:{ks*4096}")
            a(f"ds_read_b64_tr_b16 {vr(f['A'][fb]+2,2)}, {vr(vA[fb])} offset:{ks*4096+1024}")
            a(f"ds_read_b128 {vr(f['B'][fb],4)}, {vr(vB[ks])} offset:{fb*2048}")
    def mfmas(k, zero=False):
        f = fr[k]
        for fb in range(2):
            for tb in range(2):
                d = acc + 32*tb + 16*fb
                a(f"v_mfma_f32_32x32x16_bf16 {vr(d,16)}, {vr(f['A'][fb],4)}, {vr(f['B'][tb],4)}, {'0' if zero else vr(d,16)}")
    def advance():
        a(f"s_add_u32 s{sD}, s{sCur}, 16384\ns_cmp_eq_u32 s{sD}, 81920\ns_cselect_b32 s{sD}, 0, s{sD}\ns_sub_u32 s{st[3]}, s{sD}, s{sCur}")
        for r in vA+vB: a(f"v_add_u32 {vr(r)}, s{st[3]}, {vr(r)}")
    a(f"s_mov_b32 s{sCur}, 0")
    for i in range(64): a(f"v_mov_b32 {vr(acc+i)}, 0")
    ST.stamp()
    a("s_waitcnt vmcnt(14)\ns_barrier")
    ST.stamp()
    reads(0, 0)
    def rd_list(ks, k):
        f = fr[k]; L = []
        for fb in range(2):
            L.append(f"ds_read_b64_tr_b16 {vr(f['A'][fb],2)}, {vr(vA[fb])} offset:{ks*4096}")
            L.append(f"ds_read_b64_tr_b16 {vr(f['A'][fb]+2,2)}, {vr(vA[fb])} offset:{ks*4096+1024}")
            L.append(f"ds_read_b128 {vr(f['B'][fb],4)}, {vr(vB[ks])} offset:{fb*2048}")
        return L
    def mf(k, fb, tb):
        f = fr[k]; d = acc + 32*tb + 16*fb
        a(f"v_mfma_f32_32x32x16_bf16 {vr(d,16)}, {vr(f['A'][fb],4)}, {vr(f['B'][tb],4)}, {vr(d,16)}")
    sX1 = S.alloc(); sW1o = S.alloc(); sMs = S.alloc(); sDs = S.alloc()
    a(f"s_mov_b32 s{sDs}, 65536")
    def stage(dodma, vmn, hook=None, last=False, par=0):
        R1 = rd_list(1, 1); R0 = rd_list(0, 0)
        D = []
        if dodma:
            D = [f"s_mov_b32 m0, s{sMs}\ns_add_u32 s{sX1}, s{sXs}, 14336\nbuffer_load_dwordx4 {vr(vXo)}, {sr(sX,4)}, s{sXs} offen lds",
                 f"s_add_u32 m0, s{sMs}, 1024\ns_add_u32 s{sXs}, s{sXs}, 64\nbuffer_load_dwordx4 {vr(vXo)}, {sr(sX,4)}, s{sX1} offen lds",
                 f"s_add_u32 m0, s{sMs}, 8192\ns_add_u32 s{sW1o}, s{sWs}, 14336\nbuffer_load_dwordx4 {vr(vWo)}, {sr(sW1,4)}, s{sWs} offen lds",
                 f"s_add_u32 m0, s{sMs}, 9216\ns_add_u32 s{sWs}, s{sWs}, 114688\nbuffer_load_dwordx4 {vr(vWo)}, {sr(sW1,4)}, s{sW1o} offen lds"]
        def gap(g):
            if dodma and (g & 1) == par: a(D[g >> 1])
        if dodma: a(f"s_add_u32 s{sMs}, s{sM0}, s{sDs}")
        a("s_waitcnt lgkmcnt(3)"); mf(0,0,0)
        a(R1[0]); a(R1[1]); a(R1[2]); gap(0)
        a("s_waitcnt lgkmcnt(4)"); mf(0,1,0)
        a(R1[3]); a(R1[4]); a(R1[5]); gap(1)
        a("s_waitcnt lgkmcnt(6)"); mf(0,0,1)
        if not last: a(f"s_add_u32 s{sD}, s{sCur}, 16384\ns_cmp_eq_u32 s{sD}, 81920\ns_cselect_b32 s{sD}, 0, s{sD}")
        gap(2)
        mf(0,1,1)
        if hook: hook()
        if not last: a(f"s_sub_u32 s{st[3]}, s{sD}, s{sCur}\ns_mov_b32 s{sCur}, s{sD}")
        gap(3)
        a("s_waitcnt lgkmcnt(0)")
        if not last: a(f"s_waitcnt vmcnt({vmn})")
        mf(1,0,0)
        if not last:
            a("s_barrier")
            for r in vA+vB: a(f"v_add_u32 {vr(r)}, s{st[3]}, {vr(r)}")
            a(R0[0])
        gap(4)
        mf(1,1,0)
        if not last: a(R0[1]); a(R0[2])
        gap(5)
        mf(1,0,1)
        if not last: a(R0[3]); a(R0[4])
        if dodma: a(f"s_add_u32 s{sDs}, s{sDs}, 16384\ns_cmp_eq_u32 s{sDs}, 81920\ns_cselect_b32 s{sDs}, 0, s{sDs}")
        gap(6)
        mf(1,1,1)
        if not last: a(R0[5])
        gap(7)
    lodd = a.newlabel("G1_odd"); ljoin = a.newlabel("G1_join")
    a(f"s_mov_b32 s{sCnt}, 10\ns_cmp_eq_u32 s{swf}, 1\ns_cbranch_scc1 {lodd}")
    for par in range(2):
        if par: a.label(lodd)
        lp = a.newlabel("G1_lp")
        a.label(lp)
        stage(True, 10, par=par)
        a(f"s_sub_u32 s{sCnt}, s{sCnt}, 1\ns_cmp_lg_u32 s{sCnt}, 0\ns_cbranch_scc1 {lp}")
        if par == 0: a(f"s_branch {ljoin}")
    a.label(ljoin)
    vS = [V.alloc(4,4), V.alloc(4,4)]; vC = V.alloc(4,4); vSo = V.alloc(); vCo = V.alloc()
    def ld_stats():
        for tb in range(2):
            a(f"buffer_load_dwordx4 {vr(vS[tb],4)}, {vr(vSo)}, {sr(sWS,4)}, 0 offen offset:{512*tb} sc1")
        a(f"buffer_load_dwordx4 {vr(vC,4)}, {vr(vCo)}, {sr(sWS,4)}, 0 offen sc1")
    def hook9():
        a(f"s_lshl_b32 s{st[0]}, s{si}, 7\nv_add_u32 {vr(vSo)}, s{st[0]}, {vr(vT)}\nv_lshlrev_b32 {vr(vSo)}, 4, {vr(vSo)}\nv_add_u32 {vr(vSo)}, {WS_STATS}, {vr(vSo)}")
        a(f"v_and_b32 {vr(vCo)}, 31, {vr(vl)}\ns_lshl_b32 s{st[0]}, s{sj}, 6\ns_lshl_b32 s{st[1]}, s{swf}, 5\ns_add_u32 s{st[0]}, s{st[0]}, s{st[1]}\nv_add_u32 {vr(vCo)}, s{st[0]}, {vr(vCo)}\nv_lshlrev_b32 {vr(vCo)}, 4, {vr(vCo)}\nv_add_u32 {vr(vCo)}, {WS_CS}, {vr(vCo)}")
        ld_stats()
    stage(False, 8, None)
    stage(False, 4+3, hook9)
    stage(False, 0+3, None)
    stage(False, 0, None, last=True)
    ST.stamp()
    a("s_waitcnt vmcnt(0)")
    nonce_finish(a, vN, vz, sDB, sN, st[2])
    tag_check_loop(a, [(vS[0]+2, vS[0]+3), (vS[1]+2, vS[1]+3), (vC+2, vC+3)], ld_stats, sN, st[2])
    ST.stamp()
    a(f"v_and_b32 {vr(vt0)}, 31, {vr(vl)}\nv_lshlrev_b32 {vr(vt0)}, 3, {vr(vt0)}\ns_lshl_b32 s{st[0]}, s{sw}, 10\ns_add_u32 s{st[0]}, s{st[0]}, 65536\nv_add_u32 {vr(vt0)}, s{st[0]}, {vr(vt0)}")
    a(f"ds_write_b64 {vr(vt0)}, {vr(vC,2)}")
    a(f"v_lshlrev_b32 {vr(vt2)}, 16, {vr(vB1)}\nv_and_b32 {vr(vt3)}, 0xffff0000, {vr(vB1)}\nds_write_b64 {vr(vt0)}, {vr(vt2,2)} offset:256")
    vcs = V.alloc(32,4); vb1 = V.alloc(32,4)
    a(f"v_lshrrev_b32 {vr(vt0)}, 5, {vr(vl)}\nv_lshlrev_b32 {vr(vt0)}, 4, {vr(vt0)}\nv_add_u32 {vr(vt0)}, s{st[0]}, {vr(vt0)}")
    for q in range(8):
        a(f"ds_read_b128 {vr(vcs+4*q,4)}, {vr(vt0)} offset:{32*q}\nds_read_b128 {vr(vb1+4*q,4)}, {vr(vt0)} offset:{256+32*q}")
    vHo = V.alloc(); sH = S.alloc()
    a(f"s_lshl_b32 s{st[0]}, s{si}, 2\ns_lshl_b32 s{st[1]}, s{swt}, 1\ns_add_u32 s{st[0]}, s{st[0]}, s{st[1]}\ns_mul_i32 s{st[0]}, s{st[0]}, 112\ns_lshl_b32 s{st[1]}, s{sj}, 3\ns_add_u32 s{st[0]}, s{st[0]}, s{st[1]}\ns_lshl_b32 s{st[1]}, s{swf}, 2\ns_add_u32 s{st[0]}, s{st[0]}, s{st[1]}\ns_lshl_b32 s{sH}, s{st[0]}, 10")
    a(f"v_lshlrev_b32 {vr(vHo)}, 4, {vr(vl)}")
    vK = V.alloc(4,2); vC0 = vK; vC1 = vK+1; vOne = vK+2; vMR = V.alloc(2,2); vMr = vMR; vRs = vMR+1
    a(f"v_mov_b32 {vr(vC0)}, {fhex(GELU_C0)}\nv_mov_b32 {vr(vC1)}, {fhex(GELU_C1)}\nv_mov_b32 {vr(vOne)}, 1.0\nv_mov_b32 {vr(vMr)}, {vr(vS[0])}\nv_mov_b32 {vr(vRs)}, {vr(vS[0]+1)}")
    hv = V.alloc(8,4); p = V.alloc(8,4); vH = [V.alloc(4,4), V.alloc(4,4)]
    sIt = S.alloc(); sIa = S.alloc(); sIc = S.alloc()
    a(f"s_mov_b32 s{sIt}, 0\ns_mov_b32 s{sIa}, 0\ns_mov_b32 s{sIc}, 0\ns_waitcnt lgkmcnt(0)")
    gl = a.newlabel("G1_ge")
    a.label(gl)
    PK = opts.get("pk", 1)
    for half in range(2):
        a(f"s_set_gpr_idx_on s{sIc}, gpr_idx(SRC1,SRC2)\ns_nop 0")
        if PK:
            for e in range(0,8,2): a(f"v_pk_fma_f32 {vr(hv+e,2)}, {vr(vMR,2)}, {vr(vcs+e,2)}, {vr(vb1+e,2)} op_sel:[0,0,0] op_sel_hi:[0,1,1] neg_lo:[1,0,0] neg_hi:[1,0,0]")
        else:
            for e in range(8): a(f"v_fma_f32 {vr(hv+e)}, -{vr(vMr)}, {vr(vcs+e)}, {vr(vb1+e)}")
        a(f"s_set_gpr_idx_on s{sIa}, gpr_idx(SRC0)\ns_nop 0")
        if PK:
            for e in range(0,8,2): a(f"v_pk_fma_f32 {vr(hv+e,2)}, {vr(acc+e,2)}, {vr(vMR,2)}, {vr(hv+e,2)} op_sel:[0,1,0] op_sel_hi:[1,1,1]")
        else:
            for e in range(8): a(f"v_fmac_f32 {vr(hv+e)}, {vr(acc+e)}, {vr(vRs)}")
        a("s_set_gpr_idx_off\ns_nop 0")
        if PK:
            for e in range(0,8,2): a(f"v_pk_mul_f32 {vr(p+e,2)}, {vr(hv+e,2)}, {vr(hv+e,2)}")
            for e in range(0,8,2): a(f"v_pk_fma_f32 {vr(p+e,2)}, {vr(p+e,2)}, {vr(vK,2)}, {vr(vK,2)} op_sel:[0,1,0] op_sel_hi:[1,1,0]")
            for e in range(0,8,2): a(f"v_pk_mul_f32 {vr(p+e,2)}, {vr(p+e,2)}, {vr(hv+e,2)}")
            for e in range(8): a(f"v_exp_f32 {vr(p+e)}, {vr(p+e)}")
            for e in range(0,8,2): a(f"v_pk_add_f32 {vr(p+e,2)}, {vr(p+e,2)}, {vr(vK+2,2)} op_sel:[0,0] op_sel_hi:[1,0]")
            for e in range(8): a(f"v_rcp_f32 {vr(p+e)}, {vr(p+e)}")
            for e in range(0,8,2): a(f"v_pk_mul_f32 {vr(hv+e,2)}, {vr(hv+e,2)}, {vr(p+e,2)}")
        else:
            for e in range(8): a(f"v_mul_f32 {vr(p+e)}, {vr(hv+e)}, {vr(hv+e)}")
            for e in range(8): a(f"v_fma_f32 {vr(p+e)}, {vr(p+e)}, {vr(vC1)}, {vr(vC0)}")
            for e in range(8): a(f"v_mul_f32 {vr(p+e)}, {vr(p+e)}, {vr(hv+e)}")
            for e in range(8): a(f"v_exp_f32 {vr(p+e)}, {vr(p+e)}")
            for e in range(8): a(f"v_add_f32 {vr(p+e)}, 1.0, {vr(p+e)}")
            for e in range(8): a(f"v_rcp_f32 {vr(p+e)}, {vr(p+e)}")
            for e in range(8): a(f"v_mul_f32 {vr(hv+e)}, {vr(hv+e)}, {vr(p+e)}")
        for q in range(4): a(f"v_cvt_pk_bf16_f32 {vr(vH[half]+q)}, {vr(hv+2*q)}, {vr(hv+2*q+1)}")
        a(f"buffer_store_dwordx4 {vr(vH[half],4)}, {vr(vHo)}, {sr(sWS,4)}, s{sH} offen {'' if opts.get('hplain') else 'sc1'}")
        a(f"s_add_u32 s{sH}, s{sH}, 1024\ns_add_u32 s{sIa}, s{sIa}, 8\ns_add_u32 s{sIc}, s{sIc}, 8")
    lnt = a.newlabel("G1_nt")
    a(f"s_add_u32 s{sIt}, s{sIt}, 2\ns_cmp_lg_u32 s{sIt}, 4\ns_cbranch_scc1 {lnt}")
    a(f"s_mov_b32 s{sIc}, 0\ns_add_u32 s{sH}, s{sH}, {114688-4096}\nv_mov_b32 {vr(vMr)}, {vr(vS[1])}\nv_mov_b32 {vr(vRs)}, {vr(vS[1]+1)}")
    a.label(lnt)
    a(f"s_cmp_lt_u32 s{sIt}, 8\ns_cbranch_scc1 {gl}")
    ST.stamp()
    a("s_waitcnt vmcnt(0)")
    if opts.get("fine"): ST.stamp()
    a("s_barrier")
    a(f"s_lshl_b32 s{st[0]}, s{si}, 7\ns_lshl_b32 s{st[1]}, s{sj}, 3\ns_add_u32 s{st[0]}, s{st[0]}, s{st[1]}\ns_add_u32 s{st[0]}, s{st[0]}, {F_HF}")
    set_flag(a, vt, sWS, st[0], sN, vl, sw)
    ST.stamp()
    V.n = vT+1
    sO = sW1; sB2 = sB1
    srd(a, sO, pO, X_BYTES); srd(a, sB2, pB2, 896)
    stt = S.alloc(); sdt = S.alloc(); sdb = S.alloc(); stb = S.alloc()
    a(f"s_and_b32 s{stt}, s{sid}, 31\ns_lshr_b32 s{sdt}, s{sid}, 5\ns_lshr_b32 s{sdb}, s{sw}, 1\ns_and_b32 s{stb}, s{sw}, 1")
    gA = [V.alloc(), V.alloc()]; gB = [V.alloc(), V.alloc()]
    a(f"v_lshlrev_b32 {vr(vt0)}, 4, {vr(vl)}\ns_mul_i32 s{st[0]}, s{sw}, {28*1024}")
    for i in range(2):
        a(f"s_xor_b32 s{st[1]}, s{sdb}, {i}\ns_lshl_b32 s{st[2]}, s{sdt}, 1\ns_add_u32 s{st[1]}, s{st[1]}, s{st[2]}\ns_mul_i32 s{st[1]}, s{st[1]}, 114688\ns_add_u32 s{st[1]}, s{st[1]}, s{st[0]}\ns_add_u32 s{st[1]}, s{st[1]}, {WS_W2T}")
        a(f"v_add_u32 {vr(gA[i])}, s{st[1]}, {vr(vt0)}")
        a(f"s_xor_b32 s{st[1]}, s{stb}, {i}\ns_lshl_b32 s{st[2]}, s{stt}, 1\ns_add_u32 s{st[1]}, s{st[1]}, s{st[2]}\ns_mul_i32 s{st[1]}, s{st[1]}, 114688\ns_add_u32 s{st[1]}, s{st[1]}, s{st[0]}")
        a(f"v_add_u32 {vr(gB[i])}, s{st[1]}, {vr(vt0)}")
    vx = V.alloc(8,2); vb2 = V.alloc(8,2); vXo2 = V.alloc(); vYo = V.alloc(); vFo = V.alloc(); vFl = V.alloc(2,2); vF2 = V.alloc(2,2); vF2o = V.alloc()
    sd0 = S.alloc(); st0 = S.alloc()
    a(f"s_lshl_b32 s{sd0}, s{sdt}, 6\ns_lshl_b32 s{st[0]}, s{sdb}, 5\ns_add_u32 s{sd0}, s{sd0}, s{st[0]}")
    a(f"s_lshl_b32 s{st0}, s{stt}, 6\ns_lshl_b32 s{st[0]}, s{stb}, 5\ns_add_u32 s{st0}, s{st0}, s{st[0]}")
    a(f"v_and_b32 {vr(vt0)}, 31, {vr(vl)}\nv_lshrrev_b32 {vr(vt1)}, 5, {vr(vl)}")
    a(f"v_add_u32 {vr(vt2)}, s{st0}, {vr(vt0)}\nv_mul_u32_u24 {vr(vt2)}, 896, {vr(vt2)}\nv_lshl_add_u32 {vr(vt2)}, {vr(vt1)}, 3, {vr(vt2)}\ns_lshl_b32 s{st[0]}, s{sd0}, 1\nv_add_u32 {vr(vXo2)}, s{st[0]}, {vr(vt2)}")
    for g in range(4): a(f"buffer_load_dwordx2 {vr(vx+2*g,2)}, {vr(vXo2)}, {sr(sX,4)}, 0 offen offset:{16*g}")
    a(f"v_lshlrev_b32 {vr(vt2)}, 3, {vr(vt1)}\nv_add_u32 {vr(vt2)}, s{st[0]}, {vr(vt2)}")
    for g in range(4): a(f"buffer_load_dwordx2 {vr(vb2+2*g,2)}, {vr(vt2)}, {sr(sB2,4)}, 0 offen offset:{16*g}")
    a(f"v_and_b32 {vr(vt2)}, 30, {vr(vt0)}\nv_lshlrev_b32 {vr(vt2)}, 1, {vr(vt2)}\nv_lshl_add_u32 {vr(vt2)}, {vr(vt1)}, 9, {vr(vt2)}")
    a(f"s_mul_i32 s{st[0]}, s{stt}, 57344\ns_lshl_b32 s{st[1]}, s{sd0}, 7\ns_add_u32 s{st[0]}, s{st[0]}, s{st[1]}\ns_lshl_b32 s{st[1]}, s{stb}, 6\ns_add_u32 s{st[0]}, s{st[0]}, s{st[1]}\ns_add_u32 s{st[0]}, s{st[0]}, {WS_Y}")
    a(f"v_add_u32 {vr(vYo)}, s{st[0]}, {vr(vt2)}")
    a(f"v_add_u32 {vr(vt2)}, s{sd0}, {vr(vt0)}\nv_lshrrev_b32 {vr(vt2)}, 1, {vr(vt2)}\nv_lshlrev_b32 {vr(vt2)}, 3, {vr(vt2)}\nv_add_u32 {vr(vF2o)}, {F_YF}, {vr(vt2)}")
    a(f"s_lshr_b32 s{st[0]}, s{stt}, 1\ns_lshl_b32 s{st[0]}, s{st[0]}, 7\ns_add_u32 s{st[0]}, s{st[0]}, {F_HF}\nv_min_u32 {vr(vt2)}, 13, {vr(vl)}\nv_lshlrev_b32 {vr(vt2)}, 3, {vr(vt2)}\nv_add_u32 {vr(vt2)}, s{st[0]}, {vr(vt2)}")
    a(f"s_lshl_b32 s{st[0]}, s{sdt}, 5\ns_add_u32 s{st[0]}, s{st[0]}, {F_WF}\nv_and_b32 {vr(vt3)}, 3, {vr(vl)}\nv_lshlrev_b32 {vr(vt3)}, 3, {vr(vt3)}\nv_add_u32 {vr(vt3)}, s{st[0]}, {vr(vt3)}")
    a(f"v_cmp_gt_u32 vcc, 16, {vr(vl)}\ns_nop 1\nv_cndmask_b32 {vr(vFo)}, {vr(vt3)}, {vr(vt2)}, vcc")
    def ld_hf(): a(f"buffer_load_dwordx2 {vr(vFl,2)}, {vr(vFo)}, {sr(sWS,4)}, 0 offen sc1")
    ld_hf()
    a("s_waitcnt vmcnt(0)")
    if not opts.get("nohwait"): tag_check_loop(a, [(vFl, vFl+1)], ld_hf, sN, st[2])
    ST.stamp()
    ring = [V.alloc(16,4) for _ in range(depth)]
    gacc = [[V.alloc(16,4) for _ in range(2)] for _ in range(2)]
    vm = []
    sK = S.alloc()
    def loads(k):
        r = ring[k % depth]; off = (k % 4)*1024
        if k % 4 == 0: a(f"s_mov_b32 s{sK}, {(k//4)*4096}")
        for q, v in enumerate((gA[0], gB[0], gA[1], gB[1])):
            a(f"buffer_load_dwordx4 {vr(r+4*q,4)}, {vr(v)}, {sr(sWS,4)}, s{sK} offen offset:{off} sc1"); vm.append(("k",k))
    def wait_for(tag):
        last = max(i for i,e in enumerate(vm) if e == tag)
        a(f"s_waitcnt vmcnt({len(vm)-1-last})")
    for k in range(depth-1): loads(k)
    first = [[True,True],[True,True]]
    NK = 28
    def ld_yf(): a(f"buffer_load_dwordx2 {vr(vF2,2)}, {vr(vF2o)}, {sr(sWS,4)}, 0 offen sc1")
    for k in range(NK):
        if k + depth - 1 < NK: loads(k + depth - 1)
        wait_for(("k",k))
        r = ring[k % depth]
        for i in range(2):
            for j in range(2):
                c = "0" if first[i][j] else vr(gacc[i][j],16)
                first[i][j] = False
                a(f"v_mfma_f32_32x32x16_bf16 {vr(gacc[i][j],16)}, {vr(r+8*i,4)}, {vr(r+4+8*j,4)}, {c}")
        if k == NK - depth:
            ld_yf(); vm.append("fl")
    ST.stamp()
    wait_for("fl")
    if not opts.get("skip_aux"): tag_check_loop(a, [(vF2, vF2+1)], ld_yf, sN, st[2])
    vy = ring[3]
    for g in range(4):
        for i in range(4):
            a(f"buffer_load_dword {vr(vy+4*g+i)}, {vr(vYo)}, {sr(sWS,4)}, 0 offen offset:{(8*g+i)*128} sc1")
    vXw = V.alloc(); vXr = V.alloc()
    a(f"v_lshlrev_b32 {vr(vt0)}, 4, {vr(vl)}")
    a("s_nop 7")
    for (i,j) in ((0,1),(1,0),(1,1)):
        sl = 2*i+j
        a(f"s_xor_b32 s{st[0]}, s{sw}, {sl}\ns_mul_i32 s{st[0]}, s{st[0]}, 12288\ns_add_u32 s{st[0]}, s{st[0]}, {(sl-1)*4096}\nv_add_u32 {vr(vXw)}, s{st[0]}, {vr(vt0)}")
        for q in range(4):
            a(f"ds_write_b128 {vr(vXw)}, {vr(gacc[i][j]+4*q,4)} offset:{1024*q}")
    a(f"s_mul_i32 s{st[0]}, s{sw}, 12288\nv_add_u32 {vr(vXr)}, s{st[0]}, {vr(vt0)}")
    a("s_waitcnt lgkmcnt(0)\ns_barrier")
    for sl in range(3):
        for q in range(4):
            a(f"ds_read_b128 {vr(ring[sl]+4*q,4)}, {vr(vXr)} offset:{sl*4096+1024*q}")
    o = gacc[0][0]
    for sl in range(3):
        a(f"s_waitcnt lgkmcnt({4*(2-sl)})")
        for e in range(16): a(f"v_add_f32 {vr(o+e)}, {vr(o+e)}, {vr(ring[sl]+e)}")
    tmp = ring[0]
    for g in range(4):
        for src in (vb2, vx):
            a(f"v_lshlrev_b32 {vr(tmp)}, 16, {vr(src+2*g)}\nv_and_b32 {vr(tmp+1)}, 0xffff0000, {vr(src+2*g)}\nv_lshlrev_b32 {vr(tmp+2)}, 16, {vr(src+2*g+1)}\nv_and_b32 {vr(tmp+3)}, 0xffff0000, {vr(src+2*g+1)}")
            for i in range(4): a(f"v_add_f32 {vr(o+4*g+i)}, {vr(o+4*g+i)}, {vr(tmp+i)}")
    a(f"v_and_b32 {vr(vt1)}, 1, {vr(vl)}\nv_xor_b32 {vr(vt1)}, 1, {vr(vt1)}\nv_lshlrev_b32 {vr(vt1)}, 4, {vr(vt1)}")
    a("s_waitcnt vmcnt(0)")
    ST.stamp()
    for e in range(16):
        a(f"v_lshlrev_b32 {vr(vy+e)}, {vr(vt1)}, {vr(vy+e)}\nv_and_b32 {vr(vy+e)}, 0xffff0000, {vr(vy+e)}\nv_add_f32 {vr(o+e)}, {vr(o+e)}, {vr(vy+e)}")
    for g in range(4):
        a(f"v_cvt_pk_bf16_f32 {vr(tmp+2*g)}, {vr(o+4*g)}, {vr(o+4*g+1)}\nv_cvt_pk_bf16_f32 {vr(tmp+2*g+1)}, {vr(o+4*g+2)}, {vr(o+4*g+3)}")
    for g in range(4):
        a(f"buffer_store_dwordx2 {vr(tmp+2*g,2)}, {vr(vXo2)}, {sr(sO,4)}, 0 offen offset:{16*g}")
    a("s_waitcnt vmcnt(0)")
    ST.stamp()
    ST.flush(sWS, WS_STAMP, vt0, 2*((st[0]+1)//2), 2)
    a(f"s_branch {end}")
    return V.hi, S.hi
```

```python
from asm import *
from common import *

def get_nonce(a, V, S, sDB, vtmp2, sN, write=False, screg=None):
    pass

def nonce_issue(a, vN, vz, sDB):
    a(f"v_mov_b32 {vr(vz)}, 0\nbuffer_load_dwordx2 {vr(vN,2)}, {vr(vz)}, {sr(sDB,4)}, 0 offen sc1")

def nonce_finish(a, vN, vz, sDB, sN, scnt):
    l0 = a.newlabel("NC_l"); l1 = a.newlabel("NC_ok")
    a(f"s_mov_b32 s{scnt}, {SPIN}")
    a.label(l0)
    a(f"v_readfirstlane_b32 s{sN}, {vr(vN)}\nv_readfirstlane_b32 s{sN+1}, {vr(vN+1)}\ns_nop 1\ns_cmp_lg_u32 s{sN}, 0\ns_cbranch_scc1 {l1}")
    a(f"s_sub_u32 s{scnt}, s{scnt}, 1\ns_cmp_eq_u32 s{scnt}, 0\ns_cbranch_scc1 {l1}")
    a(f"s_sleep 1\nbuffer_load_dwordx2 {vr(vN,2)}, {vr(vz)}, {sr(sDB,4)}, 0 offen sc1\ns_waitcnt vmcnt(0)\ns_branch {l0}")
    a.label(l1)

def tag_check_loop(a, tags, reload, sN, scnt):
    l0 = a.newlabel("TG_l"); l1 = a.newlabel("TG_ok")
    a(f"s_mov_b32 s{scnt}, {SPIN}")
    a.label(l0)
    first = True
    for (lo, hi) in tags:
        for r, s in ((lo, sN), (hi, sN+1)):
            if first: a(f"v_cmp_ne_u32 vcc, s{s}, {vr(r)}\ns_nop 1\ns_mov_b64 s[98:99], vcc"); first = False
            else: a(f"v_cmp_ne_u32 vcc, s{s}, {vr(r)}\ns_nop 1\ns_or_b64 s[98:99], s[98:99], vcc")
    a(f"s_cmp_eq_u64 s[98:99], 0\ns_cbranch_scc1 {l1}")
    a(f"s_sub_u32 s{scnt}, s{scnt}, 1\ns_cmp_eq_u32 s{scnt}, 0\ns_cbranch_scc1 {l1}")
    a("s_sleep 1")
    reload()
    a(f"s_waitcnt vmcnt(0)\ns_branch {l0}")
    a.label(l1)

def set_flag(a, vt, sWS, soff_expr_sreg, sN, vl, sw):
    l = a.newlabel("FL_s")
    a(f"s_cmp_lg_u32 s{sw}, 0\ns_cbranch_scc1 {l}")
    a(f"v_mov_b32 {vr(vt)}, s{sN}\nv_mov_b32 {vr(vt+1)}, s{sN+1}\nv_cmp_eq_u32 vcc, 0, {vr(vl)}\nv_mov_b32 {vr(vt+2)}, 0x7ff00000\nv_mov_b32 {vr(vt+3)}, 0\ns_nop 0\nv_cndmask_b32 {vr(vt+2)}, {vr(vt+2)}, {vr(vt+3)}, vcc")
    a(f"buffer_store_dwordx2 {vr(vt,2)}, {vr(vt+2)}, {sr(sWS,4)}, s{soff_expr_sreg} offen sc1")
    a.label(l)

def role_ln(a, s0, ST, end, opts={}):
    V = Regs("v", 1, 256); S = Regs("s", s0, 96)
    sX = S.alloc(4,4); sWS = S.alloc(4,4); sDB = S.alloc(4,4)
    pX = S.alloc(2,2); pWS = S.alloc(2,2); pDB = S.alloc(2,2); sN = S.alloc(2,2)
    sw = S.alloc(); st = [S.alloc() for _ in range(6)]
    a("s_setprio 2")
    a(f"s_load_dwordx2 {sr(pX,2)}, s[0:1], 0\ns_load_dwordx2 {sr(pWS,2)}, s[0:1], 128\ns_load_dwordx2 {sr(pDB,2)}, s[0:1], 120")
    vl = V.alloc(); vt = V.alloc(4,2); vt0, vt1, vt2, vt3 = vt, vt+1, vt+2, vt+3
    vXo = V.alloc(); vR = V.alloc(); vP = V.alloc(); vN = V.alloc(2,2); vz = V.alloc()
    a(f"v_lshrrev_b32 {vr(vt0)}, 6, v0\nv_and_b32 {vr(vl)}, 63, v0\nv_readfirstlane_b32 s{sw}, {vr(vt0)}")
    a(f"v_lshrrev_b32 {vr(vR)}, 2, {vr(vl)}\nv_and_b32 {vr(vP)}, 3, {vr(vl)}")
    a(f"s_lshl_b32 s{st[0]}, s2, 6\ns_lshl_b32 s{st[1]}, s{sw}, 4\ns_add_u32 s{st[0]}, s{st[0]}, s{st[1]}")
    a(f"v_add_u32 {vr(vt0)}, s{st[0]}, {vr(vR)}\nv_mul_u32_u24 {vr(vt0)}, 896, {vr(vt0)}\nv_lshl_add_u32 {vr(vXo)}, {vr(vP)}, 4, {vr(vt0)}")
    a("s_waitcnt lgkmcnt(0)")
    srd(a, sX, pX, X_BYTES); srd(a, sDB, pDB, 256)
    vx = V.alloc(56,4)
    for m in range(14):
        a(f"buffer_load_dwordx4 {vr(vx+4*m,4)}, {vr(vXo)}, {sr(sX,4)}, 0 offen offset:{64*m}")
    ln = a.newlabel("LN_nn")
    a(f"s_or_b32 s{st[1]}, s2, s{sw}\ns_cmp_lg_u32 s{st[1]}, 0\ns_cbranch_scc1 {ln}")
    a(f"s_memrealtime {sr(sN,2)}\ns_waitcnt lgkmcnt(0)\ns_or_b32 s{sN}, s{sN}, 1\nv_mov_b32 {vr(vN)}, s{sN}\nv_mov_b32 {vr(vN+1)}, s{sN+1}\nv_mov_b32 {vr(vz)}, 0")
    a(f"buffer_store_dwordx2 {vr(vN,2)}, {vr(vz)}, {sr(sDB,4)}, 0 offen sc1\ns_waitcnt vmcnt(0)")
    a.label(ln)
    nonce_issue(a, vN, vz, sDB)
    srd(a, sWS, pWS, WS_SIZE)
    ST.stamp()
    sOnes = S.alloc()
    a(f"s_mov_b32 s{sOnes}, 0x3f803f80")
    v1 = [V.alloc(), V.alloc()]; v2 = [V.alloc(), V.alloc()]
    for r in v1+v2: a(f"v_mov_b32 {vr(r)}, 0")
    LX = 0; L_MS = 64*912
    vLw = V.alloc()
    a(f"s_lshl_b32 s{st[1]}, s{sw}, 4\nv_add_u32 {vr(vt0)}, s{st[1]}, {vr(vR)}\nv_mul_u32_u24 {vr(vt0)}, 912, {vr(vt0)}\nv_lshl_add_u32 {vr(vLw)}, {vr(vP)}, 4, {vr(vt0)}")
    for m in range(14):
        a(f"s_waitcnt vmcnt({14-m})")
        for q in range(4):
            a(f"v_dot2c_f32_bf16 {vr(v2[q&1])}, {vr(vx+4*m+q)}, {vr(vx+4*m+q)}")
            a(f"v_dot2c_f32_bf16 {vr(v1[q&1])}, s{sOnes}, {vr(vx+4*m+q)}")
        a(f"ds_write_b128 {vr(vLw)}, {vr(vx+4*m,4)} offset:{LX+64*m}")
    a("s_nop 1")
    a(f"v_add_f32 {vr(v1[0])}, {vr(v1[0])}, {vr(v1[1])}\nv_add_f32 {vr(v2[0])}, {vr(v2[0])}, {vr(v2[1])}\ns_nop 1")
    for ctl in ("quad_perm:[1,0,3,2]", "quad_perm:[2,3,0,1]"):
        a(f"v_add_f32_dpp {vr(v1[0])}, {vr(v1[0])}, {vr(v1[0])} {ctl} row_mask:0xf bank_mask:0xf")
        a(f"v_add_f32_dpp {vr(v2[0])}, {vr(v2[0])}, {vr(v2[0])} {ctl} row_mask:0xf bank_mask:0xf")
        a("s_nop 1")
    vMean = v1[0]; vE2 = v2[0]
    g = V.alloc(4,4); vMr = g; vRstd = g+1
    inv = fhex(1.0/448)
    a(f"v_mul_f32 {vr(vMean)}, {inv}, {vr(vMean)}\nv_mul_f32 {vr(vE2)}, {inv}, {vr(vE2)}")
    a(f"v_fma_f32 {vr(vE2)}, -{vr(vMean)}, {vr(vMean)}, {vr(vE2)}\nv_max_f32 {vr(vE2)}, 0, {vr(vE2)}")
    a(f"v_cvt_pk_bf16_f32 {vr(vt2)}, {vr(vMean)}, {vr(vE2)}")
    a(f"v_lshlrev_b32 {vr(vMean)}, 16, {vr(vt2)}\nv_and_b32 {vr(vE2)}, 0xffff0000, {vr(vt2)}")
    a(f"v_add_f32 {vr(vE2)}, {fhex(1e-5)}, {vr(vE2)}\nv_cvt_pk_bf16_f32 {vr(vE2)}, {vr(vE2)}, {vr(vE2)}\nv_lshlrev_b32 {vr(vE2)}, 16, {vr(vE2)}")
    a(f"v_sqrt_f32 {vr(vE2)}, {vr(vE2)}\ns_nop 0\nv_cvt_pk_bf16_f32 {vr(vE2)}, {vr(vE2)}, {vr(vE2)}\nv_lshlrev_b32 {vr(vE2)}, 16, {vr(vE2)}")
    a(f"v_rcp_f32 {vr(vRstd)}, {vr(vE2)}\ns_nop 0\nv_mul_f32 {vr(vMr)}, {vr(vMean)}, {vr(vRstd)}")
    a("s_waitcnt vmcnt(0)")
    nonce_finish(a, vN, vz, sDB, sN, st[2])
    a(f"v_mov_b32 {vr(g+2)}, s{sN}\nv_mov_b32 {vr(g+3)}, s{sN+1}")
    a(f"v_add_u32 {vr(vt0)}, s{st[0]}, {vr(vR)}\nv_lshlrev_b32 {vr(vt0)}, 4, {vr(vt0)}")
    a(f"v_cmp_eq_u32 vcc, 0, {vr(vP)}\nv_mov_b32 {vr(vt1)}, 0x7ff00000\ns_nop 0\nv_cndmask_b32 {vr(vt0)}, {vr(vt1)}, {vr(vt0)}, vcc")
    a(f"s_mov_b32 s{st[3]}, {WS_STATS}\nbuffer_store_dwordx4 {vr(g,4)}, {vr(vt0)}, {sr(sWS,4)}, s{st[3]} offen sc1")
    ST.stamp()
    if opts.get("short"): a(f"s_waitcnt vmcnt(0)\ns_branch {end}")
    a(f"s_lshl_b32 s{st[1]}, s{sw}, 4\nv_add_u32 {vr(vt0)}, s{st[1]}, {vr(vR)}\nv_lshlrev_b32 {vr(vt0)}, 3, {vr(vt0)}\nds_write_b64 {vr(vt0)}, {vr(g,2)} offset:{L_MS}")
    a("s_waitcnt lgkmcnt(0)\ns_barrier")
    ms = V.alloc(32,4)
    a(f"v_lshrrev_b32 {vr(vt0)}, 4, {vr(vl)}\nv_lshlrev_b32 {vr(vt0)}, 6, {vr(vt0)}")
    for v in range(2):
        for q in range(4): a(f"ds_read_b128 {vr(ms+16*v+4*q,4)}, {vr(vt0)} offset:{L_MS + 256*v + 16*q}")
    vA = V.alloc(); vO = V.alloc(); vSw = V.alloc(); vSr = V.alloc()
    a(f"v_lshrrev_b32 {vr(vt0)}, 4, {vr(vl)}\nv_lshlrev_b32 {vr(vt0)}, 3, {vr(vt0)}\nv_bfe_u32 {vr(vt1)}, {vr(vl)}, 2, 2\nv_add_u32 {vr(vt0)}, {vr(vt0)}, {vr(vt1)}\nv_mul_u32_u24 {vr(vt0)}, 912, {vr(vt0)}")
    a(f"v_and_b32 {vr(vt1)}, 3, {vr(vl)}\nv_lshl_add_u32 {vr(vt0)}, {vr(vt1)}, 3, {vr(vt0)}\ns_lshl_b32 s{st[1]}, s{sw}, 5\nv_add_u32 {vr(vA)}, s{st[1]}, {vr(vt0)}")
    L_SG = L_MS + 512
    a(f"v_and_b32 {vr(vt0)}, 15, {vr(vl)}\nv_and_b32 {vr(vt1)}, 7, {vr(vl)}\nv_lshrrev_b32 {vr(vt2)}, 4, {vr(vl)}\nv_xor_b32 {vr(vt1)}, {vr(vt1)}, {vr(vt2)}\nv_lshlrev_b32 {vr(vt1)}, 4, {vr(vt1)}\nv_lshl_add_u32 {vr(vt0)}, {vr(vt0)}, 7, {vr(vt1)}")
    a(f"s_lshl_b32 s{st[1]}, s{sw}, 11\ns_add_u32 s{st[1]}, s{st[1]}, {L_SG}\nv_add_u32 {vr(vSw)}, s{st[1]}, {vr(vt0)}\nv_lshlrev_b32 {vr(vt0)}, 4, {vr(vl)}\nv_add_u32 {vr(vSr)}, s{st[1]}, {vr(vt0)}")
    a(f"v_lshrrev_b32 {vr(vt0)}, 3, {vr(vl)}\nv_and_b32 {vr(vt1)}, 7, {vr(vl)}\nv_xor_b32 {vr(vt1)}, {vr(vt1)}, {vr(vt0)}\nv_lshlrev_b32 {vr(vt1)}, 4, {vr(vt1)}\nv_lshl_add_u32 {vr(vt0)}, {vr(vt0)}, 7, {vr(vt1)}")
    a(f"s_mul_i32 s{st[1]}, s2, 57344\ns_lshl_b32 s{st[2]}, s{sw}, 11\ns_add_u32 s{st[1]}, s{st[1]}, s{st[2]}\ns_add_u32 s{st[1]}, s{st[1]}, {WS_XNT}\nv_add_u32 {vr(vO)}, s{st[1]}, {vr(vt0)}")
    raw = V.alloc(8,2); nxt = V.alloc(8,2); tmp = V.alloc(8,2); pk = V.alloc(8,2); ob = V.alloc(8,2)
    sn = S.alloc(); so = S.alloc()
    def trs(dst):
        for v in range(2):
            for u in range(2):
                a(f"ds_read_b64_tr_b16 {vr(dst+4*v+2*u,2)}, {vr(vA)} offset:{LX + (32*v+4*u)*912}")
    a(f"s_mov_b32 s{sn}, 7\ns_mov_b32 s{so}, 0")
    trs(nxt)
    lp = a.newlabel("LN_lp")
    a.label(lp)
    a("s_waitcnt lgkmcnt(0)")
    for e in range(8): a(f"v_mov_b32 {vr(raw+e)}, {vr(nxt+e)}")
    a(f"v_add_u32 {vr(vA)}, 128, {vr(vA)}")
    trs(nxt)
    for v in range(2):
        for q in range(4):
            a(f"v_lshlrev_b32 {vr(tmp+2*q)}, 16, {vr(raw+4*v+q)}\nv_and_b32 {vr(tmp+2*q+1)}, 0xffff0000, {vr(raw+4*v+q)}")
        for e in range(8): a(f"v_fma_f32 {vr(tmp+e)}, {vr(tmp+e)}, {vr(ms+16*v+2*e+1)}, -{vr(ms+16*v+2*e)}")
        for q in range(4): a(f"v_cvt_pk_bf16_f32 {vr(pk+4*v+q)}, {vr(tmp+2*q)}, {vr(tmp+2*q+1)}")
        if v == 0: a(f"ds_write_b128 {vr(vSw)}, {vr(pk,4)}")
        else: a(f"v_xor_b32 {vr(vt0)}, 64, {vr(vSw)}\nds_write_b128 {vr(vt0)}, {vr(pk+4,4)}")
    a(f"ds_read_b128 {vr(ob,4)}, {vr(vSr)}\nds_read_b128 {vr(ob+4,4)}, {vr(vSr)} offset:1024")
    a("s_waitcnt lgkmcnt(0)")
    a(f"buffer_store_dwordx4 {vr(ob,4)}, {vr(vO)}, {sr(sWS,4)}, s{so} offen sc1\nbuffer_store_dwordx4 {vr(ob+4,4)}, {vr(vO)}, {sr(sWS,4)}, s{so} offen offset:1024 sc1")
    a(f"s_add_u32 s{so}, s{so}, {64*128}\ns_sub_u32 s{sn}, s{sn}, 1\ns_cmp_lg_u32 s{sn}, 0\ns_cbranch_scc1 {lp}")
    a("s_waitcnt vmcnt(0)\ns_barrier")
    a(f"s_lshl_b32 s{st[1]}, s2, 3\ns_add_u32 s{st[1]}, s{st[1]}, {F_XF}")
    set_flag(a, vt, sWS, st[1], sN, vl, sw)
    a("s_waitcnt vmcnt(0)")
    ST.stamp()
    ST.flush(sWS, WS_STAMP, vt0, 2*((st[0]+1)//2), 2)
    a(f"s_branch {end}")
    return V.hi, S.hi

def role_cs(a, s0, ST, end, opts={}):
    V = Regs("v", 1, 256); S = Regs("s", s0, 96)
    sW1 = S.alloc(4,4); sWS = S.alloc(4,4); sDB = S.alloc(4,4); sW2 = S.alloc(4,4)
    pW1 = S.alloc(2,2); pWS = S.alloc(2,2); pDB = S.alloc(2,2); pW2 = S.alloc(2,2); sN = S.alloc(2,2)
    sw = S.alloc(); sq = S.alloc(); st = [S.alloc() for _ in range(6)]
    a("s_setprio 2")
    a(f"s_load_dwordx2 {sr(pW1,2)}, s[0:1], 80\ns_load_dwordx2 {sr(pWS,2)}, s[0:1], 128\ns_load_dwordx2 {sr(pDB,2)}, s[0:1], 120\ns_load_dwordx2 {sr(pW2,2)}, s[0:1], 96")
    vl = V.alloc(); vt = V.alloc(4,2); vt0, vt1, vt2, vt3 = vt, vt+1, vt+2, vt+3
    vWo = V.alloc(); vR = V.alloc(); vP = V.alloc(); vN = V.alloc(2,2); vz = V.alloc(); vW2o = V.alloc()
    a(f"v_lshrrev_b32 {vr(vt0)}, 6, v0\nv_and_b32 {vr(vl)}, 63, v0\nv_readfirstlane_b32 s{sw}, {vr(vt0)}")
    a(f"s_sub_u32 s{sq}, s2, {ID_CS}")
    a(f"v_lshrrev_b32 {vr(vR)}, 3, {vr(vl)}\nv_and_b32 {vr(vP)}, 7, {vr(vl)}")
    a(f"s_mul_i32 s{st[1]}, s{sw}, 112\nv_add_u32 {vr(vt0)}, s{st[1]}, {vr(vR)}\nv_mul_u32_u24 {vr(vt0)}, 3584, {vr(vt0)}\nv_lshl_add_u32 {vr(vt0)}, {vr(vP)}, 4, {vr(vt0)}")
    a(f"s_lshl_b32 s{st[2]}, s{sq}, 7\nv_add_u32 {vr(vWo)}, s{st[2]}, {vr(vt0)}")
    sKap = S.alloc(); sDb = S.alloc()
    a(f"s_lshr_b32 s{sDb}, s{sq}, 1\ns_and_b32 s{sKap}, s{sq}, 1\ns_mul_i32 s{sKap}, s{sKap}, 56\ns_mul_i32 s{st[1]}, s{sw}, 14\ns_add_u32 s{sKap}, s{sKap}, s{st[1]}")
    a(f"v_lshrrev_b32 {vr(vt0)}, 2, {vr(vl)}\ns_lshl_b32 s{st[1]}, s{sKap}, 4\nv_add_u32 {vr(vt0)}, s{st[1]}, {vr(vt0)}\nv_mul_u32_u24 {vr(vt0)}, 896, {vr(vt0)}")
    a(f"v_and_b32 {vr(vt1)}, 3, {vr(vl)}\nv_lshl_add_u32 {vr(vt0)}, {vr(vt1)}, 4, {vr(vt0)}\ns_lshl_b32 s{st[1]}, s{sDb}, 6\nv_add_u32 {vr(vW2o)}, s{st[1]}, {vr(vt0)}")
    a("s_waitcnt lgkmcnt(0)")
    srd(a, sW1, pW1, W_BYTES); srd(a, sDB, pDB, 256)
    vw = V.alloc(56,4); vw2 = V.alloc(56,4)
    for m in range(14):
        a(f"s_mov_b32 s{st[3]}, {m*8*3584}\nbuffer_load_dwordx4 {vr(vw+4*m,4)}, {vr(vWo)}, {sr(sW1,4)}, s{st[3]} offen")
    nonce_issue(a, vN, vz, sDB)
    srd(a, sW2, pW2, W_BYTES); srd(a, sWS, pWS, WS_SIZE)
    ST.stamp()
    sLo = S.alloc(); sHi = S.alloc()
    a(f"s_mov_b32 s{sLo}, 0x00003f80\ns_mov_b32 s{sHi}, 0x3f800000")
    vc = V.alloc(8,4)
    for e in range(8): a(f"v_mov_b32 {vr(vc+e)}, 0")
    for m in range(14):
        a(f"s_waitcnt vmcnt({13-m+1})")
        for q in range(4):
            a(f"v_dot2c_f32_bf16 {vr(vc+2*q)}, s{sLo}, {vr(vw+4*m+q)}")
            a(f"v_dot2c_f32_bf16 {vr(vc+2*q+1)}, s{sHi}, {vr(vw+4*m+q)}")
    a(f"s_lshl_b32 s{st[1]}, s{sw}, 3\nv_add_u32 {vr(vt0)}, s{st[1]}, {vr(vR)}\nv_lshlrev_b32 {vr(vt0)}, 8, {vr(vt0)}\nv_lshl_add_u32 {vr(vt0)}, {vr(vP)}, 5, {vr(vt0)}")
    a(f"s_nop 1\nds_write_b128 {vr(vt0)}, {vr(vc,4)}\nds_write_b128 {vr(vt0)}, {vr(vc+4,4)} offset:16")
    a("s_waitcnt lgkmcnt(0)\ns_barrier")
    vs = V.alloc(8,4)
    a(f"s_lshl_b32 s{st[1]}, s{sw}, 11\nv_lshlrev_b32 {vr(vt0)}, 2, {vr(vl)}\nv_add_u32 {vr(vt1)}, s{st[1]}, {vr(vt0)}")
    for k in range(8): a(f"ds_read_b32 {vr(vs+k)}, {vr(vt1)} offset:{256*k}")
    a("s_waitcnt lgkmcnt(0)")
    for k in (0,2,4,6): a(f"v_add_f32 {vr(vs+k)}, {vr(vs+k)}, {vr(vs+k+1)}")
    a(f"v_add_f32 {vr(vs)}, {vr(vs)}, {vr(vs+2)}\nv_add_f32 {vr(vs+4)}, {vr(vs+4)}, {vr(vs+6)}\nv_add_f32 {vr(vs)}, {vr(vs)}, {vr(vs+4)}")
    a(f"s_lshl_b32 s{st[1]}, s{sw}, 8\nv_add_u32 {vr(vt1)}, s{st[1]}, {vr(vt0)}\nds_write_b32 {vr(vt1)}, {vr(vs)} offset:8192")
    a(f"s_waitcnt vmcnt(0) lgkmcnt(0)\ns_barrier")
    for m in range(14):
        a(f"s_mov_b32 s{st[3]}, {m*16*896}\nbuffer_load_dwordx4 {vr(vw2+4*m,4)}, {vr(vW2o)}, {sr(sW2,4)}, s{st[3]} offen")
    nonce_finish(a, vN, vz, sDB, sN, st[2])
    l1 = a.newlabel("CS_w0")
    a(f"s_cmp_lg_u32 s{sw}, 0\ns_cbranch_scc1 {l1}")
    a(f"v_and_b32 {vr(vt0)}, 31, {vr(vl)}\nv_lshlrev_b32 {vr(vt1)}, 3, {vr(vt0)}")
    for k in range(4): a(f"ds_read_b64 {vr(vs+2*k,2)}, {vr(vt1)} offset:{8192+256*k}")
    a("s_waitcnt lgkmcnt(0)")
    for e in range(2):
        a(f"v_add_f32 {vr(vs+e)}, {vr(vs+e)}, {vr(vs+2+e)}\nv_add_f32 {vr(vs+4+e)}, {vr(vs+4+e)}, {vr(vs+6+e)}\nv_add_f32 {vr(vs+e)}, {vr(vs+e)}, {vr(vs+4+e)}")
    a(f"v_mov_b32 {vr(vs+2)}, s{sN}\nv_mov_b32 {vr(vs+3)}, s{sN+1}\nv_lshlrev_b32 {vr(vt0)}, 4, {vr(vt0)}\ns_lshl_b32 s{st[1]}, s{sq}, 9\ns_add_u32 s{st[1]}, s{st[1]}, {WS_CS}")
    a(f"buffer_store_dwordx4 {vr(vs,4)}, {vr(vt0)}, {sr(sWS,4)}, s{st[1]} offen sc1")
    a.label(l1)
    ST.stamp()
    if opts.get("short"): a(f"s_waitcnt vmcnt(0)\ns_branch {end}")
    vst = V.alloc(); vtr = V.alloc(); vo = V.alloc()
    a(f"s_lshl_b32 s{st[1]}, s{sw}, 11\ns_add_u32 s{st[1]}, s{st[1]}, 12288\nv_lshlrev_b32 {vr(vo)}, 4, {vr(vl)}\nv_add_u32 {vr(vst)}, s{st[1]}, {vr(vo)}")
    a(f"v_lshrrev_b32 {vr(vt0)}, 5, {vr(vl)}\nv_lshlrev_b32 {vr(vt0)}, 2, {vr(vt0)}\nv_bfe_u32 {vr(vt2)}, {vr(vl)}, 2, 2\nv_add_u32 {vr(vt0)}, {vr(vt0)}, {vr(vt2)}\nv_lshlrev_b32 {vr(vt0)}, 6, {vr(vt0)}")
    a(f"v_bfe_u32 {vr(vt2)}, {vr(vl)}, 4, 1\nv_lshl_add_u32 {vr(vt0)}, {vr(vt2)}, 5, {vr(vt0)}\nv_and_b32 {vr(vt2)}, 3, {vr(vl)}\nv_lshl_add_u32 {vr(vt0)}, {vr(vt2)}, 3, {vr(vt0)}\nv_add_u32 {vr(vtr)}, s{st[1]}, {vr(vt0)}")
    a(f"s_mul_i32 s{st[0]}, s{sDb}, 112\ns_add_u32 s{st[0]}, s{st[0]}, s{sKap}\ns_lshl_b32 s{st[0]}, s{st[0]}, 10\ns_add_u32 s{st[0]}, s{st[0]}, {WS_W2T}")
    a("s_waitcnt vmcnt(0)")
    for m in range(14):
        b = (m&1)*1024
        a(f"ds_write_b128 {vr(vst)}, {vr(vw2+4*m,4)} offset:{b}")
        a(f"ds_read_b64_tr_b16 {vr(vw+4*m,2)}, {vr(vtr)} offset:{b}\nds_read_b64_tr_b16 {vr(vw+4*m+2,2)}, {vr(vtr)} offset:{b+512}")
    for m in range(14):
        if m == 0: a("s_waitcnt lgkmcnt(0)")
        a(f"buffer_store_dwordx4 {vr(vw+4*m,4)}, {vr(vo)}, {sr(sWS,4)}, s{st[0]} offen sc1")
        if m < 13: a(f"s_add_u32 s{st[0]}, s{st[0]}, 1024")
    a("s_waitcnt vmcnt(0)\ns_barrier")
    a(f"s_lshl_b32 s{st[1]}, s{sq}, 3\ns_add_u32 s{st[1]}, s{st[1]}, {F_WF}")
    set_flag(a, vt, sWS, st[1], sN, vl, sw)
    a("s_waitcnt vmcnt(0)")
    ST.stamp()
    ST.flush(sWS, WS_STAMP, vt0, 2*((st[0]+1)//2), 2)
    a(f"s_branch {end}")
    return V.hi, S.hi
```

```python
import sys
from asm import *
from common import *
from roles_small import role_ln, role_cs
from role_aux import role_aux
from role_g import role_g
KNAME = "parallel_sum__ssm_conv_s4__dense_activation_gelu__prompt_kernel"
def gen_mega(name=KNAME, stamp=False, opts={}):
    a = Asm()
    S = Regs("s", 3, 96)
    end = "M_END"
    ST = Stamps(a, S, 12, stamp)
    s0 = S.mark()
    a(f"s_cmp_ge_u32 s2, {N_WG}\ns_cbranch_scc1 {end}")
    ST.start()
    a(f"s_cmp_ge_u32 s2, {ID_G}\ns_cbranch_scc1 R_G\ns_cmp_ge_u32 s2, {ID_CS+N_CS}\ns_cbranch_scc1 {end}\ns_cmp_ge_u32 s2, {ID_CS}\ns_cbranch_scc1 R_CS\ns_cmp_ge_u32 s2, {ID_AUX}\ns_cbranch_scc1 R_AUX")
    k0 = ST.k; hv = []; hs = []
    v, s = role_ln(a, s0, ST, end, opts); hv.append(v); hs.append(s); ST.k = k0
    a.label("R_CS"); v, s = role_cs(a, s0, ST, end, opts); hv.append(v); hs.append(s); ST.k = k0
    a.label("R_AUX")
    if opts.get("skip_aux"): a(f"s_branch {end}")
    v, s = role_aux(a, s0, ST, end); hv.append(v); hs.append(s); ST.k = k0
    a.label("R_G"); v, s = role_g(a, s0, ST, end, opts=opts); hv.append(v); hs.append(s)
    a.label(end)
    print("mega vgprs", hv, "sgprs", hs)
    return kernel_wrap(name, a.text(), max(hv), sgpr=100)
def header():
    HDR = open('parallel_sum__ssm_conv_s4__dense_activation_gelu__prompt.s.ref').read()
    lines = []
    for ln in HDR.split("\n"):
        if ln.startswith("; @launch") or ln.startswith("; Override launch") or ln.startswith("; grid=ceil"): continue
        if not ln.startswith(";"): break
        lines.append(ln)
    s = "\n".join(lines) + "\n"
    s += f"; @launch grid=({N_WG},1,1) block=(256,1,1) lds={LDS_BYTES}\n"
    s += '.amdgcn_target "amdgcn-amd-amdhsa--gfx950"\n'
    return s
if __name__ == "__main__":
    out = sys.argv[1] if len(sys.argv) > 1 else "mega.s"
    open(out, "w").write(header() + gen_mega())
```

```python
class Asm:
    def __init__(self):
        self.lines = []
        self.uid = 0
    def __call__(self, s=""):
        for ln in s.split("\n"):
            ln = ln.strip()
            if ln: self.lines.append("    " + ln if not ln.endswith(":") else ln)
    def label(self, l): self.lines.append(l + ":")
    def newlabel(self, base):
        self.uid += 1
        return f"{base}_{self.uid}"
    def comment(self, s): self.lines.append("    ; " + s)
    def text(self): return "\n".join(self.lines) + "\n"

class Regs:
    def __init__(self, prefix, start=0, limit=256):
        self.p = prefix; self.n = start; self.limit = limit; self.hi = start
    def alloc(self, cnt=1, align=1):
        self.n = (self.n + align - 1)//align*align
        r = self.n; self.n += cnt
        assert self.n <= self.limit, f"out of {self.p} regs"
        self.hi = max(self.hi, self.n)
        return r
    def mark(self): return self.n
    def reset(self, m): self.n = m

def vr(r, n=1): return f"v{r}" if n == 1 else f"v[{r}:{r+n-1}]"
def sr(r, n=1): return f"s{r}" if n == 1 else f"s[{r}:{r+n-1}]"

def kernel_wrap(name, body, vgpr, sgpr=96, accum=None):
    if accum is None: accum = (vgpr + 3)//4*4
    return f""".text
.globl {name}
.p2align 8
.type {name},@function
{name}:
{body}    s_endpgm
.section .rodata,"a"
.p2align 6
.amdhsa_kernel {name}
  .amdhsa_next_free_vgpr {vgpr}
  .amdhsa_next_free_sgpr {sgpr}
  .amdhsa_accum_offset {accum}
  .amdhsa_group_segment_fixed_size 0
  .amdhsa_kernarg_size 136
  .amdhsa_user_sgpr_count 2
  .amdhsa_user_sgpr_kernarg_segment_ptr 1
  .amdhsa_system_sgpr_workgroup_id_x 1
  .amdhsa_float_denorm_mode_32 3
.end_amdhsa_kernel
"""

def srd(a, d, b, size):
    a(f"s_mov_b32 s{d}, s{b}\ns_and_b32 s{d+1}, s{b+1}, 0xffff\ns_mov_b32 s{d+2}, {size}\ns_mov_b32 s{d+3}, 0x20000")

class Stamps:
    def __init__(self, a, S, n, enabled):
        self.a = a; self.n = n; self.en = enabled; self.k = 0
        if enabled:
            self.tmp = S.alloc(2, 2); self.rt = S.alloc(); self.base = S.alloc(n)
    def start(self):
        if self.en:
            self.a(f"s_memrealtime s[{self.tmp}:{self.tmp+1}]\ns_waitcnt lgkmcnt(0)\ns_mov_b32 s{self.rt}, s{self.tmp}")
            self.stamp()
    def stamp(self):
        if self.en:
            assert self.k < self.n
            self.a(f"s_memtime s[{self.tmp}:{self.tmp+1}]\ns_waitcnt lgkmcnt(0)\ns_mov_b32 s{self.base+self.k}, s{self.tmp}")
            self.k += 1
    def flush(self, sWS, wsoff, vtmp, stmp, nwaves_log2):
        if not self.en: return
        a = self.a
        a(f"s_memrealtime s[{self.tmp}:{self.tmp+1}]\ns_waitcnt lgkmcnt(0)")
        a(f"v_lshrrev_b32 v{vtmp}, 6, v0\ns_lshl_b32 s{self.tmp+1}, s2, {nwaves_log2}\nv_add_u32 v{vtmp}, s{self.tmp+1}, v{vtmp}\nv_lshlrev_b32 v{vtmp}, 6, v{vtmp}\nv_add_u32 v{vtmp}, {wsoff}, v{vtmp}")
        a(f"v_mov_b32 v{vtmp+1}, s{self.rt}\nbuffer_store_dword v{vtmp+1}, v{vtmp}, s[{sWS}:{sWS+3}], 0 offen")
        a(f"v_mov_b32 v{vtmp+1}, s{self.tmp}\nbuffer_store_dword v{vtmp+1}, v{vtmp}, s[{sWS}:{sWS+3}], 0 offen offset:4")
        for k in range(self.k):
            a(f"v_mov_b32 v{vtmp+1}, s{self.base+k}\nbuffer_store_dword v{vtmp+1}, v{vtmp}, s[{sWS}:{sWS+3}], 0 offen offset:{8+4*k}")
        a("s_waitcnt vmcnt(0)")

def srd_fix(a, d, size):
    a(f"s_and_b32 s{d+1}, s{d+1}, 0xffff\ns_mov_b32 s{d+2}, {size}\ns_mov_b32 s{d+3}, 0x20000")
```

```python
FSTR   = 113*1024
WS_H   = 0
WS_W2T = 0x710000
WS_XNT = 0x8A0000
WS_Y   = 0xA60000
WS_FLAG= 0xC20000
F_HF = WS_FLAG
F_WF = WS_FLAG + 2048
F_XF = WS_FLAG + 2304
F_YF = WS_FLAG + 2560
F_W2 = WS_FLAG + 4608
WS_STATS=0xC22000
WS_CS   =0xC2A000
WS_XC   =0xC2E000
WS_HF   =0xC30000
WS_STAMP=0xC40000
WS_STAMP2=0xC80000
WS_SIZE= 0xD00000
X_BYTES = 2048*448*2
W_BYTES = 448*1792*2
P_BYTES = 448*256*2
GELU_C0 = -2.0*1.4426950408889634*0.7978845608028654
GELU_C1 = GELU_C0*0.044715
LOG2E = 1.4426950408889634
INV2PI = 0.15915494309189535
N_LN, N_CS, N_AUX, N_G = 32, 28, 224, 224
ID_AUX = 32; ID_CS = 256; ID_G = 288; N_WG = 512
LDS_BYTES = 81920
SPIN = 20000
import struct
def f2u(x): return struct.unpack("<I", struct.pack("<f", x))[0]
def fhex(x): return "0x%08x" % f2u(x)
```

```python
import sys
from asm import *
from common import *
from roles_small import role_ln, role_cs
from role_aux import role_aux
from role_g import role_g
KNAME = "parallel_sum__ssm_conv_s4__dense_activation_gelu__prompt_kernel"
def gen_mega(name=KNAME, stamp=False, opts={}):
    a = Asm()
    S = Regs("s", 3, 96)
    end = "M_END"
    ST = Stamps(a, S, 14, stamp)
    s0 = S.mark()
    a(f"s_cmp_ge_u32 s2, {N_WG}\ns_cbranch_scc1 {end}")
    ST.start()
    k0 = ST.k; hv = []; hs = []
    a(f"s_cmp_lt_u32 s2, {ID_G}\ns_cbranch_scc1 R_OTHER")
    if opts.get("skip_g"): a(f"s_branch {end}")
    v, s = role_g(a, s0, ST, end, opts=opts); hv.append(v); hs.append(s); ST.k = k0
    a.label("R_OTHER")
    a(f"s_cmp_ge_u32 s2, {ID_CS+N_CS}\ns_cbranch_scc1 {end}\ns_cmp_ge_u32 s2, {ID_CS}\ns_cbranch_scc1 R_CS\ns_cmp_lt_u32 s2, {ID_AUX}\ns_cbranch_scc1 R_LN")
    if opts.get("skip_aux"): a(f"s_branch {end}")
    v, s = role_aux(a, s0, ST, end, opts); hv.append(v); hs.append(s); ST.k = k0
    a.label("R_LN"); v, s = role_ln(a, s0, ST, end, opts); hv.append(v); hs.append(s); ST.k = k0
    a.label("R_CS"); v, s = role_cs(a, s0, ST, end, opts); hv.append(v); hs.append(s); ST.k = k0
    a.label(end)
    print("mega vgprs", hv, "sgprs", hs)
    return kernel_wrap(name, a.text(), max(hv), sgpr=100)
def header():
    HDR = open('parallel_sum__ssm_conv_s4__dense_activation_gelu__prompt.s.ref').read()
    lines = []
    for ln in HDR.split("\n"):
        if ln.startswith("; @launch") or ln.startswith("; Override launch") or ln.startswith("; grid=ceil"): continue
        if not ln.startswith(";"): break
        lines.append(ln)
    s = "\n".join(lines) + "\n"
    s += f"; @launch grid=({N_WG},1,1) block=(256,1,1) lds={LDS_BYTES}\n"
    s += '.amdgcn_target "amdgcn-amd-amdhsa--gfx950"\n'
    return s
if __name__ == "__main__":
    out = sys.argv[1] if len(sys.argv) > 1 else "mega.s"
    open(out, "w").write(header() + gen_mega())
```

```python
from asm import *
from common import *
from roles_small import nonce_issue, nonce_finish, tag_check_loop, set_flag

def cmul(a, nr, ni, xr, xi, yr, yi, t):
    a(f"v_mul_f32 {vr(t)}, {vr(xi)}, {vr(yi)}")
    a(f"v_mul_f32 {vr(ni)}, {vr(xi)}, {vr(yr)}")
    a(f"v_fma_f32 {vr(nr)}, {vr(xr)}, {vr(yr)}, -{vr(t)}")
    a(f"v_fmac_f32 {vr(ni)}, {vr(xr)}, {vr(yi)}")

def cmul_l(nr, ni, xr, xi, yr, yi, t):
    return [f"v_mul_f32 {vr(t)}, {vr(xi)}, {vr(yi)}", f"v_mul_f32 {vr(ni)}, {vr(xi)}, {vr(yr)}",
            f"v_fma_f32 {vr(nr)}, {vr(xr)}, {vr(yr)}, -{vr(t)}", f"v_fmac_f32 {vr(ni)}, {vr(xr)}, {vr(yi)}"]
def interleave(a, *lists):
    lists = [list(l) for l in lists]
    while any(lists):
        for l in lists:
            if l: a(l.pop(0))

def role_aux(a, s0, ST, end, opts={}):
    V = Regs("v", 1, 256); S = Regs("s", s0, 98)
    USZ = 4608; L_U = 0; KS = 4160; KSZ = 4*KS; L_K = 2*USZ
    L_ST = L_K; STW = 32*288; L_T = L_ST + 4*STW; TS = 80; TSZ = 32*TS; L_X = L_T + 2*TSZ; L_W = L_X + 16384
    assert L_K + 2*KSZ <= L_T and L_W + 4*2048 <= LDS_BYTES
    sWS = S.alloc(4,4); sDB = S.alloc(4,4); sN = S.alloc(2,2)
    sw = S.alloc(); sa = S.alloc(); sch = S.alloc(); swi = S.alloc(); st = [S.alloc() for _ in range(6)]; sLd = S.alloc(); sDs = S.alloc()
    sLc = S.alloc(); sDc = S.alloc(); sjob = S.alloc(); sW2t = S.alloc(4,4)
    smark = S.mark()
    sP = [S.alloc(4,4) for _ in range(6)]; pDt = S.alloc(2,2); pDs = S.alloc(2,2)
    for k in range(6): a(f"s_load_dwordx2 {sr(sP[k],2)}, s[0:1], {8+8*k}")
    a(f"s_load_dwordx2 {sr(pDt,2)}, s[0:1], 56\ns_load_dwordx2 {sr(pDs,2)}, s[0:1], 64")
    a(f"s_load_dwordx2 {sr(sWS,2)}, s[0:1], 128\ns_load_dwordx2 {sr(sDB,2)}, s[0:1], 120\ns_load_dwordx2 {sr(sW2t,2)}, s[0:1], 96")
    vl = V.alloc(); vt = V.alloc(4,2); vt0, vt1, vt2, vt3 = vt, vt+1, vt+2, vt+3
    vN = V.alloc(2,2); vz0 = V.alloc()
    a(f"v_lshrrev_b32 {vr(vt0)}, 6, v0\nv_and_b32 {vr(vl)}, 63, v0\nv_readfirstlane_b32 s{sw}, {vr(vt0)}")
    a(f"s_sub_u32 s{sa}, s2, {ID_AUX}\ns_and_b32 s{st[0]}, s{sa}, 7\ns_mul_i32 s{st[0]}, s{st[0]}, 28\ns_lshr_b32 s{sa}, s{sa}, 3\ns_add_u32 s{sa}, s{sa}, s{st[0]}")
    vPo = V.alloc()
    a(f"s_lshr_b32 s{sch}, s{sw}, 1\ns_and_b32 s{swi}, s{sw}, 1\ns_lshl_b32 s{st[0]}, s{sa}, 10\ns_lshl_b32 s{st[1]}, s{sw}, 8\ns_add_u32 s{st[0]}, s{st[0]}, s{st[1]}")
    a(f"v_lshlrev_b32 {vr(vPo)}, 1, {vr(vl)}\nv_add_u32 {vr(vPo)}, s{st[0]}, {vr(vPo)}")
    a("s_waitcnt lgkmcnt(0)")
    NFIRST = opts.get("auxnonce", 0)
    if NFIRST:
        srd_fix(a, sDB, 256)
        nonce_issue(a, vN, vz0, sDB); a("s_waitcnt vmcnt(0)")
        nonce_finish(a, vN, vz0, sDB, sN, st[2])
    for k in range(6): srd_fix(a, sP[k], P_BYTES)
    vP = [[V.alloc() for _ in range(6)] for _ in range(2)]
    for job in range(2):
        for k in range(6): a(f"buffer_load_ushort {vr(vP[job][k])}, {vr(vPo)}, {sr(sP[k],4)}, 0 offen offset:{128*job}")
    a(f"s_lshl_b32 s{st[0]}, s{sa}, 2")
    a(f"s_load_dword s{sLd}, {sr(pDt,2)}, s{st[0]}\ns_load_dword s{sDs}, {sr(pDs,2)}, s{st[0]}")
    srd_fix(a, sWS, WS_SIZE); srd_fix(a, sW2t, W_BYTES)
    if not NFIRST: srd_fix(a, sDB, 256)
    vTo2 = V.alloc(); vTd2 = V.alloc()
    nonce_issue(a, vN, vz0, sDB)
    NTOUCH = 0
    if opts.get("auxw1", 0):
        NTOUCH += 2
        sXt2 = S.alloc(4,4); sW1t2 = S.alloc(4,4); vTo3 = V.alloc(); vTd3 = V.alloc(2,2)
        a(f"s_load_dwordx2 {sr(sXt2,2)}, s[0:1], 0\ns_load_dwordx2 {sr(sW1t2,2)}, s[0:1], 80")
        a(f"v_lshlrev_b32 {vr(vTo3)}, 7, {vr(vl)}\ns_cmp_eq_u32 s{sw}, 1\ns_cselect_b32 s{st[2]}, 0, 0x7ff00000\nv_or_b32 {vr(vt0)}, s{st[2]}, {vr(vTo3)}\ns_lshl_b32 s{st[3]}, s{sa}, 13\ns_waitcnt lgkmcnt(0)")
        srd_fix(a, sXt2, X_BYTES); srd_fix(a, sW1t2, W_BYTES)
        a(f"buffer_load_dword {vr(vTd3)}, {vr(vt0)}, {sr(sXt2,4)}, s{st[3]} offen")
        a(f"v_cmp_gt_u32 vcc, 56, {vr(vl)}\nv_mov_b32 {vr(vt1)}, 0x7ff00000\ns_cmp_eq_u32 s{sw}, 2\ns_cselect_b32 s{st[2]}, 0, 0x7ff00000\nv_cndmask_b32 {vr(vt0)}, {vr(vt1)}, {vr(vTo3)}, vcc\nv_or_b32 {vr(vt0)}, s{st[2]}, {vr(vt0)}\ns_mul_i32 s{st[3]}, s{sa}, 7168")
        a(f"buffer_load_dword {vr(vTd3+1)}, {vr(vt0)}, {sr(sW1t2,4)}, s{st[3]} offen")
    if opts.get("touch", 0):
        NTOUCH += 2
        sXt = S.alloc(4,4); sW1t = S.alloc(4,4); vTo = V.alloc(); vTd = V.alloc(2,2)
        a(f"s_load_dwordx2 {sr(sXt,2)}, s[0:1], 0\ns_load_dwordx2 {sr(sW1t,2)}, s[0:1], 80")
        a(f"s_and_b32 s{st[0]}, s{sa}, 7\ns_lshr_b32 s{st[1]}, s{sa}, 3")
        a(f"s_lshr_b32 s{st[2]}, s{st[0]}, 1\ns_mul_i32 s{st[2]}, s{st[2]}, {512*896}\ns_lshl_b32 s{st[3]}, s{st[1]}, 14\ns_add_u32 s{st[2]}, s{st[2]}, s{st[3]}\ns_lshl_b32 s{st[3]}, s{sw}, 12\ns_add_u32 s{st[2]}, s{st[2]}, s{st[3]}")
        a(f"v_lshlrev_b32 {vr(vTo)}, 7, {vr(vl)}\nv_cmp_gt_u32 vcc, 32, {vr(vl)}\nv_mov_b32 {vr(vt0)}, 0x7ff00000\ns_waitcnt lgkmcnt(0)\nv_cndmask_b32 {vr(vTo)}, {vr(vt0)}, {vr(vTo)}, vcc")
        srd_fix(a, sXt, X_BYTES); srd_fix(a, sW1t, W_BYTES)
        a(f"buffer_load_dword {vr(vTd)}, {vr(vTo)}, {sr(sXt,4)}, s{st[2]} offen")
        a(f"v_mul_u32_u24 {vr(vt0)}, 74, {vr(vl)}\nv_lshrrev_b32 {vr(vt0)}, 10, {vr(vt0)}\nv_mul_u32_u24 {vr(vt1)}, 14, {vr(vt0)}\nv_sub_u32 {vr(vt1)}, {vr(vl)}, {vr(vt1)}")
        a(f"v_mul_u32_u24 {vr(vt0)}, 3584, {vr(vt0)}\nv_lshl_add_u32 {vr(vt0)}, {vr(vt1)}, 7, {vr(vt0)}\nv_cmp_gt_u32 vcc, 56, {vr(vl)}\nv_mov_b32 {vr(vt1)}, 0x7ff00000\ns_nop 0\nv_cndmask_b32 {vr(vTo)}, {vr(vt1)}, {vr(vt0)}, vcc")
        a(f"s_lshl_b32 s{st[2]}, s{st[1]}, 4\ns_lshl_b32 s{st[3]}, s{sw}, 2\ns_add_u32 s{st[2]}, s{st[2]}, s{st[3]}\ns_mul_i32 s{st[2]}, s{st[2]}, 3584\ns_and_b32 s{st[3]}, s{st[0]}, 1\ns_mul_i32 s{st[3]}, s{st[3]}, 1792\ns_add_u32 s{st[2]}, s{st[2]}, s{st[3]}")
        a(f"buffer_load_dword {vr(vTd+1)}, {vr(vTo)}, {sr(sW1t,4)}, s{st[2]} offen")
    vz = V.alloc(4,4)
    for e in range(4): a(f"v_mov_b32 {vr(vz+e)}, 0")
    a(f"v_and_b32 {vr(vt1)}, 31, {vr(vl)}\nv_lshlrev_b32 {vr(vt1)}, 4, {vr(vt1)}\nv_lshrrev_b32 {vr(vt2)}, 5, {vr(vl)}\nv_mul_u32_u24 {vr(vt2)}, {USZ}, {vr(vt2)}\nv_add_u32 {vr(vt1)}, {vr(vt1)}, {vr(vt2)}\nds_write_b128 {vr(vt1)}, {vr(vz,4)} offset:{L_U}")
    ST.stamp()
    vSw = V.alloc(); vSr = V.alloc()
    a(f"s_mul_i32 s{st[0]}, s{sw}, {STW}\ns_add_u32 s{st[0]}, s{st[0]}, {L_ST}\nv_lshlrev_b32 {vr(vSw)}, 2, {vr(vl)}\nv_add_u32 {vr(vSw)}, s{st[0]}, {vr(vSw)}")
    a(f"v_and_b32 {vr(vt0)}, 15, {vr(vl)}\nv_mul_u32_u24 {vr(vt0)}, 288, {vr(vt0)}\nv_lshrrev_b32 {vr(vt1)}, 4, {vr(vl)}\nv_lshl_add_u32 {vr(vt0)}, {vr(vt1)}, 4, {vr(vt0)}\nv_add_u32 {vr(vSr)}, s{st[0]}, {vr(vt0)}")
    mark = V.mark()
    cur_p = [V.alloc() for _ in range(6)]
    a("s_waitcnt lgkmcnt(0)")
    S.reset(smark)
    a(f"s_lshl_b32 s{st[0]}, s{sch}, 4\ns_lshr_b32 s{sLc}, s{sLd}, s{st[0]}\ns_lshl_b32 s{sLc}, s{sLc}, 16\ns_lshr_b32 s{sDc}, s{sDs}, s{st[0]}\ns_lshl_b32 s{sDc}, s{sDc}, 16")
    vdt = V.alloc()
    a(f"v_mov_b32 {vr(vdt)}, s{sLc}\nv_mul_f32 {vr(vdt)}, {fhex(LOG2E)}, {vr(vdt)}\nv_exp_f32 {vr(vdt)}, {vr(vdt)}\ns_nop 0\nv_cvt_pk_bf16_f32 {vr(vdt)}, {vr(vdt)}, {vr(vdt)}\nv_lshlrev_b32 {vr(vdt)}, 16, {vr(vdt)}")
    kacc = V.alloc(16,4)
    for e in range(16): a(f"v_mov_b32 {vr(kacc+e)}, 0")
    a(f"s_mov_b32 s{sjob}, 0")
    a(f"s_waitcnt vmcnt({NTOUCH+1})")
    for k in range(6): a(f"v_lshlrev_b32 {vr(cur_p[k])}, 16, {vr(vP[0][k])}")
    lA = a.newlabel("AX_A")
    if opts.get("kdelay"):
        ld = a.newlabel("AX_dl")
        a(f"s_mov_b32 s{st[1]}, {opts['kdelay']}")
        a.label(ld)
        a(f"s_sleep 8\ns_sub_u32 s{st[1]}, s{st[1]}, 1\ns_cmp_lg_u32 s{st[1]}, 0\ns_cbranch_scc1 {ld}")
    a.label(lA)
    Are, Aim, Bre, Bim, Cre, Cim = cur_p
    vlr = V.alloc(); vli = V.alloc()
    a(f"v_mul_f32 {vr(vlr)}, {vr(vdt)}, {vr(Are)}\nv_mul_f32 {vr(vli)}, {vr(vdt)}, {vr(Aim)}\nv_mul_f32 {vr(Bre)}, {vr(vdt)}, {vr(Bre)}\nv_mul_f32 {vr(Bim)}, {vr(vdt)}, {vr(Bim)}")
    a(f"v_mul_f32 {vr(vlr)}, {fhex(LOG2E)}, {vr(vlr)}\nv_mul_f32 {vr(vli)}, {fhex(INV2PI)}, {vr(vli)}")
    cr = V.alloc(); ci = V.alloc()
    cmul(a, cr, ci, Cre, Cim, Bre, Bim, vt0)
    E = {}
    for p in (8, 1, 256):
        er = V.alloc(); ei = V.alloc(); E[p] = (er, ei)
        if p == 1: a(f"v_exp_f32 {vr(vt0)}, {vr(vlr)}\nv_fract_f32 {vr(vt1)}, {vr(vli)}")
        else: a(f"v_mul_f32 {vr(vt0)}, {fhex(float(p))}, {vr(vlr)}\nv_mul_f32 {vr(vt1)}, {fhex(float(p))}, {vr(vli)}\nv_exp_f32 {vr(vt0)}, {vr(vt0)}\nv_fract_f32 {vr(vt1)}, {vr(vt1)}")
        a(f"s_nop 0\nv_cos_f32 {vr(er)}, {vr(vt1)}\nv_sin_f32 {vr(ei)}, {vr(vt1)}\ns_nop 0")
        a(f"v_mul_f32 {vr(er)}, {vr(er)}, {vr(vt0)}\nv_mul_f32 {vr(ei)}, {vr(ei)}, {vr(vt0)}")
    pk = [V.alloc(), V.alloc()]; t0_ = V.alloc(); t1_ = V.alloc()
    wr, wi = E[8]
    w2 = (V.alloc(), V.alloc())
    ev = [(V.alloc(), V.alloc()), (V.alloc(), V.alloc())]; od = [(V.alloc(), V.alloc()), (V.alloc(), V.alloc())]
    vSb = V.alloc()
    zr, zi = E[1]; hr, hi = E[256]
    z2 = (V.alloc(), V.alloc()); z4 = (V.alloc(), V.alloc())
    interleave(a, cmul_l(w2[0], w2[1], wr, wi, wr, wi, t0_), cmul_l(z2[0], z2[1], zr, zi, zr, zi, t1_))
    a(f"v_mov_b32 {vr(pk[0])}, 0x00003f80\nv_cvt_pk_bf16_f32 {vr(pk[1])}, {vr(wr)}, {vr(wi)}\nds_write2_b32 {vr(vSw)}, {vr(pk[0])}, {vr(pk[1])} offset1:72")
    interleave(a, cmul_l(od[0][0], od[0][1], w2[0], w2[1], wr, wi, t0_), cmul_l(z4[0], z4[1], z2[0], z2[1], z2[0], z2[1], t1_))
    a(f"v_mov_b32 {vr(ev[0][0])}, {vr(w2[0])}\nv_mov_b32 {vr(ev[0][1])}, {vr(w2[1])}\nv_cvt_pk_bf16_f32 {vr(pk[0])}, {vr(w2[0])}, {vr(w2[1])}\nv_cvt_pk_bf16_f32 {vr(pk[1])}, {vr(od[0][0])}, {vr(od[0][1])}")
    a(f"v_add_u32 {vr(vSb)}, 576, {vr(vSw)}\ns_mov_b32 s{st[1]}, 7\nds_write2_b32 {vr(vSb)}, {vr(pk[0])}, {vr(pk[1])} offset1:72\nv_add_u32 {vr(vSb)}, 576, {vr(vSb)}")
    lB = a.newlabel("AX_B")
    a.label(lB)
    for h in range(2):
        src, dst = h, 1-h
        interleave(a, cmul_l(ev[dst][0], ev[dst][1], ev[src][0], ev[src][1], w2[0], w2[1], t0_), cmul_l(od[dst][0], od[dst][1], od[src][0], od[src][1], w2[0], w2[1], t1_))
        a(f"v_cvt_pk_bf16_f32 {vr(pk[0])}, {vr(ev[dst][0])}, {vr(ev[dst][1])}\nv_cvt_pk_bf16_f32 {vr(pk[1])}, {vr(od[dst][0])}, {vr(od[dst][1])}")
        if h == 1: a(f"s_sub_u32 s{st[1]}, s{st[1]}, 1")
        a(f"ds_write2_b32 {vr(vSb)}, {vr(pk[0])}, {vr(pk[1])} offset0:{144*h} offset1:{144*h+72}")
    a(f"v_add_u32 {vr(vSb)}, 1152, {vr(vSb)}\ns_cmp_lg_u32 s{st[1]}, 0\ns_cbranch_scc1 {lB}")
    fB = V.alloc(32,4); fA = V.alloc(32,4)
    for tb in range(2):
        for k4 in range(4):
            a(f"ds_read_b128 {vr(fB+16*tb+4*k4,4)}, {vr(vSr)} offset:{tb*16*288 + k4*64}")
    pA = [V.alloc(), V.alloc()]
    def wr_row(r, v, pkr): return [f"v_cvt_pk_bf16_f32 {vr(pkr)}, {vr(v[0])}, -{vr(v[1])}", f"ds_write_b32 {vr(vSw)}, {vr(pkr)} offset:{288*r}"]
    c0 = (cr, ci)
    P = wr_row(0, c0, pA[0]); cur = c0
    for i in range(1, 8):
        nx = ev[i&1]; P += cmul_l(nx[0], nx[1], cur[0], cur[1], zr, zi, t0_) + wr_row(i, nx, pA[0]); cur = nx
    y0 = (V.alloc(), V.alloc()); y1 = (V.alloc(), V.alloc())
    Q = cmul_l(y0[0], y0[1], cr, ci, hr, hi, t1_) + wr_row(8, y0, pA[1]); cur = y0
    for i in range(3):
        nx = od[i&1]; Q += cmul_l(nx[0], nx[1], cur[0], cur[1], z2[0], z2[1], t1_) + wr_row(9+i, nx, pA[1]); cur = nx
    Q += cmul_l(y1[0], y1[1], y0[0], y0[1], hr, hi, t1_) + wr_row(12, y1, pA[1])
    interleave(a, P, Q)
    S_ = cmul_l(y0[0], y0[1], y1[0], y1[1], hr, hi, t1_) + wr_row(14, y0, pA[1])
    R_ = cmul_l(ev[0][0], ev[0][1], y1[0], y1[1], z4[0], z4[1], t0_) + wr_row(13, ev[0], pA[0])
    interleave(a, R_, S_)
    R_ = cmul_l(ev[1][0], ev[1][1], y0[0], y0[1], z4[0], z4[1], t0_) + wr_row(15, ev[1], pA[0])
    cur, oth = y0, y1; S_ = []
    S_ += cmul_l(oth[0], oth[1], cur[0], cur[1], hr, hi, t1_) + wr_row(16, oth, pA[1])
    interleave(a, R_, S_)
    cur, oth = oth, od[0]
    tail = []
    for i in range(4):
        tail += cmul_l(oth[0], oth[1], cur[0], cur[1], hr, hi, t1_) + wr_row(17+i, oth, pA[1])
        cur, oth = oth, (od[1] if oth is od[0] else od[0])
    for l in tail: a(l)
    for ta in range(2):
        for k4 in range(4):
            a(f"ds_read_b128 {vr(fA+16*ta+4*k4,4)}, {vr(vSr)} offset:{ta*16*288 + k4*64}")
    for k in range(6): a(f"v_lshlrev_b32 {vr(cur_p[k])}, 16, {vr(vP[1][k])}")
    a("s_waitcnt lgkmcnt(0)")
    for k4 in range(4):
        for ta in range(2):
            for tb in range(2):
                d_ = kacc + 4*(2*ta+tb)
                a(f"v_mfma_f32_16x16x32_bf16 {vr(d_,4)}, {vr(fA+16*ta+4*k4,4)}, {vr(fB+16*tb+4*k4,4)}, {vr(d_,4)}")
    if opts.get("auxw2", 1):
        lw2 = a.newlabel("AX_w2")
        a(f"s_cmp_lg_u32 s{sjob}, {opts.get('w2job',0)}\ns_cbranch_scc1 {lw2}\ns_cmp_lg_u32 s{sw}, 3\ns_cbranch_scc1 {lw2}")
        a(f"v_lshlrev_b32 {vr(vTo2)}, 7, {vr(vl)}\nv_cmp_gt_u32 vcc, 56, {vr(vl)}\nv_mov_b32 {vr(vt0)}, 0x7ff00000\ns_mul_i32 s{st[2]}, s{sa}, {8*896}\nv_cndmask_b32 {vr(vTo2)}, {vr(vt0)}, {vr(vTo2)}, vcc")
        a(f"buffer_load_dword {vr(vTd2)}, {vr(vTo2)}, {sr(sW2t,4)}, s{st[2]} offen")
        a.label(lw2)
    a(f"s_cmp_lg_u32 s{sjob}, 0\ns_cbranch_scc1 AX_nn2")
    nonce_issue(a, vN, vz0, sDB)
    a.label("AX_nn2")
    a(f"s_add_u32 s{sjob}, s{sjob}, 1\ns_cmp_lt_u32 s{sjob}, 2\ns_cbranch_scc1 {lA}")
    a("s_waitcnt vmcnt(0)")
    nonce_finish(a, vN, vz0, sDB, sN, st[2])
    a(f"s_mul_i32 s{st[0]}, s{sw}, {STW}\ns_add_u32 s{st[0]}, s{st[0]}, {L_ST}\nv_lshlrev_b32 {vr(vt0)}, 4, {vr(vl)}\nv_add_u32 {vr(vt1)}, s{st[0]}, {vr(vt0)}\ns_nop 3")
    for t in range(4): a(f"ds_write_b128 {vr(vt1)}, {vr(kacc+4*t,4)} offset:{1024*t}")
    a("s_waitcnt lgkmcnt(0)\ns_barrier")
    a(f"v_lshlrev_b32 {vr(vt0)}, 4, {vr(vl)}\ns_lshl_b32 s{st[0]}, s{sch}, 1\ns_mul_i32 s{st[0]}, s{st[0]}, {STW}\ns_lshl_b32 s{st[1]}, s{swi}, 11\ns_add_u32 s{st[0]}, s{st[0]}, s{st[1]}\ns_add_u32 s{st[0]}, s{st[0]}, {L_ST}\nv_add_u32 {vr(vt1)}, s{st[0]}, {vr(vt0)}")
    pr = fA
    for tb in range(2):
        for w2 in range(2): a(f"ds_read_b128 {vr(pr+8*tb+4*w2,4)}, {vr(vt1)} offset:{STW*w2 + 1024*tb}")
    a(f"v_and_b32 {vr(vt1)}, 15, {vr(vl)}\nv_mul_u32_u24 {vr(vt1)}, {TS}, {vr(vt1)}\nv_lshrrev_b32 {vr(vt2)}, 4, {vr(vl)}\nv_lshl_add_u32 {vr(vt1)}, {vr(vt2)}, 3, {vr(vt1)}")
    a(f"s_lshl_b32 s{st[0]}, s{swi}, 5\ns_mul_i32 s{st[1]}, s{sch}, {TSZ}\ns_add_u32 s{st[0]}, s{st[0]}, s{st[1]}\ns_add_u32 s{st[0]}, s{st[0]}, {L_T}\nv_add_u32 {vr(vt1)}, s{st[0]}, {vr(vt1)}")
    a("s_waitcnt lgkmcnt(0)")
    for tb in range(2):
        for e in range(4): a(f"v_add_f32 {vr(pr+8*tb+e)}, {vr(pr+8*tb+e)}, {vr(pr+8*tb+4+e)}")
    a(f"v_mov_b32 {vr(vt2)}, s{sDc}\nv_lshl_add_u32 {vr(vt3)}, {vr(vl)}, 1, s{swi}\nv_cmp_eq_u32 vcc, 0, {vr(vt3)}\nv_mov_b32 {vr(vt3)}, 0\ns_nop 0\nv_cndmask_b32 {vr(vt2)}, {vr(vt3)}, {vr(vt2)}, vcc\nv_add_f32 {vr(pr)}, {vr(pr)}, {vr(vt2)}")
    for tb in range(2):
        b = pr+8*tb
        a(f"v_cvt_pk_bf16_f32 {vr(b)}, {vr(b)}, {vr(b+1)}\nv_cvt_pk_bf16_f32 {vr(b+1)}, {vr(b+2)}, {vr(b+3)}\nds_write_b64 {vr(vt1)}, {vr(b,2)} offset:{16*TS*tb}")
    ST.stamp()
    V.reset(mark)
    vFl = V.alloc(2,2); vFo = V.alloc()
    a(f"v_and_b32 {vr(vFo)}, 31, {vr(vl)}\nv_lshlrev_b32 {vr(vFo)}, 3, {vr(vFo)}\nv_add_u32 {vr(vFo)}, {F_XF}, {vr(vFo)}")
    def ld_xf(): a(f"buffer_load_dwordx2 {vr(vFl,2)}, {vr(vFo)}, {sr(sWS,4)}, 0 offen sc1")
    ld_xf()
    a("s_waitcnt lgkmcnt(0)\ns_barrier")
    LUTlo = 0 | (8<<8) | (12<<16) | (14<<24); LUThi = 16 | (17<<8) | (18<<16) | (19<<24)
    sLo = S.alloc(); vLh = V.alloc(); vp = V.alloc()
    R = [V.alloc(4,4), V.alloc(4,4)]; vF = [V.alloc(), V.alloc()]; o = [V.alloc(4,4), V.alloc(4,4)]
    sTb = S.alloc(); sKb = S.alloc()
    a(f"s_mov_b32 s{sLo}, {LUTlo}\nv_mov_b32 {vr(vLh)}, {LUThi}\ns_mul_i32 s{sTb}, s{sch}, {TSZ}\ns_add_u32 s{sTb}, s{sTb}, {L_T}\ns_mul_i32 s{sKb}, s{sch}, {KSZ}\ns_add_u32 s{sKb}, s{sKb}, {L_K}")
    a(f"s_lshl_b32 s{st[0]}, s{swi}, 7\nv_add_u32 {vr(vp)}, s{st[0]}, {vr(vl)}")
    for k in range(2):
        a(f"v_add_u32 {vr(vt0)}, {64*k}, {vr(vp)}\nv_lshrrev_b32 {vr(vt1)}, 5, {vr(vt0)}\nv_perm_b32 {vr(vt1)}, {vr(vLh)}, s{sLo}, {vr(vt1)}\nv_and_b32 {vr(vt1)}, 0x18, {vr(vt1)}")
        a(f"v_and_b32 {vr(vt2)}, 31, {vr(vt0)}\nv_mul_u32_u24 {vr(vt2)}, {TS}, {vr(vt2)}\nv_lshl_add_u32 {vr(vt2)}, {vr(vt1)}, 1, {vr(vt2)}\nv_add_u32 {vr(vt2)}, s{sTb}, {vr(vt2)}\nds_read_b128 {vr(R[k],4)}, {vr(vt2)}")
        a(f"v_add_u32 {vr(vt0)}, 1, {vr(vt0)}\nv_lshrrev_b32 {vr(vt2)}, 5, {vr(vt0)}\nv_min_u32 {vr(vt3)}, 7, {vr(vt2)}\nv_perm_b32 {vr(vt3)}, {vr(vLh)}, s{sLo}, {vr(vt3)}\nv_and_b32 {vr(vt3)}, 0xff, {vr(vt3)}\nv_lshrrev_b32 {vr(vt2)}, 3, {vr(vt2)}\nv_add_u32 {vr(vt3)}, {vr(vt3)}, {vr(vt2)}")
        a(f"v_and_b32 {vr(vt0)}, 31, {vr(vt0)}\nv_mul_u32_u24 {vr(vt0)}, {TS}, {vr(vt0)}\nv_lshl_add_u32 {vr(vt0)}, {vr(vt3)}, 1, {vr(vt0)}\nv_add_u32 {vr(vt0)}, s{sTb}, {vr(vt0)}\nds_read_u16 {vr(vF[k])}, {vr(vt0)}")
    a(f"v_bfe_u32 {vr(vt0)}, {vr(vl)}, 1, 2\nv_mul_u32_u24 {vr(vt0)}, {KS}, {vr(vt0)}\nv_and_b32 {vr(vt2)}, 1, {vr(vl)}\nv_lshl_add_u32 {vr(vt0)}, {vr(vt2)}, 4, {vr(vt0)}\nv_add_u32 {vr(vt0)}, s{sKb}, {vr(vt0)}\nds_write_b128 {vr(vt0)}, {vr(vz,4)}")
    sSel = [S.alloc() for _ in range(4)]
    a(f"s_mov_b32 s{sSel[0]}, 0x01000100\ns_mov_b32 s{sSel[1]}, 0x03020302\ns_mov_b32 s{sSel[2]}, 0x05040302\ns_mov_b32 s{sSel[3]}, 0x05040100")
    lw1 = a.newlabel("AX_w1"); lwe = a.newlabel("AX_we")
    a("s_waitcnt lgkmcnt(1)")
    a(f"s_cmp_eq_u32 s{swi}, 1\ns_cbranch_scc1 {lw1}")
    r0, f0, o0 = R[0], vF[0], o[0]
    a(f"v_perm_b32 {vr(o0)}, {vr(r0)}, {vr(r0)}, s{sSel[0]}\nv_perm_b32 {vr(o0+1)}, {vr(r0+1)}, {vr(r0)}, s{sSel[2]}\nv_perm_b32 {vr(o0+2)}, {vr(r0+1)}, {vr(r0+1)}, s{sSel[0]}\nv_perm_b32 {vr(o0+3)}, {vr(f0)}, {vr(r0+1)}, s{sSel[2]}")
    a(f"v_cmp_gt_u32 vcc, 32, {vr(vl)}\ns_nop 1")
    for e in range(4): a(f"v_cndmask_b32 {vr(o0+e)}, {vr(o0+e)}, {vr(r0+e)}, vcc")
    r1, f1, o1 = R[1], vF[1], o[1]
    a(f"v_cndmask_b32 {vr(vt0)}, {vr(r1+3)}, {vr(r1+2)}, vcc")
    a(f"v_perm_b32 {vr(o1)}, {vr(vt0)}, {vr(vt0)}, s{sSel[0]}\nv_mov_b32 {vr(o1+1)}, {vr(vt0)}\nv_perm_b32 {vr(o1+2)}, {vr(vt0)}, {vr(vt0)}, s{sSel[1]}\nv_perm_b32 {vr(o1+3)}, {vr(f1)}, {vr(f1)}, s{sSel[0]}")
    a(f"s_branch {lwe}")
    a.label(lw1)
    a(f"v_lshrrev_b32 {vr(vt1)}, 5, {vr(vl)}\nv_lshlrev_b32 {vr(vt1)}, 4, {vr(vt1)}\nv_and_b32 {vr(vt2)}, 1, {vr(vl)}\nv_cmp_eq_u32 vcc, 0, {vr(vt2)}")
    for k in range(2):
        a(f"v_lshrrev_b32 {vr(vt0)}, {vr(vt1)}, {vr(R[k]+k)}")
        a(f"v_perm_b32 {vr(o[k])}, {vr(vt0)}, {vr(vt0)}, s{sSel[0]}\nv_mov_b32 {vr(o[k]+1)}, {vr(o[k])}\nv_perm_b32 {vr(o[k]+3)}, {vr(vF[k])}, {vr(vF[k])}, s{sSel[0]}")
        a(f"v_cndmask_b32 {vr(vt3)}, {vr(vF[k])}, {vr(vt0)}, vcc\nv_perm_b32 {vr(o[k]+2)}, {vr(vF[k])}, {vr(vt3)}, s{sSel[3]}")
    a.label(lwe)
    vKw = V.alloc()
    a(f"v_lshlrev_b32 {vr(vKw)}, 4, {vr(vp)}\nv_add_u32 {vr(vKw)}, s{sKb}, {vr(vKw)}\nv_add_u32 {vr(vKw)}, 32, {vr(vKw)}")
    a(f"ds_write_b128 {vr(vKw)}, {vr(o[0],4)}\nds_write_b128 {vr(vKw)}, {vr(o[1],4)} offset:1024")
    a("s_waitcnt vmcnt(0)")
    tag_check_loop(a, [(vFl, vFl+1)], ld_xf, sN, st[2])
    vU = [V.alloc(4,4), V.alloc(4,4)]
    a(f"s_lshl_b32 s{st[0]}, s{swi}, 6\nv_add_u32 {vr(vt0)}, s{st[0]}, {vr(vl)}\nv_lshrrev_b32 {vr(vt1)}, 2, {vr(vt0)}\nv_mul_u32_u24 {vr(vt1)}, 57344, {vr(vt1)}\nv_and_b32 {vr(vt2)}, 3, {vr(vt0)}\nv_lshl_add_u32 {vr(vt1)}, {vr(vt2)}, 5, {vr(vt1)}")
    a(f"s_lshl_b32 s{st[0]}, s{sa}, 8\ns_lshl_b32 s{st[1]}, s{sch}, 7\ns_add_u32 s{st[0]}, s{st[0]}, s{st[1]}\ns_add_u32 s{st[0]}, s{st[0]}, {WS_XNT}")
    for k in range(2): a(f"buffer_load_dwordx4 {vr(vU[k],4)}, {vr(vt1)}, {sr(sWS,4)}, s{st[0]} offen offset:{16*k} sc1")
    vUw = V.alloc()
    a(f"v_lshlrev_b32 {vr(vUw)}, 5, {vr(vt0)}\ns_mul_i32 s{st[0]}, s{sch}, {USZ}\ns_add_u32 s{st[0]}, s{st[0]}, {L_U+512}\nv_add_u32 {vr(vUw)}, s{st[0]}, {vr(vUw)}")
    ST.stamp()
    a("s_waitcnt lgkmcnt(0)\ns_barrier")
    m0 = [V.alloc(2,2), V.alloc(2,2)]; cc_ = [(V.alloc(4,4), V.alloc(4,4), V.alloc(4,4)) for _ in range(2)]
    a(f"v_add_u32 {vr(vt0)}, -8, {vr(vKw)}\nds_read_b64 {vr(m0[0],2)}, {vr(vt0)}\nds_read_b64 {vr(m0[1],2)}, {vr(vt0)} offset:1024")
    for k in range(2):
        oo = o[k]; mm = m0[k]; c1, c2, c3 = cc_[k]
        a(f"v_alignbit_b32 {vr(c1+1)}, {vr(oo+1)}, {vr(oo)}, 16\nv_alignbit_b32 {vr(c1+2)}, {vr(oo+2)}, {vr(oo+1)}, 16\nv_alignbit_b32 {vr(c1+3)}, {vr(oo+3)}, {vr(oo+2)}, 16")
        a(f"v_mov_b32 {vr(c2+1)}, {vr(oo)}\nv_mov_b32 {vr(c2+2)}, {vr(oo+1)}\nv_mov_b32 {vr(c2+3)}, {vr(oo+2)}")
        a(f"v_mov_b32 {vr(c3+2)}, {vr(c1+1)}\nv_mov_b32 {vr(c3+3)}, {vr(c1+2)}")
        if k == 0: a("s_waitcnt lgkmcnt(0)")
        a(f"v_alignbit_b32 {vr(c1)}, {vr(oo)}, {vr(mm+1)}, 16\nv_mov_b32 {vr(c2)}, {vr(mm+1)}\nv_alignbit_b32 {vr(c3)}, {vr(mm+1)}, {vr(mm)}, 16\nv_mov_b32 {vr(c3+1)}, {vr(c1)}")
        a(f"ds_write_b128 {vr(vKw)}, {vr(c1,4)} offset:{KS+1024*k}\nds_write_b128 {vr(vKw)}, {vr(c2,4)} offset:{2*KS+1024*k}\nds_write_b128 {vr(vKw)}, {vr(c3,4)} offset:{3*KS+1024*k}")
    a("s_waitcnt vmcnt(0)")
    a(f"ds_write_b128 {vr(vUw)}, {vr(vU[0],4)}\nds_write_b128 {vr(vUw)}, {vr(vU[1],4)} offset:16")
    vKA = V.alloc(); vKB = V.alloc(); vYo = V.alloc(); vXw = V.alloc(); vXr = V.alloc()
    a(f"v_bfe_u32 {vr(vt0)}, {vr(vl)}, 2, 2\nv_mul_u32_u24 {vr(vt0)}, {KS}, {vr(vt0)}\nv_and_b32 {vr(vt1)}, 3, {vr(vl)}\nv_lshl_add_u32 {vr(vt0)}, {vr(vt1)}, 3, {vr(vt0)}")
    a(f"v_lshrrev_b32 {vr(vt1)}, 5, {vr(vl)}\nv_lshl_add_u32 {vr(vt0)}, {vr(vt1)}, 5, {vr(vt0)}\nv_bfe_u32 {vr(vt2)}, {vr(vl)}, 4, 1\nv_lshlrev_b32 {vr(vt2)}, 4, {vr(vt2)}\nv_sub_u32 {vr(vt0)}, {vr(vt0)}, {vr(vt2)}")
    a(f"s_lshl_b32 s{st[0]}, s{swi}, 8\ns_add_u32 s{st[1]}, s{st[0]}, s{sKb}\ns_add_u32 s{st[1]}, s{st[1]}, {32-8}\nv_add_u32 {vr(vKA)}, s{st[1]}, {vr(vt0)}")
    a(f"v_and_b32 {vr(vt0)}, 15, {vr(vl)}\nv_lshlrev_b32 {vr(vt0)}, 5, {vr(vt0)}\nv_lshlrev_b32 {vr(vt1)}, 5, {vr(vt1)}\nv_sub_u32 {vr(vt0)}, {vr(vt0)}, {vr(vt1)}\nv_add_u32 {vr(vt0)}, {vr(vt0)}, {vr(vt2)}")
    a(f"s_mul_i32 s{st[1]}, s{sch}, {USZ}\ns_add_u32 s{st[1]}, s{st[1]}, {L_U+512}\ns_sub_u32 s{st[1]}, s{st[1]}, s{st[0]}\nv_add_u32 {vr(vKB)}, s{st[1]}, {vr(vt0)}")
    a(f"v_bfe_u32 {vr(vt2)}, {vr(vl)}, 2, 2\nv_mul_u32_u24 {vr(vt2)}, 57344, {vr(vt2)}\nv_and_b32 {vr(vt3)}, 3, {vr(vl)}\nv_lshl_add_u32 {vr(vt2)}, {vr(vt3)}, 5, {vr(vt2)}\nv_lshrrev_b32 {vr(vt3)}, 4, {vr(vl)}\nv_lshl_add_u32 {vr(vYo)}, {vr(vt3)}, 3, {vr(vt2)}")
    a(f"v_lshlrev_b32 {vr(vt0)}, 4, {vr(vl)}\ns_lshl_b32 s{st[0]}, s{sw}, 12\ns_add_u32 s{st[0]}, s{st[0]}, {L_X}\nv_add_u32 {vr(vXw)}, s{st[0]}, {vr(vt0)}\ns_xor_b32 s{st[0]}, s{sw}, 1\ns_lshl_b32 s{st[0]}, s{st[0]}, 12\ns_add_u32 s{st[0]}, s{st[0]}, {L_X}\nv_add_u32 {vr(vXr)}, s{st[0]}, {vr(vt0)}")
    A = V.alloc(32,4); B = V.alloc(32,4); acc = V.alloc(32,4); own = V.alloc(16,4)
    for e in range(32): a(f"v_mov_b32 {vr(acc+e)}, 0")
    srs = S.alloc()
    a(f"s_mov_b32 s{srs}, 4")
    a("s_waitcnt lgkmcnt(0)\ns_barrier")
    if opts.get("auxfine"): ST.stamp()
    lC = a.newlabel("AX_C")
    a.label(lC)
    order = []
    def pairs(gg):
        prs = [(gg, h) for h in range(gg+1)] + [(ga, gg) for ga in range(gg)]
        for (ga, hb) in prs:
            if ga + hb <= 7:
                c = ga + hb; order.append((ga,hb))
                a(f"v_mfma_f32_16x16x32_bf16 {vr(acc+4*c,4)}, {vr(A+4*ga,4)}, {vr(B+4*hb,4)}, {vr(acc+4*c,4)}")
    def rd(g):
        a(f"ds_read_b64_tr_b16 {vr(A+4*g,2)}, {vr(vKA)} offset:{512*g + 8}")
        a(f"ds_read_b64_tr_b16 {vr(A+4*g+2,2)}, {vr(vKA)} offset:{512*g}")
        a(f"ds_read_b128 {vr(B+4*g,4)}, {vr(vKB)} offset:{512*g}")
    rd(0); rd(1)
    for g in range(2, 8):
        rd(g)
        a("s_waitcnt lgkmcnt(6)")
        pairs(g-2)
    a("s_waitcnt lgkmcnt(3)"); pairs(6)
    a("s_waitcnt lgkmcnt(0)"); pairs(7)
    assert len(order) == 36
    a(f"v_add_u32 {vr(vKA)}, 64, {vr(vKA)}\nv_add_u32 {vr(vKB)}, -64, {vr(vKB)}\ns_sub_u32 s{srs}, s{srs}, 1\ns_cmp_lg_u32 s{srs}, 0\ns_cbranch_scc1 {lC}")
    if opts.get("auxfine"): ST.stamp()
    lx1 = a.newlabel("AX_x1"); lxe = a.newlabel("AX_xe")
    a(f"s_nop 7\ns_cmp_eq_u32 s{swi}, 1\ns_cbranch_scc1 {lx1}")
    for c in range(4): a(f"ds_write_b128 {vr(vXw)}, {vr(acc+16+4*c,4)} offset:{1024*c}")
    for e in range(16): a(f"v_mov_b32 {vr(own+e)}, {vr(acc+e)}")
    a(f"s_branch {lxe}")
    a.label(lx1)
    for c in range(4): a(f"ds_write_b128 {vr(vXw)}, {vr(acc+4*c,4)} offset:{1024*c}")
    for e in range(16): a(f"v_mov_b32 {vr(own+e)}, {vr(acc+16+e)}")
    a.label(lxe)
    sY = S.alloc()
    a(f"s_lshl_b32 s{sY}, s{sa}, 8\ns_lshl_b32 s{st[1]}, s{sch}, 7\ns_add_u32 s{sY}, s{sY}, s{st[1]}\ns_mul_i32 s{st[1]}, s{swi}, {16*57344}\ns_add_u32 s{sY}, s{sY}, s{st[1]}\ns_add_u32 s{sY}, s{sY}, {WS_Y}")
    a("s_waitcnt lgkmcnt(0)\ns_barrier")
    for c in range(4): a(f"ds_read_b128 {vr(A+4*c,4)}, {vr(vXr)} offset:{1024*c}")
    for c in range(4):
        a(f"s_waitcnt lgkmcnt({3-c})")
        for e in range(4): a(f"v_add_f32 {vr(A+4*c+e)}, {vr(A+4*c+e)}, {vr(own+4*c+e)}")
        a(f"v_cvt_pk_bf16_f32 {vr(A+4*c)}, {vr(A+4*c)}, {vr(A+4*c+1)}\nv_cvt_pk_bf16_f32 {vr(A+4*c+1)}, {vr(A+4*c+2)}, {vr(A+4*c+3)}")
        a(f"buffer_store_dwordx2 {vr(A+4*c,2)}, {vr(vYo)}, {sr(sWS,4)}, s{sY} offen sc1")
        if c < 3: a(f"s_add_u32 s{sY}, s{sY}, {4*57344}")
    if opts.get("auxfine"): ST.stamp()
    ST.stamp()
    a("s_waitcnt vmcnt(0)\ns_barrier")
    a(f"s_lshl_b32 s{st[0]}, s{sa}, 3\ns_add_u32 s{st[0]}, s{st[0]}, {F_YF}")
    set_flag(a, vt, sWS, st[0], sN, vl, sw)
    a("s_waitcnt vmcnt(0)")
    ST.stamp()
    ST.flush(sWS, WS_STAMP, vt0, 2*((st[0]+1)//2), 2)
    a(f"s_branch {end}")
    return V.hi, S.hi
```

```python
from asm import *
from common import *
from roles_small import nonce_issue, nonce_finish, tag_check_loop, set_flag

def role_g(a, s0, ST, end, depth=5, opts={}):
    depth = opts.get('depth', depth)
    V = Regs("v", 1, 256); S = Regs("s", s0, 96)
    sX = S.alloc(4,4); sW1 = S.alloc(4,4); sWS = S.alloc(4,4); sB1 = S.alloc(4,4); sDB = S.alloc(4,4)
    pB2 = S.alloc(2,2); pO = S.alloc(2,2); sN = S.alloc(2,2); sW2 = S.alloc(4,4)
    sw = S.alloc(); swf = S.alloc(); swt = S.alloc(); si = S.alloc(); sj = S.alloc(); sid = S.alloc()
    st = [S.alloc() for _ in range(6)]
    a(f"s_setprio {opts.get('gprio', 3)}")
    a(f"s_load_dwordx2 {sr(sX,2)}, s[0:1], 0\ns_load_dwordx2 {sr(sW1,2)}, s[0:1], 80")
    vl = V.alloc(); vt = V.alloc(4,2); vt0, vt1, vt2, vt3 = vt, vt+1, vt+2, vt+3
    a(f"v_lshrrev_b32 {vr(vt0)}, 6, v0\nv_and_b32 {vr(vl)}, 63, v0\nv_readfirstlane_b32 s{sw}, {vr(vt0)}")
    a(f"s_sub_u32 s{sid}, s2, {ID_G}")
    a(f"s_and_b32 s{st[0]}, s{sid}, 7\ns_lshr_b32 s{st[1]}, s{sid}, 3")
    a(f"s_lshr_b32 s{st[2]}, s{st[0]}, 1\ns_lshl_b32 s{st[2]}, s{st[2]}, 2\ns_and_b32 s{st[3]}, s{st[1]}, 3\ns_add_u32 s{si}, s{st[2]}, s{st[3]}")
    a(f"s_and_b32 s{st[2]}, s{st[0]}, 1\ns_mul_i32 s{st[2]}, s{st[2]}, 7\ns_lshr_b32 s{st[3]}, s{st[1]}, 2\ns_add_u32 s{sj}, s{st[2]}, s{st[3]}")
    vXo = [V.alloc(), V.alloc()]; vWo = [V.alloc(), V.alloc()]
    a(f"v_lshrrev_b32 {vr(vt0)}, 3, {vr(vl)}\nv_and_b32 {vr(vt1)}, 7, {vr(vl)}\nv_lshrrev_b32 {vr(vt2)}, 4, {vr(vl)}\nv_xor_b32 {vr(vt1)}, {vr(vt1)}, {vr(vt2)}")
    a(f"s_lshl_b32 s{st[0]}, s{sw}, 4\ns_lshl_b32 s{st[1]}, s{si}, 7\ns_add_u32 s{st[0]}, s{st[0]}, s{st[1]}")
    a(f"v_add_u32 {vr(vt0)}, s{st[0]}, {vr(vt0)}\nv_mul_u32_u24 {vr(vt0)}, 896, {vr(vt0)}\nv_lshl_add_u32 {vr(vXo[0])}, {vr(vt1)}, 4, {vr(vt0)}")
    a(f"v_xor_b32 {vr(vt1)}, 4, {vr(vt1)}\nv_lshl_add_u32 {vr(vXo[1])}, {vr(vt1)}, 4, {vr(vt0)}\nv_add_u32 {vr(vXo[1])}, {8*896}, {vr(vXo[1])}")
    sM0 = S.alloc(); sSo = S.alloc()
    XR, WR = 0, 49152
    a(f"s_lshl_b32 s{sM0}, s{sw}, 11")
    a(f"s_and_b32 s{swf}, s{sw}, 1\ns_lshr_b32 s{swt}, s{sw}, 1")
    ROT = opts.get("rot", 0)
    sRot = [S.alloc() for _ in range(7)]
    if ROT:
        a(f"s_and_b32 s{st[2]}, s{si}, 3\ns_lshl_b32 s{st[2]}, s{st[2]}, 1\ns_add_u32 s{st[2]}, s{st[2]}, s{sj}")
        a(f"s_mul_i32 s{st[3]}, s{st[2]}, 37\ns_lshr_b32 s{st[3]}, s{st[3]}, 8\ns_mul_i32 s{st[3]}, s{st[3]}, 7\ns_sub_u32 s{st[2]}, s{st[2]}, s{st[3]}")
        a(f"s_lshl_b32 s{sRot[0]}, s{st[2]}, 7")
        a(f"s_add_u32 s{sRot[1]}, s{sRot[0]}, 128\ns_cmp_eq_u32 s{sRot[1]}, 896\ns_cselect_b32 s{sRot[1]}, 0, s{sRot[1]}")
    if opts.get("prost"): ST.stamp()
    a("s_waitcnt lgkmcnt(0)")
    if opts.get("prost"): ST.stamp()
    srd_fix(a, sX, X_BYTES); srd_fix(a, sW1, W_BYTES)
    vN = V.alloc(2,2); vz = V.alloc(); vB1 = V.alloc()
    vm = []
    def dma_x(c, half):
        o = XR + (c % 3)*16384 + half*8192
        so = f"s_add_u32 s{sSo}, s{sRot[c]}, {half*64*896}" if ROT else f"s_mov_b32 s{sSo}, {c*128 + half*64*896}"
        return [(f"s_add_u32 m0, s{sM0}, {o+1024*u}", so, f"buffer_load_dwordx4 {vr(vXo[u])}, {sr(sX,4)}, s{sSo} offen lds", ("x",c)) for u in range(2)]
    def dma_w(s_):
        o = WR + (s_ % 4)*8192
        so = f"s_mul_i32 s{sSo}, s{sRot[s_//2]}, 1792\ns_add_u32 s{sSo}, s{sSo}, {(s_%2)*114688}" if ROT else f"s_mov_b32 s{sSo}, {s_*114688}"
        return [(f"s_add_u32 m0, s{sM0}, {o+1024*u}", so, f"buffer_load_dwordx4 {vr(vWo[u])}, {sr(sW1,4)}, s{sSo} offen lds", ("w",s_)) for u in range(2)]
    def emit_dma(d):
        a(d[0]); a(d[1]); a(d[2]); vm.append(d[3])
    def wait_tags(tags):
        last = max(i for i,e in enumerate(vm) if e in tags)
        a(f"s_waitcnt vmcnt({len(vm)-1-last})")
    vA = [V.alloc(), V.alloc()]; vB = [V.alloc() for _ in range(4)]
    vT = V.alloc()
    vx = V.alloc(8,2); vb2 = V.alloc(8,2); vXo2 = V.alloc()
    persist = V.mark()
    acc = V.alloc(64,4)
    fill = Asm(); f = fill
    vg = vt0; vr_ = vt1; vcq = vt2
    f(f"v_lshrrev_b32 {vr(vg)}, 4, {vr(vl)}\nv_bfe_u32 {vr(vr_)}, {vr(vl)}, 2, 2\nv_and_b32 {vr(vcq)}, 3, {vr(vl)}")
    f(f"v_and_b32 {vr(vt3)}, 1, {vr(vg)}\nv_lshlrev_b32 {vr(vt3)}, 1, {vr(vt3)}\nv_lshrrev_b32 {vr(vA[0])}, 1, {vr(vcq)}\nv_add_u32 {vr(vt3)}, {vr(vt3)}, {vr(vA[0])}")
    f(f"s_lshl_b32 s{st[0]}, s{swf}, 3\nv_add_u32 {vr(vt3)}, s{st[0]}, {vr(vt3)}")
    f(f"v_lshlrev_b32 {vr(vA[0])}, 2, {vr(vr_)}\nv_xor_b32 {vr(vt3)}, {vr(vt3)}, {vr(vA[0])}")
    f(f"v_lshlrev_b32 {vr(vt3)}, 4, {vr(vt3)}")
    f(f"v_and_b32 {vr(vcq)}, 1, {vr(vcq)}\nv_lshl_add_u32 {vr(vt3)}, {vr(vcq)}, 3, {vr(vt3)}")
    f(f"v_lshrrev_b32 {vr(vg)}, 1, {vr(vg)}\nv_lshl_add_u32 {vr(vg)}, {vr(vg)}, 3, {vr(vr_)}")
    f(f"v_lshl_add_u32 {vr(vt3)}, {vr(vg)}, 8, {vr(vt3)}")
    f(f"v_add_u32 {vr(vA[0])}, {WR}, {vr(vt3)}\nv_xor_b32 {vr(vA[1])}, 64, {vr(vA[0])}")
    f(f"v_and_b32 {vr(vT)}, 31, {vr(vl)}\ns_lshl_b32 s{st[0]}, s{swt}, 6\nv_add_u32 {vr(vT)}, s{st[0]}, {vr(vT)}")
    f(f"v_bfe_u32 {vr(vt0)}, {vr(vT)}, 1, 3\nv_lshrrev_b32 {vr(vt1)}, 5, {vr(vl)}\nv_xor_b32 {vr(vt0)}, {vr(vt0)}, {vr(vt1)}\nv_lshlrev_b32 {vr(vt0)}, 4, {vr(vt0)}")
    f(f"v_lshl_add_u32 {vr(vB[0])}, {vr(vT)}, 7, {vr(vt0)}")
    for k in range(1,4): f(f"v_xor_b32 {vr(vB[k])}, {32*k}, {vr(vB[0])}")
    for i in range(64): f(f"v_mov_b32 {vr(acc+i)}, 0")
    FL = [l.strip() for l in fill.lines]
    if ROT:
        FL = [f"s_add_u32 s{sRot[n]}, s{sRot[n-1]}, 128\ns_cmp_eq_u32 s{sRot[n]}, 896\ns_cselect_b32 s{sRot[n]}, 0, s{sRot[n]}" for n in range(2,7)] + FL
    def take(n):
        for _ in range(n):
            if FL: a(FL.pop(0))
    pro = dma_x(0,0) + dma_x(0,1) + dma_w(0) + dma_w(1) + dma_x(1,0) + dma_x(1,1) + dma_w(2)
    for n, d in enumerate(pro):
        emit_dma(d)
        if n == 1:
            a(f"s_load_dwordx2 {sr(sB1,2)}, s[0:1], 88\ns_load_dwordx2 {sr(sWS,2)}, s[0:1], 128\ns_load_dwordx2 {sr(sDB,2)}, s[0:1], 120")
            a(f"s_load_dwordx2 {sr(pB2,2)}, s[0:1], 104\ns_load_dwordx2 {sr(pO,2)}, s[0:1], 112\ns_load_dwordx2 {sr(sW2,2)}, s[0:1], 96")
            a(f"v_and_b32 {vr(vt1)}, 15, {vr(vl)}\nv_lshlrev_b32 {vr(vt3)}, 2, {vr(vt2)}\nv_xor_b32 {vr(vt1)}, {vr(vt1)}, {vr(vt3)}")
            a(f"s_lshl_b32 s{st[0]}, s{sw}, 3\nv_add_u32 {vr(vt2)}, s{st[0]}, {vr(vt2)}\nv_mul_u32_u24 {vr(vt2)}, 3584, {vr(vt2)}\nv_lshl_add_u32 {vr(vWo[0])}, {vr(vt1)}, 4, {vr(vt2)}")
            a(f"s_lshl_b32 s{st[1]}, s{sj}, 8\nv_add_u32 {vr(vWo[0])}, s{st[1]}, {vr(vWo[0])}\nv_add_u32 {vr(vWo[1])}, 14336, {vr(vWo[0])}")
        if n == 5: a("s_waitcnt lgkmcnt(0)")
        if n >= 6: take(10)
        if n == 5:
            if opts.get("prost"): ST.stamp()
            srd_fix(a, sDB, 256); srd_fix(a, sB1, 3584)
            nonce_issue(a, vN, vz, sDB); vm.append("n")
            a(f"v_and_b32 {vr(vB1)}, 31, {vr(vl)}\nv_lshlrev_b32 {vr(vB1)}, 2, {vr(vB1)}\ns_lshl_b32 s{st[4]}, s{sj}, 8\ns_lshl_b32 s{st[5]}, s{swf}, 7\ns_add_u32 s{st[4]}, s{st[4]}, s{st[5]}")
            a(f"buffer_load_dword {vr(vB1)}, {vr(vB1)}, {sr(sB1,4)}, s{st[4]} offen"); vm.append("b")
    take(1000)
    srd_fix(a, sWS, WS_SIZE); srd_fix(a, sW2, W_BYTES)
    if opts.get("tlb", 0):
        vtl = V.alloc(2,2)
        a(f"v_min_u32 {vr(vt0)}, 6, {vr(vl)}\nv_lshlrev_b32 {vr(vt0)}, 21, {vr(vt0)}\nbuffer_load_dword {vr(vtl)}, {vr(vt0)}, {sr(sWS,4)}, 0 offen"); vm.append("t")
        a(f"v_mov_b32 {vr(vt0)}, 0\nbuffer_load_dword {vr(vtl+1)}, {vr(vt0)}, {sr(sW2,4)}, 0 offen"); vm.append("t")
    frbase = V.alloc(32,4)
    fr = [dict(A=[frbase+16*k, frbase+16*k+4], B=[frbase+16*k+8, frbase+16*k+12]) for k in range(2)]
    def rd_list(s_, ks, k):
        if opts.get('g1_nords'): return ["s_nop 0"]*6
        f_ = fr[k]; L = []
        oa = (s_ % 4)*8192 + ks*4096; c = s_//2; ks4 = 2*(s_ % 2) + ks; ob = (c % 3)*16384
        for fb in range(2):
            L.append(f"ds_read_b64_tr_b16 {vr(f_['A'][fb],2)}, {vr(vA[fb])} offset:{oa}")
            L.append(f"ds_read_b64_tr_b16 {vr(f_['A'][fb]+2,2)}, {vr(vA[fb])} offset:{oa+1024}")
            L.append(f"ds_read_b128 {vr(f_['B'][fb],4)}, {vr(vB[ks4])} offset:{ob+fb*4096}")
        return L
    def mf(k, fb, tb):
        f_ = fr[k]; d = acc + 32*tb + 16*fb
        if opts.get('g1_nomf'): return
        a(f"v_mfma_f32_32x32x16_bf16 {vr(d,16)}, {vr(f_['A'][fb],4)}, {vr(f_['B'][tb],4)}, {vr(d,16)}")
    ST.stamp()
    wait_tags([("x",0), ("w",0)])
    a("s_barrier")
    ST.stamp()
    for l in rd_list(0, 0, 0): a(l)
    def stage(s_, hook=None):
        last = (s_ == 13)
        R1 = rd_list(s_, 1, 1); R0 = rd_list(s_+1, 0, 0) if not last else []
        D = []
        if not opts.get('g1_nodma'):
            if s_ + 3 <= 13: D += dma_w(s_+3)
            if s_//2 + 2 <= 6: D += dma_x(s_//2 + 2, s_ % 2)
        D = list(D)
        def dm():
            if D: emit_dma(D.pop(0))
        a("s_waitcnt lgkmcnt(3)"); mf(0,0,0)
        a(R1[0]); a(R1[1]); a(R1[2])
        a("s_waitcnt lgkmcnt(4)"); mf(0,1,0)
        a(R1[3]); a(R1[4]); a(R1[5])
        a("s_waitcnt lgkmcnt(6)"); mf(0,0,1)
        dm()
        mf(0,1,1)
        if hook: hook()
        dm()
        a("s_waitcnt lgkmcnt(0)")
        if not last and not opts.get('g1_nodma'):
            wait_tags([("w", s_+1)] + ([("x", (s_+1)//2)] if (s_+1) % 2 == 0 else []))
        mf(1,0,0)
        if not last:
            a("s_barrier")
            if opts.get("stg") and s_ in (3,7,11): ST.stamp()
            a(R0[0]); a(R0[1]); a(R0[2])
        mf(1,1,0)
        if not last: a(R0[3]); a(R0[4]); a(R0[5])
        mf(1,0,1)
        dm()
        mf(1,1,1)
        dm()
    vS = [V.alloc(4,4), V.alloc(4,4)]; vC = V.alloc(4,4); vSo = V.alloc(); vCo = V.alloc()
    stt = S.alloc(); sdt = S.alloc(); sdb = S.alloc(); stb = S.alloc(); sd0 = S.alloc(); st0 = S.alloc()
    vW2f = V.alloc(2,2)
    def ld_stats():
        for tb in range(2):
            a(f"buffer_load_dwordx4 {vr(vS[tb],4)}, {vr(vSo)}, {sr(sWS,4)}, 0 offen offset:{512*tb} sc1")
        a(f"buffer_load_dwordx4 {vr(vC,4)}, {vr(vCo)}, {sr(sWS,4)}, 0 offen sc1")
    def hook_stats():
        a(f"s_lshl_b32 s{st[0]}, s{si}, 7\nv_add_u32 {vr(vSo)}, s{st[0]}, {vr(vT)}\nv_lshlrev_b32 {vr(vSo)}, 4, {vr(vSo)}\nv_add_u32 {vr(vSo)}, {WS_STATS}, {vr(vSo)}")
        a(f"v_and_b32 {vr(vCo)}, 31, {vr(vl)}\ns_lshl_b32 s{st[0]}, s{sj}, 6\ns_lshl_b32 s{st[1]}, s{swf}, 5\ns_add_u32 s{st[0]}, s{st[0]}, s{st[1]}\nv_add_u32 {vr(vCo)}, s{st[0]}, {vr(vCo)}\nv_lshlrev_b32 {vr(vCo)}, 4, {vr(vCo)}\nv_add_u32 {vr(vCo)}, {WS_CS}, {vr(vCo)}")
        ld_stats()
        a(f"s_and_b32 s{st[0]}, s{sid}, 7\ns_lshl_b32 s{st[0]}, s{st[0]}, 2\ns_bfe_u32 s{st[1]}, s{sid}, 0x20003\ns_add_u32 s{stt}, s{st[0]}, s{st[1]}\ns_lshr_b32 s{sdt}, s{sid}, 5\ns_lshr_b32 s{sdb}, s{sw}, 1\ns_and_b32 s{stb}, s{sw}, 1")
        a(f"s_lshl_b32 s{sd0}, s{sdt}, 6\ns_lshl_b32 s{st[0]}, s{sdb}, 5\ns_add_u32 s{sd0}, s{sd0}, s{st[0]}")
        a(f"s_lshl_b32 s{st0}, s{stt}, 6\ns_lshl_b32 s{st[0]}, s{stb}, 5\ns_add_u32 s{st0}, s{st0}, s{st[0]}")
    NST = 3
    for s_ in range(14):
        if s_ == opts.get('ststage', 9):
            def hk():
                hook_stats()
                for _ in range(NST): vm.append("st")
            stage(s_, hk)
        else: stage(s_)
    ST.stamp()
    a("s_waitcnt vmcnt(0)")
    nonce_finish(a, vN, vz, sDB, sN, st[2])
    tag_check_loop(a, [(vS[0]+2, vS[0]+3), (vS[1]+2, vS[1]+3), (vC+2, vC+3)], ld_stats, sN, st[2])
    ST.stamp()
    sTch = S.alloc(); vTch = V.alloc()
    if opts.get("w2touch", 0):
        a(f"s_and_b32 s{st[0]}, s{stt}, 3\ns_mul_i32 s{st[0]}, s{st[0]}, 448\ns_mul_i32 s{st[1]}, s{sw}, 112\ns_add_u32 s{st[0]}, s{st[0]}, s{st[1]}\ns_mul_i32 s{st[0]}, s{st[0]}, 896\ns_lshl_b32 s{st[1]}, s{sdt}, 7\ns_add_u32 s{sTch}, s{st[0]}, s{st[1]}")
        a(f"v_mul_u32_u24 {vr(vTch)}, 896, {vr(vl)}\nv_cmp_gt_u32 vcc, 28, {vr(vl)}\nv_mov_b32 {vr(vt1)}, 0x7ff00000\ns_nop 0\nv_cndmask_b32 {vr(vTch)}, {vr(vt1)}, {vr(vTch)}, vcc")
    sB2 = sB1
    srd(a, sB2, pB2, 896)
    a(f"v_and_b32 {vr(vt0)}, 31, {vr(vl)}\nv_lshrrev_b32 {vr(vt1)}, 5, {vr(vl)}")
    a(f"v_add_u32 {vr(vt2)}, s{st0}, {vr(vt0)}\nv_mul_u32_u24 {vr(vt2)}, 896, {vr(vt2)}\nv_lshl_add_u32 {vr(vt2)}, {vr(vt1)}, 3, {vr(vt2)}\ns_lshl_b32 s{st[0]}, s{sd0}, 1\nv_add_u32 {vr(vXo2)}, s{st[0]}, {vr(vt2)}")
    for g in range(4): a(f"buffer_load_dwordx2 {vr(vx+2*g,2)}, {vr(vXo2)}, {sr(sX,4)}, 0 offen offset:{16*g}")
    a(f"v_lshlrev_b32 {vr(vt2)}, 3, {vr(vt1)}\nv_add_u32 {vr(vt2)}, s{st[0]}, {vr(vt2)}")
    for g in range(4): a(f"buffer_load_dwordx2 {vr(vb2+2*g,2)}, {vr(vt2)}, {sr(sB2,4)}, 0 offen offset:{16*g}")
    a(f"v_and_b32 {vr(vt0)}, 31, {vr(vl)}\nv_lshlrev_b32 {vr(vt0)}, 3, {vr(vt0)}\ns_lshl_b32 s{st[0]}, s{sw}, 10\ns_add_u32 s{st[0]}, s{st[0]}, 16384\nv_add_u32 {vr(vt0)}, s{st[0]}, {vr(vt0)}")
    a(f"ds_write_b64 {vr(vt0)}, {vr(vC,2)}")
    a(f"v_lshlrev_b32 {vr(vt2)}, 16, {vr(vB1)}\nv_and_b32 {vr(vt3)}, 0xffff0000, {vr(vB1)}\nds_write_b64 {vr(vt0)}, {vr(vt2,2)} offset:256")
    vcs = V.alloc(32,4); vb1 = V.alloc(32,4)
    a(f"v_lshrrev_b32 {vr(vt0)}, 5, {vr(vl)}\nv_lshlrev_b32 {vr(vt0)}, 4, {vr(vt0)}\nv_add_u32 {vr(vt0)}, s{st[0]}, {vr(vt0)}")
    for q in range(8):
        a(f"ds_read_b128 {vr(vcs+4*q,4)}, {vr(vt0)} offset:{32*q}\nds_read_b128 {vr(vb1+4*q,4)}, {vr(vt0)} offset:{256+32*q}")
    vHo = V.alloc(); sH = S.alloc()
    a(f"s_lshl_b32 s{st[0]}, s{si}, 2\ns_lshl_b32 s{st[1]}, s{swt}, 1\ns_add_u32 s{st[0]}, s{st[0]}, s{st[1]}\ns_mul_i32 s{st[0]}, s{st[0]}, 113\ns_lshl_b32 s{st[1]}, s{sj}, 3\ns_add_u32 s{st[0]}, s{st[0]}, s{st[1]}\ns_lshl_b32 s{st[1]}, s{swf}, 2\ns_add_u32 s{st[0]}, s{st[0]}, s{st[1]}\ns_lshl_b32 s{sH}, s{st[0]}, 10")
    a(f"v_lshlrev_b32 {vr(vHo)}, 4, {vr(vl)}")
    vK = V.alloc(4,2); vC0 = vK; vC1 = vK+1; vOne = vK+2; vMR = V.alloc(2,2); vMr = vMR; vRs = vMR+1
    a(f"v_mov_b32 {vr(vC0)}, {fhex(GELU_C0)}\nv_mov_b32 {vr(vC1)}, {fhex(GELU_C1)}\nv_mov_b32 {vr(vOne)}, 1.0\nv_mov_b32 {vr(vMr)}, {vr(vS[0])}\nv_mov_b32 {vr(vRs)}, {vr(vS[0]+1)}")
    hv = frbase; p = frbase+8; vH = [frbase+16, frbase+20]
    sIt = S.alloc(); sIa = S.alloc(); sIc = S.alloc()
    a(f"s_mov_b32 s{sIt}, 0\ns_mov_b32 s{sIa}, 0\ns_mov_b32 s{sIc}, 0\ns_waitcnt lgkmcnt(0)")
    gl = a.newlabel("G1_ge")
    a.label(gl)
    for half in range(2):
        a(f"s_set_gpr_idx_on s{sIc}, gpr_idx(SRC1,SRC2)\ns_nop 0")
        for e in range(0,8,2): a(f"v_pk_fma_f32 {vr(hv+e,2)}, {vr(vMR,2)}, {vr(vcs+e,2)}, {vr(vb1+e,2)} op_sel:[0,0,0] op_sel_hi:[0,1,1] neg_lo:[1,0,0] neg_hi:[1,0,0]")
        a(f"s_set_gpr_idx_on s{sIa}, gpr_idx(SRC0)\ns_nop 0")
        for e in range(0,8,2): a(f"v_pk_fma_f32 {vr(hv+e,2)}, {vr(acc+e,2)}, {vr(vMR,2)}, {vr(hv+e,2)} op_sel:[0,1,0] op_sel_hi:[1,1,1]")
        a("s_set_gpr_idx_off\ns_nop 0")
        for e in range(0,8,2): a(f"v_pk_mul_f32 {vr(p+e,2)}, {vr(hv+e,2)}, {vr(hv+e,2)}")
        for e in range(0,8,2): a(f"v_pk_fma_f32 {vr(p+e,2)}, {vr(p+e,2)}, {vr(vK,2)}, {vr(vK,2)} op_sel:[0,1,0] op_sel_hi:[1,1,0]")
        for e in range(0,8,2): a(f"v_pk_mul_f32 {vr(p+e,2)}, {vr(p+e,2)}, {vr(hv+e,2)}")
        for e in range(8): a(f"v_exp_f32 {vr(p+e)}, {vr(p+e)}")
        for e in range(0,8,2): a(f"v_pk_add_f32 {vr(p+e,2)}, {vr(p+e,2)}, {vr(vK+2,2)} op_sel:[0,0] op_sel_hi:[1,0]")
        for e in range(8): a(f"v_rcp_f32 {vr(p+e)}, {vr(p+e)}")
        for e in range(0,8,2): a(f"v_pk_mul_f32 {vr(hv+e,2)}, {vr(hv+e,2)}, {vr(p+e,2)}")
        for q in range(4): a(f"v_cvt_pk_bf16_f32 {vr(vH[half]+q)}, {vr(hv+2*q)}, {vr(hv+2*q+1)}")
        a(f"buffer_store_dwordx4 {vr(vH[half],4)}, {vr(vHo)}, {sr(sWS,4)}, s{sH} offen sc1")
        a(f"s_add_u32 s{sH}, s{sH}, 1024\ns_add_u32 s{sIa}, s{sIa}, 8\ns_add_u32 s{sIc}, s{sIc}, 8")
    if opts.get("w2touch", 0):
        a(f"buffer_load_dword {vr(vW2f)}, {vr(vTch)}, {sr(sW2,4)}, s{sTch} offen\ns_add_u32 s{sTch}, s{sTch}, {28*896}")
    lnt = a.newlabel("G1_nt")
    a(f"s_add_u32 s{sIt}, s{sIt}, 2\ns_cmp_lg_u32 s{sIt}, 4\ns_cbranch_scc1 {lnt}")
    a(f"s_mov_b32 s{sIc}, 0\ns_add_u32 s{sH}, s{sH}, {FSTR-4096}\nv_mov_b32 {vr(vMr)}, {vr(vS[1])}\nv_mov_b32 {vr(vRs)}, {vr(vS[1]+1)}")
    a.label(lnt)
    a(f"s_cmp_lt_u32 s{sIt}, 8\ns_cbranch_scc1 {gl}")
    a(f"s_setprio {opts.get('gprio2', 0)}")
    ST.stamp()
    hiV = V.hi
    V.n = persist
    gA = [V.alloc(), V.alloc()]; gB = [V.alloc(), V.alloc()]; gWo = V.alloc()
    vYo = V.alloc(); vFo = V.alloc(); vFl = V.alloc(2,2); vF2 = V.alloc(2,2); vF2o = V.alloc()
    sO = sW1
    srd(a, sO, pO, X_BYTES)
    LW = 0; WSL = 8; LEAD = opts.get('lead', 6)
    sLW = S.alloc(); sWk = S.alloc()
    a(f"v_lshrrev_b32 {vr(vt0)}, 3, {vr(vl)}\nv_bfe_u32 {vr(vt1)}, {vr(vl)}, 4, 1\nv_lshlrev_b32 {vr(vt1)}, 2, {vr(vt1)}\nv_and_b32 {vr(vt2)}, 7, {vr(vl)}\nv_xor_b32 {vr(vt1)}, {vr(vt1)}, {vr(vt2)}")
    a(f"v_mul_u32_u24 {vr(vt0)}, 896, {vr(vt0)}\nv_lshl_add_u32 {vr(vt0)}, {vr(vt1)}, 4, {vr(vt0)}\ns_lshl_b32 s{st[0]}, s{sdt}, 7\ns_mul_i32 s{st[1]}, s{sw}, {448*896}\ns_add_u32 s{st[0]}, s{st[0]}, s{st[1]}\nv_add_u32 {vr(gWo)}, s{st[0]}, {vr(vt0)}")
    a(f"s_lshl_b32 s{sLW}, s{sw}, 14")
    a(f"v_lshrrev_b32 {vr(vt0)}, 5, {vr(vl)}\nv_lshlrev_b32 {vr(vt0)}, 2, {vr(vt0)}\nv_bfe_u32 {vr(vt1)}, {vr(vl)}, 2, 2\nv_add_u32 {vr(vt0)}, {vr(vt0)}, {vr(vt1)}\nv_lshlrev_b32 {vr(vt0)}, 7, {vr(vt0)}")
    a(f"v_lshrrev_b32 {vr(vt1)}, 1, {vr(vt1)}\nv_xor_b32 {vr(vt1)}, s{sdb}, {vr(vt1)}\nv_lshl_add_u32 {vr(vt0)}, {vr(vt1)}, 6, {vr(vt0)}\nv_bfe_u32 {vr(vt1)}, {vr(vl)}, 4, 1\nv_lshl_add_u32 {vr(vt0)}, {vr(vt1)}, 5, {vr(vt0)}")
    a(f"v_and_b32 {vr(vt1)}, 3, {vr(vl)}\nv_lshl_add_u32 {vr(vt0)}, {vr(vt1)}, 3, {vr(vt0)}\nv_add_u32 {vr(gA[0])}, s{sLW}, {vr(vt0)}\nv_xor_b32 {vr(gA[1])}, 64, {vr(gA[0])}")
    a(f"v_lshlrev_b32 {vr(vt0)}, 4, {vr(vl)}\ns_mul_i32 s{st[0]}, s{sw}, {28*1024}")
    for i in range(2):
        a(f"s_xor_b32 s{st[1]}, s{stb}, {i}\ns_lshl_b32 s{st[2]}, s{stt}, 1\ns_add_u32 s{st[1]}, s{st[1]}, s{st[2]}\ns_mul_i32 s{st[1]}, s{st[1]}, {FSTR}\ns_add_u32 s{st[1]}, s{st[1]}, s{st[0]}")
        a(f"v_add_u32 {vr(gB[i])}, s{st[1]}, {vr(vt0)}")
    a(f"v_and_b32 {vr(vt0)}, 31, {vr(vl)}\nv_lshrrev_b32 {vr(vt1)}, 5, {vr(vl)}")
    a(f"v_and_b32 {vr(vt2)}, 30, {vr(vt0)}\nv_lshlrev_b32 {vr(vt2)}, 1, {vr(vt2)}\nv_lshl_add_u32 {vr(vt2)}, {vr(vt1)}, 9, {vr(vt2)}")
    a(f"s_mul_i32 s{st[0]}, s{stt}, 57344\ns_lshl_b32 s{st[1]}, s{sd0}, 7\ns_add_u32 s{st[0]}, s{st[0]}, s{st[1]}\ns_lshl_b32 s{st[1]}, s{stb}, 6\ns_add_u32 s{st[0]}, s{st[0]}, s{st[1]}\ns_add_u32 s{st[0]}, s{st[0]}, {WS_Y}")
    a(f"v_add_u32 {vr(vYo)}, s{st[0]}, {vr(vt2)}")
    a(f"v_add_u32 {vr(vt2)}, s{sd0}, {vr(vt0)}\nv_lshrrev_b32 {vr(vt2)}, 1, {vr(vt2)}\nv_lshlrev_b32 {vr(vt2)}, 3, {vr(vt2)}\nv_add_u32 {vr(vF2o)}, {F_YF}, {vr(vt2)}")
    a(f"s_lshr_b32 s{st[0]}, s{stt}, 1\ns_mul_i32 s{st[0]}, s{st[0]}, {14*128}\ns_add_u32 s{st[0]}, s{st[0]}, {WS_HF}\nv_min_u32 {vr(vt2)}, 13, {vr(vl)}\nv_lshlrev_b32 {vr(vt2)}, 7, {vr(vt2)}\nv_add_u32 {vr(vt2)}, s{st[0]}, {vr(vt2)}")
    a(f"v_mov_b32 {vr(vFo)}, {vr(vt2)}")
    vm2 = []
    def w_dma(k, u):
        a(f"s_add_u32 m0, s{sLW}, {(k % WSL)*2048 + 1024*u}\ns_mov_b32 s{sWk}, {(16*k + 8*u)*896}\nbuffer_load_dwordx4 {vr(gWo)}, {sr(sW2,4)}, s{sWk} offen lds"); vm2.append(("w",k))
    a("s_waitcnt vmcnt(0)\ns_barrier")
    lpub = a.newlabel("G_pub"); lpol = a.newlabel("G_pol")
    a(f"s_cmp_lg_u32 s{sw}, 3\ns_cbranch_scc1 {lpub}")
    a(f"s_mul_i32 s{st[0]}, s{si}, 14\ns_add_u32 s{st[0]}, s{st[0]}, s{sj}\ns_lshl_b32 s{st[0]}, s{st[0]}, 7\ns_add_u32 s{st[0]}, s{st[0]}, {WS_HF}")
    a(f"v_mov_b32 {vr(vt0)}, s{sN}\nv_mov_b32 {vr(vt1)}, s{sN+1}\nv_cmp_eq_u32 vcc, 0, {vr(vl)}\nv_mov_b32 {vr(vt2)}, 0x7ff00000\nv_mov_b32 {vr(vt3)}, 0\ns_nop 0\nv_cndmask_b32 {vr(vt2)}, {vr(vt2)}, {vr(vt3)}, vcc")
    a(f"buffer_store_dwordx2 {vr(vt,2)}, {vr(vt2)}, {sr(sWS,4)}, s{st[0]} offen sc1")
    a.label(lpub)
    for k in range(LEAD):
        w_dma(k, 0); w_dma(k, 1)
    ST.stamp()
    if opts.get("skip_g2"): a(f"s_waitcnt vmcnt(0)\ns_branch {end}")
    def ld_hf(): a(f"buffer_load_dwordx2 {vr(vFl,2)}, {vr(vFo)}, {sr(sWS,4)}, 0 offen sc1")
    base = V.alloc(16,4); tmp = V.alloc(4,4); vsh = V.alloc()
    def base0_lines():
        B = Asm()
        for g in range(4):
            B(f"v_lshlrev_b32 {vr(base+4*g)}, 16, {vr(vx+2*g)}\nv_and_b32 {vr(base+4*g+1)}, 0xffff0000, {vr(vx+2*g)}\nv_lshlrev_b32 {vr(base+4*g+2)}, 16, {vr(vx+2*g+1)}\nv_and_b32 {vr(base+4*g+3)}, 0xffff0000, {vr(vx+2*g+1)}")
            B(f"v_lshlrev_b32 {vr(tmp)}, 16, {vr(vb2+2*g)}\nv_and_b32 {vr(tmp+1)}, 0xffff0000, {vr(vb2+2*g)}\nv_lshlrev_b32 {vr(tmp+2)}, 16, {vr(vb2+2*g+1)}\nv_and_b32 {vr(tmp+3)}, 0xffff0000, {vr(vb2+2*g+1)}")
            for i in range(4): B(f"v_add_f32 {vr(base+4*g+i)}, {vr(base+4*g+i)}, {vr(tmp+i)}")
        B(f"v_and_b32 {vr(vsh)}, 1, {vr(vl)}\nv_xor_b32 {vr(vsh)}, 1, {vr(vsh)}\nv_lshlrev_b32 {vr(vsh)}, 4, {vr(vsh)}")
        return [l.strip() for l in B.lines]
    lnt2 = a.newlabel("G_nt2")
    if opts.get("w2wait", 0):
        a(f"s_cmp_eq_u32 s{sw}, 0\ns_cbranch_scc1 {lnt2}")
        a(f"s_and_b32 s{st[0]}, s{stt}, 3\ns_mul_i32 s{st[0]}, s{st[0]}, 448\ns_sub_u32 s{st[1]}, s{sw}, 1\ns_mul_i32 s{st[1]}, s{st[1]}, 150\ns_add_u32 s{st[0]}, s{st[0]}, s{st[1]}\ns_mul_i32 s{st[0]}, s{st[0]}, 896\ns_lshl_b32 s{st[1]}, s{sdt}, 7\ns_add_u32 s{st[0]}, s{st[0]}, s{st[1]}")
        a(f"v_mul_u32_u24 {vr(vt0)}, 896, {vr(vl)}")
        for q in range(3):
            if q == 2: a(f"v_cmp_gt_u32 vcc, 22, {vr(vl)}\nv_mov_b32 {vr(vt1)}, 0x7ff00000\ns_nop 0\nv_cndmask_b32 {vr(vt0)}, {vr(vt1)}, {vr(vt0)}, vcc")
            a(f"buffer_load_dword {vr(tmp+q)}, {vr(vt0)}, {sr(sW2,4)}, s{st[0]} offen\ns_add_u32 s{st[0]}, s{st[0]}, {64*896}")
        a("s_waitcnt vmcnt(0)")
        a.label(lnt2)
    for l in base0_lines(): a(l)
    a(f"s_cmp_lg_u32 s{sw}, 0\ns_cbranch_scc1 {lpol}")
    if opts.get("ppoll", 1):
        vFl2 = V.alloc(2,2)
        lp0 = a.newlabel("G_pp"); lp1 = a.newlabel("G_ppo")
        def chk(r):
            a(f"v_cmp_ne_u32 vcc, s{sN}, {vr(r)}\ns_nop 1\ns_mov_b64 s[98:99], vcc\nv_cmp_ne_u32 vcc, s{sN+1}, {vr(r+1)}\ns_nop 1\ns_or_b64 s[98:99], s[98:99], vcc\ns_cmp_eq_u64 s[98:99], 0\ns_cbranch_scc1 {lp1}")
        a(f"s_mov_b32 s{st[2]}, {SPIN}")
        ld_hf()
        a.label(lp0)
        a(f"buffer_load_dwordx2 {vr(vFl2,2)}, {vr(vFo)}, {sr(sWS,4)}, 0 offen sc1\ns_waitcnt vmcnt(1)")
        chk(vFl)
        a(f"buffer_load_dwordx2 {vr(vFl,2)}, {vr(vFo)}, {sr(sWS,4)}, 0 offen sc1\ns_waitcnt vmcnt(1)")
        chk(vFl2)
        a(f"s_sub_u32 s{st[2]}, s{st[2]}, 1\ns_cmp_lg_u32 s{st[2]}, 0\ns_cbranch_scc1 {lp0}")
        a.label(lp1)
    else:
        ld_hf()
        a("s_waitcnt vmcnt(0)")
        if not opts.get("nohwait"): tag_check_loop(a, [(vFl, vFl+1)], ld_hf, sN, st[2])
    a.label(lpol)
    a("s_barrier")
    ST.stamp()
    DH = LEAD + 1
    hring = [V.alloc(8,4) for _ in range(DH)]; afr = [V.alloc(8,4), V.alloc(8,4)]
    gacc = [[V.alloc(16,4) for _ in range(2)] for _ in range(2)]
    vy = V.alloc(16,4)
    pad = V.alloc(max(0, 48 - (8*DH + 16)), 4) if 8*DH + 16 < 48 else None
    ring = [hring[0], hring[0]+16, hring[0]+32]
    sK = S.alloc(); sLate = S.alloc()
    def h_loads(k):
        r = hring[k % DH]; off = (k % 4)*1024
        if k % 4 == 0: a(f"s_mov_b32 s{sK}, {(k//4)*4096}")
        for q in range(2):
            a(f"buffer_load_dwordx4 {vr(r+4*q,4)}, {vr(gB[q])}, {sr(sWS,4)}, s{sK} offen offset:{off} sc1"); vm2.append(("h",k))
    def wait_for(tags):
        if not isinstance(tags, list): tags = [tags]
        last = max(i for i,e in enumerate(vm2) if e in tags)
        a(f"s_waitcnt vmcnt({len(vm2)-1-last})")
    def a_reads(k):
        d = afr[k & 1]; o = (k % WSL)*2048
        for i in range(2):
            a(f"ds_read_b64_tr_b16 {vr(d+4*i,2)}, {vr(gA[i])} offset:{o}\nds_read_b64_tr_b16 {vr(d+4*i+2,2)}, {vr(gA[i])} offset:{o+1024}")
    for k in range(LEAD): h_loads(k)
    wait_for(("w",0)); a_reads(0)
    first = [[True,True],[True,True]]
    NK = 28
    def ld_yf(): a(f"buffer_load_dwordx2 {vr(vF2,2)}, {vr(vF2o)}, {sr(sWS,4)}, 0 offen sc1")
    def ld_y():
        for g in range(4):
            for i in range(4):
                a(f"buffer_load_dword {vr(vy+4*g+i)}, {vr(vYo)}, {sr(sWS,4)}, 0 offen offset:{(8*g+i)*128} sc1")
    KF, KY = opts.get("kf", NK-LEAD-1), opts.get("ky", NK-3)
    def base_lines():
        B = Asm()
        for e in range(16):
            B(f"v_lshlrev_b32 {vr(vy+e)}, {vr(vsh)}, {vr(vy+e)}\nv_and_b32 {vr(vy+e)}, 0xffff0000, {vr(vy+e)}\nv_add_f32 {vr(base+e)}, {vr(base+e)}, {vr(vy+e)}")
        return [l.strip() for l in B.lines]
    BL = base_lines()
    def btake(n):
        for _ in range(n):
            if BL: a(BL.pop(0))
    KB = KY + 4
    for k in range(NK):
        tags = [("h",k)] + ([("w",k+1)] if k+1 < NK else [])
        wait_for(tags)
        if k+1 < NK:
            a_reads(k+1); a("s_waitcnt lgkmcnt(4)")
        else: a("s_waitcnt lgkmcnt(0)")
        A_ = afr[k & 1]; Bh = hring[k % DH]
        n = 0
        for i in range(2):
            for j in range(2):
                c = "0" if first[i][j] else vr(gacc[i][j],16)
                first[i][j] = False
                a(f"v_mfma_f32_32x32x16_bf16 {vr(gacc[i][j],16)}, {vr(A_+4*i,4)}, {vr(Bh+4*j,4)}, {c}")
                if k + LEAD < NK:
                    if n == 0: w_dma(k+LEAD, 0)
                    if n == 1: w_dma(k+LEAD, 1)
                    if n == 2: h_loads(k+LEAD)
                n += 1
        if opts.get("g2st") and k in (6, 13, 20): ST.stamp()
        if k == KF:
            ld_yf(); vm2.append("fl")
        if k == KY:
            wait_for("fl")
            a(f"v_cmp_ne_u32 vcc, s{sN}, {vr(vF2)}\ns_nop 1\ns_mov_b64 s[98:99], vcc\nv_cmp_ne_u32 vcc, s{sN+1}, {vr(vF2+1)}\ns_nop 1\ns_or_b64 s[98:99], s[98:99], vcc\ns_cmp_lg_u64 s[98:99], 0\ns_cselect_b32 s{sLate}, 1, 0")
            ld_y()
            for _ in range(16): vm2.append("y")
    ST.stamp()
    ST_late = True
    vXw = V.alloc(); vXr = V.alloc()
    a(f"v_lshlrev_b32 {vr(vt0)}, 4, {vr(vl)}\ns_barrier\ns_nop 5")
    for (i,j) in ((0,1),(1,0),(1,1)):
        sl = 2*i+j
        a(f"s_xor_b32 s{st[0]}, s{sw}, {sl}\ns_mul_i32 s{st[0]}, s{st[0]}, 12288\ns_add_u32 s{st[0]}, s{st[0]}, {(sl-1)*4096}\nv_add_u32 {vr(vXw)}, s{st[0]}, {vr(vt0)}")
        for q in range(4):
            a(f"ds_write_b128 {vr(vXw)}, {vr(gacc[i][j]+4*q,4)} offset:{1024*q}")
    a(f"s_mul_i32 s{st[0]}, s{sw}, 12288\nv_add_u32 {vr(vXr)}, s{st[0]}, {vr(vt0)}")
    lok = a.newlabel("G2_yok")
    a(f"s_cmp_eq_u32 s{sLate}, 0\ns_cbranch_scc1 {lok}")
    if not opts.get("skip_aux"):
        a("s_waitcnt vmcnt(0)")
        ld_yf(); a("s_waitcnt vmcnt(0)")
        tag_check_loop(a, [(vF2, vF2+1)], ld_yf, sN, st[2])
        ld_y()
    a.label(lok)
    a("s_waitcnt lgkmcnt(0)\ns_barrier")
    xr = ring
    for sl in range(3):
        for q in range(4):
            a(f"ds_read_b128 {vr(xr[sl]+4*q,4)}, {vr(vXr)} offset:{sl*4096+1024*q}")
    ST.stamp()
    o = gacc[0][0]
    a("s_waitcnt vmcnt(0)")
    btake(1000)
    for e in range(16): a(f"v_add_f32 {vr(o+e)}, {vr(o+e)}, {vr(base+e)}")
    for sl in range(3):
        a(f"s_waitcnt lgkmcnt({4*(2-sl)})")
        for e in range(16): a(f"v_add_f32 {vr(o+e)}, {vr(o+e)}, {vr(xr[sl]+e)}")
    tmp = base
    for g in range(4):
        a(f"v_cvt_pk_bf16_f32 {vr(tmp+2*g)}, {vr(o+4*g)}, {vr(o+4*g+1)}\nv_cvt_pk_bf16_f32 {vr(tmp+2*g+1)}, {vr(o+4*g+2)}, {vr(o+4*g+3)}")
        a(f"buffer_store_dwordx2 {vr(tmp+2*g,2)}, {vr(vXo2)}, {sr(sO,4)}, 0 offen offset:{16*g} {opts.get('ofl','')}")
    a("s_waitcnt vmcnt(0)")
    ST.stamp()
    ST.flush(sWS, WS_STAMP, vt0, 2*((st[0]+1)//2), 2)
    a(f"s_branch {end}")
    return V.hi, S.hi
```

```python
from asm import *
from common import *

def get_nonce(a, V, S, sDB, vtmp2, sN, write=False, screg=None):
    pass

def nonce_issue(a, vN, vz, sDB):
    a(f"v_mov_b32 {vr(vz)}, 0\nbuffer_load_dwordx2 {vr(vN,2)}, {vr(vz)}, {sr(sDB,4)}, 0 offen sc1")

def nonce_finish(a, vN, vz, sDB, sN, scnt):
    l0 = a.newlabel("NC_l"); l1 = a.newlabel("NC_ok")
    a(f"s_mov_b32 s{scnt}, {SPIN}")
    a.label(l0)
    a(f"v_readfirstlane_b32 s{sN}, {vr(vN)}\nv_readfirstlane_b32 s{sN+1}, {vr(vN+1)}\ns_nop 1\ns_cmp_lg_u32 s{sN}, 0\ns_cbranch_scc1 {l1}")
    a(f"s_sub_u32 s{scnt}, s{scnt}, 1\ns_cmp_eq_u32 s{scnt}, 0\ns_cbranch_scc1 {l1}")
    a(f"s_sleep 1\nbuffer_load_dwordx2 {vr(vN,2)}, {vr(vz)}, {sr(sDB,4)}, 0 offen sc1\ns_waitcnt vmcnt(0)\ns_branch {l0}")
    a.label(l1)

def tag_check_loop(a, tags, reload, sN, scnt):
    l0 = a.newlabel("TG_l"); l1 = a.newlabel("TG_ok")
    a(f"s_mov_b32 s{scnt}, {SPIN}")
    a.label(l0)
    first = True
    for (lo, hi) in tags:
        for r, s in ((lo, sN), (hi, sN+1)):
            if first: a(f"v_cmp_ne_u32 vcc, s{s}, {vr(r)}\ns_nop 1\ns_mov_b64 s[98:99], vcc"); first = False
            else: a(f"v_cmp_ne_u32 vcc, s{s}, {vr(r)}\ns_nop 1\ns_or_b64 s[98:99], s[98:99], vcc")
    a(f"s_cmp_eq_u64 s[98:99], 0\ns_cbranch_scc1 {l1}")
    a(f"s_sub_u32 s{scnt}, s{scnt}, 1\ns_cmp_eq_u32 s{scnt}, 0\ns_cbranch_scc1 {l1}")
    a("s_sleep 1")
    reload()
    a(f"s_waitcnt vmcnt(0)\ns_branch {l0}")
    a.label(l1)

def set_flag(a, vt, sWS, soff_expr_sreg, sN, vl, sw):
    l = a.newlabel("FL_s")
    a(f"s_cmp_lg_u32 s{sw}, 0\ns_cbranch_scc1 {l}")
    a(f"v_mov_b32 {vr(vt)}, s{sN}\nv_mov_b32 {vr(vt+1)}, s{sN+1}\nv_cmp_eq_u32 vcc, 0, {vr(vl)}\nv_mov_b32 {vr(vt+2)}, 0x7ff00000\nv_mov_b32 {vr(vt+3)}, 0\ns_nop 0\nv_cndmask_b32 {vr(vt+2)}, {vr(vt+2)}, {vr(vt+3)}, vcc")
    a(f"buffer_store_dwordx2 {vr(vt,2)}, {vr(vt+2)}, {sr(sWS,4)}, s{soff_expr_sreg} offen sc1")
    a.label(l)

def role_ln(a, s0, ST, end, opts={}):
    V = Regs("v", 1, 256); S = Regs("s", s0, 96)
    sX = S.alloc(4,4); sWS = S.alloc(4,4); sDB = S.alloc(4,4)
    pX = S.alloc(2,2); pWS = S.alloc(2,2); pDB = S.alloc(2,2); sN = S.alloc(2,2)
    sw = S.alloc(); st = [S.alloc() for _ in range(6)]
    a("s_setprio 2")
    a(f"s_load_dwordx2 {sr(pX,2)}, s[0:1], 0\ns_load_dwordx2 {sr(pWS,2)}, s[0:1], 128\ns_load_dwordx2 {sr(pDB,2)}, s[0:1], 120")
    vl = V.alloc(); vt = V.alloc(4,2); vt0, vt1, vt2, vt3 = vt, vt+1, vt+2, vt+3
    vXo = V.alloc(); vR = V.alloc(); vP = V.alloc(); vN = V.alloc(2,2); vz = V.alloc()
    a(f"v_lshrrev_b32 {vr(vt0)}, 6, v0\nv_and_b32 {vr(vl)}, 63, v0\nv_readfirstlane_b32 s{sw}, {vr(vt0)}")
    a(f"v_lshrrev_b32 {vr(vR)}, 2, {vr(vl)}\nv_and_b32 {vr(vP)}, 3, {vr(vl)}")
    a(f"s_lshl_b32 s{st[0]}, s2, 6\ns_lshl_b32 s{st[1]}, s{sw}, 4\ns_add_u32 s{st[0]}, s{st[0]}, s{st[1]}")
    a(f"v_add_u32 {vr(vt0)}, s{st[0]}, {vr(vR)}\nv_mul_u32_u24 {vr(vt0)}, 896, {vr(vt0)}\nv_lshl_add_u32 {vr(vXo)}, {vr(vP)}, 4, {vr(vt0)}")
    a("s_waitcnt lgkmcnt(0)")
    srd(a, sX, pX, X_BYTES); srd(a, sDB, pDB, 256)
    vx = V.alloc(56,4)
    for m in range(14):
        a(f"buffer_load_dwordx4 {vr(vx+4*m,4)}, {vr(vXo)}, {sr(sX,4)}, 0 offen offset:{64*m}")
    ln = a.newlabel("LN_nn")
    a(f"s_or_b32 s{st[1]}, s2, s{sw}\ns_cmp_lg_u32 s{st[1]}, 0\ns_cbranch_scc1 {ln}")
    a(f"s_memrealtime {sr(sN,2)}\ns_waitcnt lgkmcnt(0)\ns_or_b32 s{sN}, s{sN}, 1\nv_mov_b32 {vr(vN)}, s{sN}\nv_mov_b32 {vr(vN+1)}, s{sN+1}\nv_mov_b32 {vr(vz)}, 0")
    a(f"buffer_store_dwordx2 {vr(vN,2)}, {vr(vz)}, {sr(sDB,4)}, 0 offen sc1\ns_waitcnt vmcnt(0)")
    a.label(ln)
    nonce_issue(a, vN, vz, sDB)
    srd(a, sWS, pWS, WS_SIZE)
    ST.stamp()
    sOnes = S.alloc()
    a(f"s_mov_b32 s{sOnes}, 0x3f803f80")
    v1 = [V.alloc(), V.alloc()]; v2 = [V.alloc(), V.alloc()]
    for r in v1+v2: a(f"v_mov_b32 {vr(r)}, 0")
    LX = 0; L_MS = 64*912
    vLw = V.alloc()
    a(f"s_lshl_b32 s{st[1]}, s{sw}, 4\nv_add_u32 {vr(vt0)}, s{st[1]}, {vr(vR)}\nv_mul_u32_u24 {vr(vt0)}, 912, {vr(vt0)}\nv_lshl_add_u32 {vr(vLw)}, {vr(vP)}, 4, {vr(vt0)}")
    for m in range(14):
        a(f"s_waitcnt vmcnt({14-m})")
        for q in range(4):
            a(f"v_dot2c_f32_bf16 {vr(v2[q&1])}, {vr(vx+4*m+q)}, {vr(vx+4*m+q)}")
            a(f"v_dot2c_f32_bf16 {vr(v1[q&1])}, s{sOnes}, {vr(vx+4*m+q)}")
        a(f"ds_write_b128 {vr(vLw)}, {vr(vx+4*m,4)} offset:{LX+64*m}")
    a("s_nop 3")
    a(f"v_add_f32 {vr(v1[0])}, {vr(v1[0])}, {vr(v1[1])}\nv_add_f32 {vr(v2[0])}, {vr(v2[0])}, {vr(v2[1])}\ns_nop 1")
    for ctl in ("quad_perm:[1,0,3,2]", "quad_perm:[2,3,0,1]"):
        a(f"v_add_f32_dpp {vr(v1[0])}, {vr(v1[0])}, {vr(v1[0])} {ctl} row_mask:0xf bank_mask:0xf")
        a(f"v_add_f32_dpp {vr(v2[0])}, {vr(v2[0])}, {vr(v2[0])} {ctl} row_mask:0xf bank_mask:0xf")
        a("s_nop 1")
    vMean = v1[0]; vE2 = v2[0]
    g = V.alloc(4,4); vMr = g; vRstd = g+1
    inv = fhex(1.0/448)
    a(f"v_mul_f32 {vr(vMean)}, {inv}, {vr(vMean)}\nv_mul_f32 {vr(vE2)}, {inv}, {vr(vE2)}")
    a(f"v_fma_f32 {vr(vE2)}, -{vr(vMean)}, {vr(vMean)}, {vr(vE2)}\nv_max_f32 {vr(vE2)}, 0, {vr(vE2)}")
    a(f"v_cvt_pk_bf16_f32 {vr(vt2)}, {vr(vMean)}, {vr(vE2)}")
    a(f"v_lshlrev_b32 {vr(vMean)}, 16, {vr(vt2)}\nv_and_b32 {vr(vE2)}, 0xffff0000, {vr(vt2)}")
    a(f"v_add_f32 {vr(vE2)}, {fhex(1e-5)}, {vr(vE2)}\nv_cvt_pk_bf16_f32 {vr(vE2)}, {vr(vE2)}, {vr(vE2)}\nv_lshlrev_b32 {vr(vE2)}, 16, {vr(vE2)}")
    a(f"v_sqrt_f32 {vr(vE2)}, {vr(vE2)}\ns_nop 0\nv_cvt_pk_bf16_f32 {vr(vE2)}, {vr(vE2)}, {vr(vE2)}\nv_lshlrev_b32 {vr(vE2)}, 16, {vr(vE2)}")
    a(f"v_rcp_f32 {vr(vRstd)}, {vr(vE2)}\ns_nop 0\nv_mul_f32 {vr(vMr)}, {vr(vMean)}, {vr(vRstd)}")
    a("s_waitcnt vmcnt(0)")
    nonce_finish(a, vN, vz, sDB, sN, st[2])
    a(f"v_mov_b32 {vr(g+2)}, s{sN}\nv_mov_b32 {vr(g+3)}, s{sN+1}")
    a(f"v_add_u32 {vr(vt0)}, s{st[0]}, {vr(vR)}\nv_lshlrev_b32 {vr(vt0)}, 4, {vr(vt0)}")
    a(f"v_cmp_eq_u32 vcc, 0, {vr(vP)}\nv_mov_b32 {vr(vt1)}, 0x7ff00000\ns_nop 0\nv_cndmask_b32 {vr(vt0)}, {vr(vt1)}, {vr(vt0)}, vcc")
    a(f"s_mov_b32 s{st[3]}, {WS_STATS}\nbuffer_store_dwordx4 {vr(g,4)}, {vr(vt0)}, {sr(sWS,4)}, s{st[3]} offen sc1")
    ST.stamp()
    a(f"s_lshl_b32 s{st[1]}, s{sw}, 4\nv_add_u32 {vr(vt0)}, s{st[1]}, {vr(vR)}\nv_lshlrev_b32 {vr(vt0)}, 3, {vr(vt0)}\nds_write_b64 {vr(vt0)}, {vr(g,2)} offset:{L_MS}")
    a("s_waitcnt lgkmcnt(0)\ns_barrier")
    ms = V.alloc(32,4)
    a(f"v_lshrrev_b32 {vr(vt0)}, 4, {vr(vl)}\nv_lshlrev_b32 {vr(vt0)}, 6, {vr(vt0)}")
    for v in range(2):
        for q in range(4): a(f"ds_read_b128 {vr(ms+16*v+4*q,4)}, {vr(vt0)} offset:{L_MS + 256*v + 16*q}")
    vA = V.alloc(); vO = V.alloc(); vSw = V.alloc(); vSr = V.alloc()
    a(f"v_lshrrev_b32 {vr(vt0)}, 4, {vr(vl)}\nv_lshlrev_b32 {vr(vt0)}, 3, {vr(vt0)}\nv_bfe_u32 {vr(vt1)}, {vr(vl)}, 2, 2\nv_add_u32 {vr(vt0)}, {vr(vt0)}, {vr(vt1)}\nv_mul_u32_u24 {vr(vt0)}, 912, {vr(vt0)}")
    a(f"v_and_b32 {vr(vt1)}, 3, {vr(vl)}\nv_lshl_add_u32 {vr(vt0)}, {vr(vt1)}, 3, {vr(vt0)}\ns_lshl_b32 s{st[1]}, s{sw}, 5\nv_add_u32 {vr(vA)}, s{st[1]}, {vr(vt0)}")
    L_SG = L_MS + 512
    a(f"v_and_b32 {vr(vt0)}, 15, {vr(vl)}\nv_and_b32 {vr(vt1)}, 7, {vr(vl)}\nv_lshrrev_b32 {vr(vt2)}, 4, {vr(vl)}\nv_xor_b32 {vr(vt1)}, {vr(vt1)}, {vr(vt2)}\nv_lshlrev_b32 {vr(vt1)}, 4, {vr(vt1)}\nv_lshl_add_u32 {vr(vt0)}, {vr(vt0)}, 7, {vr(vt1)}")
    a(f"s_lshl_b32 s{st[1]}, s{sw}, 11\ns_add_u32 s{st[1]}, s{st[1]}, {L_SG}\nv_add_u32 {vr(vSw)}, s{st[1]}, {vr(vt0)}\nv_lshlrev_b32 {vr(vt0)}, 4, {vr(vl)}\nv_add_u32 {vr(vSr)}, s{st[1]}, {vr(vt0)}")
    a(f"v_lshrrev_b32 {vr(vt0)}, 3, {vr(vl)}\nv_and_b32 {vr(vt1)}, 7, {vr(vl)}\nv_xor_b32 {vr(vt1)}, {vr(vt1)}, {vr(vt0)}\nv_lshlrev_b32 {vr(vt1)}, 4, {vr(vt1)}\nv_lshl_add_u32 {vr(vt0)}, {vr(vt0)}, 7, {vr(vt1)}")
    a(f"s_mul_i32 s{st[1]}, s2, 57344\ns_lshl_b32 s{st[2]}, s{sw}, 11\ns_add_u32 s{st[1]}, s{st[1]}, s{st[2]}\ns_add_u32 s{st[1]}, s{st[1]}, {WS_XNT}\nv_add_u32 {vr(vO)}, s{st[1]}, {vr(vt0)}")
    raw = V.alloc(8,2); nxt = V.alloc(8,2); tmp = V.alloc(8,2); pk = V.alloc(8,2); ob = V.alloc(8,2)
    sn = S.alloc(); so = S.alloc()
    def trs(dst):
        for v in range(2):
            for u in range(2):
                a(f"ds_read_b64_tr_b16 {vr(dst+4*v+2*u,2)}, {vr(vA)} offset:{LX + (32*v+4*u)*912}")
    a(f"s_mov_b32 s{sn}, 7\ns_mov_b32 s{so}, 0")
    trs(nxt)
    lp = a.newlabel("LN_lp")
    a.label(lp)
    a("s_waitcnt lgkmcnt(0)")
    for e in range(8): a(f"v_mov_b32 {vr(raw+e)}, {vr(nxt+e)}")
    a(f"v_add_u32 {vr(vA)}, 128, {vr(vA)}")
    trs(nxt)
    for v in range(2):
        for q in range(4):
            a(f"v_lshlrev_b32 {vr(tmp+2*q)}, 16, {vr(raw+4*v+q)}\nv_and_b32 {vr(tmp+2*q+1)}, 0xffff0000, {vr(raw+4*v+q)}")
        for e in range(8): a(f"v_fma_f32 {vr(tmp+e)}, {vr(tmp+e)}, {vr(ms+16*v+2*e+1)}, -{vr(ms+16*v+2*e)}")
        for q in range(4): a(f"v_cvt_pk_bf16_f32 {vr(pk+4*v+q)}, {vr(tmp+2*q)}, {vr(tmp+2*q+1)}")
        if v == 0: a(f"ds_write_b128 {vr(vSw)}, {vr(pk,4)}")
        else: a(f"v_xor_b32 {vr(vt0)}, 64, {vr(vSw)}\nds_write_b128 {vr(vt0)}, {vr(pk+4,4)}")
    a(f"ds_read_b128 {vr(ob,4)}, {vr(vSr)}\nds_read_b128 {vr(ob+4,4)}, {vr(vSr)} offset:1024")
    a("s_waitcnt lgkmcnt(0)")
    a(f"buffer_store_dwordx4 {vr(ob,4)}, {vr(vO)}, {sr(sWS,4)}, s{so} offen sc1\nbuffer_store_dwordx4 {vr(ob+4,4)}, {vr(vO)}, {sr(sWS,4)}, s{so} offen offset:1024 sc1")
    a(f"s_add_u32 s{so}, s{so}, {64*128}\ns_sub_u32 s{sn}, s{sn}, 1\ns_cmp_lg_u32 s{sn}, 0\ns_cbranch_scc1 {lp}")
    a("s_waitcnt vmcnt(0)\ns_barrier")
    a(f"s_lshl_b32 s{st[1]}, s2, 3\ns_add_u32 s{st[1]}, s{st[1]}, {F_XF}")
    set_flag(a, vt, sWS, st[1], sN, vl, sw)
    a("s_waitcnt vmcnt(0)")
    ST.stamp()
    ST.flush(sWS, WS_STAMP, vt0, 2*((st[0]+1)//2), 2)
    a(f"s_branch {end}")
    return V.hi, S.hi

def role_cs(a, s0, ST, end, opts={}):
    V = Regs("v", 1, 256); S = Regs("s", s0, 96)
    sW1 = S.alloc(4,4); sWS = S.alloc(4,4); sDB = S.alloc(4,4); sW2 = S.alloc(4,4)
    pW1 = S.alloc(2,2); pWS = S.alloc(2,2); pDB = S.alloc(2,2); pW2 = S.alloc(2,2); sN = S.alloc(2,2)
    sw = S.alloc(); sq = S.alloc(); st = [S.alloc() for _ in range(6)]
    a("s_setprio 2")
    a(f"s_load_dwordx2 {sr(pW1,2)}, s[0:1], 80\ns_load_dwordx2 {sr(pWS,2)}, s[0:1], 128\ns_load_dwordx2 {sr(pDB,2)}, s[0:1], 120\ns_load_dwordx2 {sr(pW2,2)}, s[0:1], 96")
    vl = V.alloc(); vt = V.alloc(4,2); vt0, vt1, vt2, vt3 = vt, vt+1, vt+2, vt+3
    vWo = V.alloc(); vR = V.alloc(); vP = V.alloc(); vN = V.alloc(2,2); vz = V.alloc(); vW2o = V.alloc()
    a(f"v_lshrrev_b32 {vr(vt0)}, 6, v0\nv_and_b32 {vr(vl)}, 63, v0\nv_readfirstlane_b32 s{sw}, {vr(vt0)}")
    a(f"s_sub_u32 s{sq}, s2, {ID_CS}")
    a(f"v_lshrrev_b32 {vr(vR)}, 3, {vr(vl)}\nv_and_b32 {vr(vP)}, 7, {vr(vl)}")
    a(f"s_mul_i32 s{st[1]}, s{sw}, 112\nv_add_u32 {vr(vt0)}, s{st[1]}, {vr(vR)}\nv_mul_u32_u24 {vr(vt0)}, 3584, {vr(vt0)}\nv_lshl_add_u32 {vr(vt0)}, {vr(vP)}, 4, {vr(vt0)}")
    a(f"s_lshl_b32 s{st[2]}, s{sq}, 7\nv_add_u32 {vr(vWo)}, s{st[2]}, {vr(vt0)}")
    sKap = S.alloc(); sDb = S.alloc()
    a(f"s_lshr_b32 s{sDb}, s{sq}, 1\ns_and_b32 s{sKap}, s{sq}, 1\ns_mul_i32 s{sKap}, s{sKap}, 56\ns_mul_i32 s{st[1]}, s{sw}, 14\ns_add_u32 s{sKap}, s{sKap}, s{st[1]}")
    a(f"v_lshrrev_b32 {vr(vt0)}, 2, {vr(vl)}\ns_lshl_b32 s{st[1]}, s{sKap}, 4\nv_add_u32 {vr(vt0)}, s{st[1]}, {vr(vt0)}\nv_mul_u32_u24 {vr(vt0)}, 896, {vr(vt0)}")
    a(f"v_and_b32 {vr(vt1)}, 3, {vr(vl)}\nv_lshl_add_u32 {vr(vt0)}, {vr(vt1)}, 4, {vr(vt0)}\ns_lshl_b32 s{st[1]}, s{sDb}, 6\nv_add_u32 {vr(vW2o)}, s{st[1]}, {vr(vt0)}")
    a("s_waitcnt lgkmcnt(0)")
    srd(a, sW1, pW1, W_BYTES); srd(a, sDB, pDB, 256)
    vw = V.alloc(56,4)
    for m in range(14):
        a(f"s_mov_b32 s{st[3]}, {m*8*3584}\nbuffer_load_dwordx4 {vr(vw+4*m,4)}, {vr(vWo)}, {sr(sW1,4)}, s{st[3]} offen")
    nonce_issue(a, vN, vz, sDB)
    srd(a, sWS, pWS, WS_SIZE)
    ST.stamp()
    sLo = S.alloc(); sHi = S.alloc()
    a(f"s_mov_b32 s{sLo}, 0x00003f80\ns_mov_b32 s{sHi}, 0x3f800000")
    vc = V.alloc(8,4)
    for e in range(8): a(f"v_mov_b32 {vr(vc+e)}, 0")
    for m in range(14):
        a(f"s_waitcnt vmcnt({13-m+1})")
        for q in range(4):
            a(f"v_dot2c_f32_bf16 {vr(vc+2*q)}, s{sLo}, {vr(vw+4*m+q)}")
            a(f"v_dot2c_f32_bf16 {vr(vc+2*q+1)}, s{sHi}, {vr(vw+4*m+q)}")
    a(f"s_lshl_b32 s{st[1]}, s{sw}, 3\nv_add_u32 {vr(vt0)}, s{st[1]}, {vr(vR)}\nv_lshlrev_b32 {vr(vt0)}, 8, {vr(vt0)}\nv_lshl_add_u32 {vr(vt0)}, {vr(vP)}, 5, {vr(vt0)}")
    a(f"s_nop 1\nds_write_b128 {vr(vt0)}, {vr(vc,4)}\nds_write_b128 {vr(vt0)}, {vr(vc+4,4)} offset:16")
    a("s_waitcnt lgkmcnt(0)\ns_barrier")
    vs = V.alloc(8,4)
    a(f"s_lshl_b32 s{st[1]}, s{sw}, 11\nv_lshlrev_b32 {vr(vt0)}, 2, {vr(vl)}\nv_add_u32 {vr(vt1)}, s{st[1]}, {vr(vt0)}")
    for k in range(8): a(f"ds_read_b32 {vr(vs+k)}, {vr(vt1)} offset:{256*k}")
    a("s_waitcnt lgkmcnt(0)")
    for k in (0,2,4,6): a(f"v_add_f32 {vr(vs+k)}, {vr(vs+k)}, {vr(vs+k+1)}")
    a(f"v_add_f32 {vr(vs)}, {vr(vs)}, {vr(vs+2)}\nv_add_f32 {vr(vs+4)}, {vr(vs+4)}, {vr(vs+6)}\nv_add_f32 {vr(vs)}, {vr(vs)}, {vr(vs+4)}")
    a(f"s_lshl_b32 s{st[1]}, s{sw}, 8\nv_add_u32 {vr(vt1)}, s{st[1]}, {vr(vt0)}\nds_write_b32 {vr(vt1)}, {vr(vs)} offset:8192")
    a(f"s_waitcnt vmcnt(0) lgkmcnt(0)\ns_barrier")
    nonce_finish(a, vN, vz, sDB, sN, st[2])
    l1 = a.newlabel("CS_w0")
    a(f"s_cmp_lg_u32 s{sw}, 0\ns_cbranch_scc1 {l1}")
    a(f"v_and_b32 {vr(vt0)}, 31, {vr(vl)}\nv_lshlrev_b32 {vr(vt1)}, 3, {vr(vt0)}")
    for k in range(4): a(f"ds_read_b64 {vr(vs+2*k,2)}, {vr(vt1)} offset:{8192+256*k}")
    a("s_waitcnt lgkmcnt(0)")
    for e in range(2):
        a(f"v_add_f32 {vr(vs+e)}, {vr(vs+e)}, {vr(vs+2+e)}\nv_add_f32 {vr(vs+4+e)}, {vr(vs+4+e)}, {vr(vs+6+e)}\nv_add_f32 {vr(vs+e)}, {vr(vs+e)}, {vr(vs+4+e)}")
    a(f"v_mov_b32 {vr(vs+2)}, s{sN}\nv_mov_b32 {vr(vs+3)}, s{sN+1}\nv_lshlrev_b32 {vr(vt0)}, 4, {vr(vt0)}\ns_lshl_b32 s{st[1]}, s{sq}, 9\ns_add_u32 s{st[1]}, s{st[1]}, {WS_CS}")
    a(f"buffer_store_dwordx4 {vr(vs,4)}, {vr(vt0)}, {sr(sWS,4)}, s{st[1]} offen sc1")
    a.label(l1)
    ST.stamp()
    if opts.get("csw2", 0):
        srd(a, sW2, pW2, W_BYTES)
        a(f"v_lshlrev_b32 {vr(vt0)}, 7, {vr(vl)}\ns_mul_i32 s{st[1]}, s{sq}, {64*896}\ns_mul_i32 s{st[2]}, s{sw}, {16*896}\ns_add_u32 s{st[1]}, s{st[1]}, s{st[2]}")
        a(f"buffer_load_dword {vr(vt1)}, {vr(vt0)}, {sr(sW2,4)}, s{st[1]} offen")
        a(f"v_cmp_gt_u32 vcc, 48, {vr(vl)}\nv_add_u32 {vr(vt0)}, 8192, {vr(vt0)}\nv_mov_b32 {vr(vt2)}, 0x7ff00000\ns_nop 0\nv_cndmask_b32 {vr(vt0)}, {vr(vt2)}, {vr(vt0)}, vcc")
        a(f"buffer_load_dword {vr(vt3)}, {vr(vt0)}, {sr(sW2,4)}, s{st[1]} offen")
    a("s_waitcnt vmcnt(0)")
    ST.stamp()
    ST.flush(sWS, WS_STAMP, vt0, 2*((st[0]+1)//2), 2)
    a(f"s_branch {end}")
    return V.hi, S.hi
```

```python
import sys, json
import mega
args = sys.argv[1:]
for n, o in zip(args[0::2], args[1::2]):
    opts = json.loads(o)
    p = f"t/{n}.s"
    open(p, "w").write(mega.header() + mega.gen_mega(opts=opts))
    print("wrote", p)
```

```python
import sys
from asm import *
from common import *
from roles_small import role_ln, role_cs
from role_aux import role_aux
from role_g import role_g
KNAME = "parallel_sum__ssm_conv_s4__dense_activation_gelu__prompt_kernel"
def gen_mega(name=KNAME, stamp=False, opts={}):
    a = Asm()
    S = Regs("s", 3, 96)
    end = "M_END"
    ST = Stamps(a, S, 14, stamp)
    s0 = S.mark()
    a(f"s_cmp_ge_u32 s2, {N_WG}\ns_cbranch_scc1 {end}")
    ST.start()
    k0 = ST.k; hv = []; hs = []
    a(f"s_cmp_lt_u32 s2, {ID_G}\ns_cbranch_scc1 R_OTHER")
    if opts.get("skip_g"): a(f"s_branch {end}")
    v, s = role_g(a, s0, ST, end, opts=opts); hv.append(v); hs.append(s); ST.k = k0
    a.label("R_OTHER")
    if opts.get("codepf", 0):
        lcp = a.newlabel("M_cp"); lpc = a.newlabel("M_pc")
        npf = opts.get("codepf")
        a(f"s_cmp_ge_u32 s2, {npf}\ns_cbranch_scc1 {lcp}")
        a(f"s_getpc_b64 s[90:91]")
        a.label(lpc)
        a(f"s_sub_u32 s90, s90, {lpc}-{name}\ns_subb_u32 s91, s91, 0")
        a(f"v_lshlrev_b32 v200, 7, v0\nv_min_u32 v200, {end}-{name}-4, v200\nv_and_b32 v200, 0xffffff80, v200")
        a(f"v_mov_b32 v203, s91\nv_add_co_u32 v202, vcc, s90, v200\ns_nop 1\nv_addc_co_u32 v203, vcc, 0, v203, vcc")
        a(f"global_load_dword v201, v[202:203], off")
        a.label(lcp)
    a(f"s_cmp_ge_u32 s2, {ID_CS+N_CS}\ns_cbranch_scc1 {end}\ns_cmp_ge_u32 s2, {ID_CS}\ns_cbranch_scc1 R_CS\ns_cmp_lt_u32 s2, {ID_AUX}\ns_cbranch_scc1 R_LN")
    if opts.get("skip_aux"): a(f"s_branch {end}")
    v, s = role_aux(a, s0, ST, end, opts); hv.append(v); hs.append(s); ST.k = k0
    a.label("R_LN"); v, s = role_ln(a, s0, ST, end, opts); hv.append(v); hs.append(s); ST.k = k0
    a.label("R_CS"); v, s = role_cs(a, s0, ST, end, opts); hv.append(v); hs.append(s); ST.k = k0
    a.label(end)
    print("mega vgprs", hv, "sgprs", hs)
    return kernel_wrap(name, a.text(), max(hv), sgpr=100)
def header():
    HDR = open('parallel_sum__ssm_conv_s4__dense_activation_gelu__prompt.s.ref').read()
    lines = []
    for ln in HDR.split("\n"):
        if ln.startswith("; @launch") or ln.startswith("; Override launch") or ln.startswith("; grid=ceil"): continue
        if not ln.startswith(";"): break
        lines.append(ln)
    s = "\n".join(lines) + "\n"
    s += f"; @launch grid=({N_WG},1,1) block=(256,1,1) lds={LDS_BYTES}\n"
    s += '.amdgcn_target "amdgcn-amd-amdhsa--gfx950"\n'
    return s
if __name__ == "__main__":
    out = sys.argv[1] if len(sys.argv) > 1 else "mega.s"
    open(out, "w").write(header() + gen_mega())
```

```python
from asm import *
from common import *
from roles_small import nonce_issue, nonce_finish, tag_check_loop, set_flag

def role_g(a, s0, ST, end, depth=5, opts={}):
    depth = opts.get('depth', depth)
    V = Regs("v", 1, 256); S = Regs("s", s0, 96)
    sX = S.alloc(4,4); sW1 = S.alloc(4,4); sWS = S.alloc(4,4); sB1 = S.alloc(4,4); sDB = S.alloc(4,4)
    pB2 = S.alloc(2,2); pO = S.alloc(2,2); sN = S.alloc(2,2); sW2 = S.alloc(4,4)
    sw = S.alloc(); swf = S.alloc(); swt = S.alloc(); si = S.alloc(); sj = S.alloc(); sid = S.alloc()
    st = [S.alloc() for _ in range(6)]
    a(f"s_setprio {opts.get('gprio', 3)}")
    a(f"s_load_dwordx2 {sr(sX,2)}, s[0:1], 0\ns_load_dwordx2 {sr(sW1,2)}, s[0:1], 80")
    vl = V.alloc(); vt = V.alloc(4,2); vt0, vt1, vt2, vt3 = vt, vt+1, vt+2, vt+3
    a(f"v_lshrrev_b32 {vr(vt0)}, 6, v0\nv_and_b32 {vr(vl)}, 63, v0\nv_readfirstlane_b32 s{sw}, {vr(vt0)}")
    a(f"s_sub_u32 s{sid}, s2, {ID_G}")
    a(f"s_and_b32 s{st[0]}, s{sid}, 7\ns_lshr_b32 s{st[1]}, s{sid}, 3")
    a(f"s_lshr_b32 s{st[2]}, s{st[0]}, 1\ns_lshl_b32 s{st[2]}, s{st[2]}, 2\ns_and_b32 s{st[3]}, s{st[1]}, 3\ns_add_u32 s{si}, s{st[2]}, s{st[3]}")
    a(f"s_and_b32 s{st[2]}, s{st[0]}, 1\ns_mul_i32 s{st[2]}, s{st[2]}, 7\ns_lshr_b32 s{st[3]}, s{st[1]}, 2\ns_add_u32 s{sj}, s{st[2]}, s{st[3]}")
    vXo = [V.alloc(), V.alloc()]; vWo = [V.alloc(), V.alloc()]
    a(f"v_lshrrev_b32 {vr(vt0)}, 3, {vr(vl)}\nv_and_b32 {vr(vt1)}, 7, {vr(vl)}\nv_lshrrev_b32 {vr(vt2)}, 4, {vr(vl)}\nv_xor_b32 {vr(vt1)}, {vr(vt1)}, {vr(vt2)}")
    a(f"s_lshl_b32 s{st[0]}, s{sw}, 4\ns_lshl_b32 s{st[1]}, s{si}, 7\ns_add_u32 s{st[0]}, s{st[0]}, s{st[1]}")
    a(f"v_add_u32 {vr(vt0)}, s{st[0]}, {vr(vt0)}\nv_mul_u32_u24 {vr(vt0)}, 896, {vr(vt0)}\nv_lshl_add_u32 {vr(vXo[0])}, {vr(vt1)}, 4, {vr(vt0)}")
    a(f"v_xor_b32 {vr(vt1)}, 4, {vr(vt1)}\nv_lshl_add_u32 {vr(vXo[1])}, {vr(vt1)}, 4, {vr(vt0)}\nv_add_u32 {vr(vXo[1])}, {8*896}, {vr(vXo[1])}")
    sM0 = S.alloc(); sSo = S.alloc()
    XR, WR = 0, 49152
    a(f"s_lshl_b32 s{sM0}, s{sw}, 11")
    a(f"s_and_b32 s{swf}, s{sw}, 1\ns_lshr_b32 s{swt}, s{sw}, 1")
    ROT = opts.get("rot", 0)
    sRot = [S.alloc() for _ in range(7)]
    if ROT:
        a(f"s_and_b32 s{st[2]}, s{si}, 3\ns_lshl_b32 s{st[2]}, s{st[2]}, 1\ns_add_u32 s{st[2]}, s{st[2]}, s{sj}")
        a(f"s_mul_i32 s{st[3]}, s{st[2]}, 37\ns_lshr_b32 s{st[3]}, s{st[3]}, 8\ns_mul_i32 s{st[3]}, s{st[3]}, 7\ns_sub_u32 s{st[2]}, s{st[2]}, s{st[3]}")
        a(f"s_lshl_b32 s{sRot[0]}, s{st[2]}, 7")
        a(f"s_add_u32 s{sRot[1]}, s{sRot[0]}, 128\ns_cmp_eq_u32 s{sRot[1]}, 896\ns_cselect_b32 s{sRot[1]}, 0, s{sRot[1]}")
    if opts.get("prost"): ST.stamp()
    a("s_waitcnt lgkmcnt(0)")
    if opts.get("prost"): ST.stamp()
    srd_fix(a, sX, X_BYTES); srd_fix(a, sW1, W_BYTES)
    vN = V.alloc(2,2); vz = V.alloc(); vB1 = V.alloc()
    vm = []
    def dma_x(c, half):
        o = XR + (c % 3)*16384 + half*8192
        so = f"s_add_u32 s{sSo}, s{sRot[c]}, {half*64*896}" if ROT else f"s_mov_b32 s{sSo}, {c*128 + half*64*896}"
        return [(f"s_add_u32 m0, s{sM0}, {o+1024*u}", so, f"buffer_load_dwordx4 {vr(vXo[u])}, {sr(sX,4)}, s{sSo} offen lds", ("x",c)) for u in range(2)]
    def dma_w(s_):
        o = WR + (s_ % 4)*8192
        so = f"s_mul_i32 s{sSo}, s{sRot[s_//2]}, 1792\ns_add_u32 s{sSo}, s{sSo}, {(s_%2)*114688}" if ROT else f"s_mov_b32 s{sSo}, {s_*114688}"
        return [(f"s_add_u32 m0, s{sM0}, {o+1024*u}", so, f"buffer_load_dwordx4 {vr(vWo[u])}, {sr(sW1,4)}, s{sSo} offen lds", ("w",s_)) for u in range(2)]
    def emit_dma(d):
        a(d[0]); a(d[1]); a(d[2]); vm.append(d[3])
    def wait_tags(tags):
        last = max(i for i,e in enumerate(vm) if e in tags)
        a(f"s_waitcnt vmcnt({len(vm)-1-last})")
    vA = [V.alloc(), V.alloc()]; vB = [V.alloc() for _ in range(4)]
    vT = V.alloc()
    vx = V.alloc(8,2); vb2 = V.alloc(8,2); vXo2 = V.alloc()
    persist = V.mark()
    acc = V.alloc(64,4)
    fill = Asm(); f = fill
    vg = vt0; vr_ = vt1; vcq = vt2
    f(f"v_lshrrev_b32 {vr(vg)}, 4, {vr(vl)}\nv_bfe_u32 {vr(vr_)}, {vr(vl)}, 2, 2\nv_and_b32 {vr(vcq)}, 3, {vr(vl)}")
    f(f"v_and_b32 {vr(vt3)}, 1, {vr(vg)}\nv_lshlrev_b32 {vr(vt3)}, 1, {vr(vt3)}\nv_lshrrev_b32 {vr(vA[0])}, 1, {vr(vcq)}\nv_add_u32 {vr(vt3)}, {vr(vt3)}, {vr(vA[0])}")
    f(f"s_lshl_b32 s{st[0]}, s{swf}, 3\nv_add_u32 {vr(vt3)}, s{st[0]}, {vr(vt3)}")
    f(f"v_lshlrev_b32 {vr(vA[0])}, 2, {vr(vr_)}\nv_xor_b32 {vr(vt3)}, {vr(vt3)}, {vr(vA[0])}")
    f(f"v_lshlrev_b32 {vr(vt3)}, 4, {vr(vt3)}")
    f(f"v_and_b32 {vr(vcq)}, 1, {vr(vcq)}\nv_lshl_add_u32 {vr(vt3)}, {vr(vcq)}, 3, {vr(vt3)}")
    f(f"v_lshrrev_b32 {vr(vg)}, 1, {vr(vg)}\nv_lshl_add_u32 {vr(vg)}, {vr(vg)}, 3, {vr(vr_)}")
    f(f"v_lshl_add_u32 {vr(vt3)}, {vr(vg)}, 8, {vr(vt3)}")
    f(f"v_add_u32 {vr(vA[0])}, {WR}, {vr(vt3)}\nv_xor_b32 {vr(vA[1])}, 64, {vr(vA[0])}")
    f(f"v_and_b32 {vr(vT)}, 31, {vr(vl)}\ns_lshl_b32 s{st[0]}, s{swt}, 6\nv_add_u32 {vr(vT)}, s{st[0]}, {vr(vT)}")
    f(f"v_bfe_u32 {vr(vt0)}, {vr(vT)}, 1, 3\nv_lshrrev_b32 {vr(vt1)}, 5, {vr(vl)}\nv_xor_b32 {vr(vt0)}, {vr(vt0)}, {vr(vt1)}\nv_lshlrev_b32 {vr(vt0)}, 4, {vr(vt0)}")
    f(f"v_lshl_add_u32 {vr(vB[0])}, {vr(vT)}, 7, {vr(vt0)}")
    for k in range(1,4): f(f"v_xor_b32 {vr(vB[k])}, {32*k}, {vr(vB[0])}")
    for i in range(64): f(f"v_mov_b32 {vr(acc+i)}, 0")
    FL = [l.strip() for l in fill.lines]
    if ROT:
        FL = [f"s_add_u32 s{sRot[n]}, s{sRot[n-1]}, 128\ns_cmp_eq_u32 s{sRot[n]}, 896\ns_cselect_b32 s{sRot[n]}, 0, s{sRot[n]}" for n in range(2,7)] + FL
    def take(n):
        for _ in range(n):
            if FL: a(FL.pop(0))
    pro = dma_x(0,0) + dma_x(0,1) + dma_w(0) + dma_w(1) + dma_x(1,0) + dma_x(1,1) + dma_w(2)
    for n, d in enumerate(pro):
        emit_dma(d)
        if n == 1:
            a(f"s_load_dwordx2 {sr(sB1,2)}, s[0:1], 88\ns_load_dwordx2 {sr(sWS,2)}, s[0:1], 128\ns_load_dwordx2 {sr(sDB,2)}, s[0:1], 120")
            a(f"s_load_dwordx2 {sr(pB2,2)}, s[0:1], 104\ns_load_dwordx2 {sr(pO,2)}, s[0:1], 112\ns_load_dwordx2 {sr(sW2,2)}, s[0:1], 96")
            a(f"v_and_b32 {vr(vt1)}, 15, {vr(vl)}\nv_lshlrev_b32 {vr(vt3)}, 2, {vr(vt2)}\nv_xor_b32 {vr(vt1)}, {vr(vt1)}, {vr(vt3)}")
            a(f"s_lshl_b32 s{st[0]}, s{sw}, 3\nv_add_u32 {vr(vt2)}, s{st[0]}, {vr(vt2)}\nv_mul_u32_u24 {vr(vt2)}, 3584, {vr(vt2)}\nv_lshl_add_u32 {vr(vWo[0])}, {vr(vt1)}, 4, {vr(vt2)}")
            a(f"s_lshl_b32 s{st[1]}, s{sj}, 8\nv_add_u32 {vr(vWo[0])}, s{st[1]}, {vr(vWo[0])}\nv_add_u32 {vr(vWo[1])}, 14336, {vr(vWo[0])}")
        if n == 5: a("s_waitcnt lgkmcnt(0)")
        if n >= 6: take(10)
        if n == 5:
            if opts.get("prost"): ST.stamp()
            srd_fix(a, sDB, 256); srd_fix(a, sB1, 3584)
            nonce_issue(a, vN, vz, sDB); vm.append("n")
            a(f"v_and_b32 {vr(vB1)}, 31, {vr(vl)}\nv_lshlrev_b32 {vr(vB1)}, 2, {vr(vB1)}\ns_lshl_b32 s{st[4]}, s{sj}, 8\ns_lshl_b32 s{st[5]}, s{swf}, 7\ns_add_u32 s{st[4]}, s{st[4]}, s{st[5]}")
            a(f"buffer_load_dword {vr(vB1)}, {vr(vB1)}, {sr(sB1,4)}, s{st[4]} offen"); vm.append("b")
    take(1000)
    srd_fix(a, sWS, WS_SIZE); srd_fix(a, sW2, W_BYTES)
    if opts.get("tlb", 0):
        vtl = V.alloc(2,2)
        a(f"v_min_u32 {vr(vt0)}, 6, {vr(vl)}\nv_lshlrev_b32 {vr(vt0)}, 21, {vr(vt0)}\nbuffer_load_dword {vr(vtl)}, {vr(vt0)}, {sr(sWS,4)}, 0 offen"); vm.append("t")
        a(f"v_mov_b32 {vr(vt0)}, 0\nbuffer_load_dword {vr(vtl+1)}, {vr(vt0)}, {sr(sW2,4)}, 0 offen"); vm.append("t")
    frbase = V.alloc(32,4)
    fr = [dict(A=[frbase+16*k, frbase+16*k+4], B=[frbase+16*k+8, frbase+16*k+12]) for k in range(2)]
    def rd_list(s_, ks, k):
        if opts.get('g1_nords'): return ["s_nop 0"]*6
        f_ = fr[k]; L = []
        oa = (s_ % 4)*8192 + ks*4096; c = s_//2; ks4 = 2*(s_ % 2) + ks; ob = (c % 3)*16384
        for fb in range(2):
            L.append(f"ds_read_b64_tr_b16 {vr(f_['A'][fb],2)}, {vr(vA[fb])} offset:{oa}")
            L.append(f"ds_read_b64_tr_b16 {vr(f_['A'][fb]+2,2)}, {vr(vA[fb])} offset:{oa+1024}")
            L.append(f"ds_read_b128 {vr(f_['B'][fb],4)}, {vr(vB[ks4])} offset:{ob+fb*4096}")
        return L
    def mf(k, fb, tb):
        f_ = fr[k]; d = acc + 32*tb + 16*fb
        if opts.get('g1_nomf'): return
        a(f"v_mfma_f32_32x32x16_bf16 {vr(d,16)}, {vr(f_['A'][fb],4)}, {vr(f_['B'][tb],4)}, {vr(d,16)}")
    ST.stamp()
    wait_tags([("x",0), ("w",0)])
    a("s_barrier")
    ST.stamp()
    for l in rd_list(0, 0, 0): a(l)
    def stage(s_, hook=None):
        last = (s_ == 13)
        R1 = rd_list(s_, 1, 1); R0 = rd_list(s_+1, 0, 0) if not last else []
        D = []
        if not opts.get('g1_nodma'):
            if s_ + 3 <= 13: D += dma_w(s_+3)
            if s_//2 + 2 <= 6: D += dma_x(s_//2 + 2, s_ % 2)
        D = list(D)
        def dm():
            if D: emit_dma(D.pop(0))
        a("s_waitcnt lgkmcnt(3)"); mf(0,0,0)
        a(R1[0]); a(R1[1]); a(R1[2])
        a("s_waitcnt lgkmcnt(4)"); mf(0,1,0)
        a(R1[3]); a(R1[4]); a(R1[5])
        a("s_waitcnt lgkmcnt(6)"); mf(0,0,1)
        dm()
        mf(0,1,1)
        if hook: hook()
        dm()
        a("s_waitcnt lgkmcnt(0)")
        if not last and not opts.get('g1_nodma'):
            wait_tags([("w", s_+1)] + ([("x", (s_+1)//2)] if (s_+1) % 2 == 0 else []))
        mf(1,0,0)
        if not last:
            a("s_barrier")
            if opts.get("stg") and s_ in (3,7,11): ST.stamp()
            a(R0[0]); a(R0[1]); a(R0[2])
        mf(1,1,0)
        if not last: a(R0[3]); a(R0[4]); a(R0[5])
        mf(1,0,1)
        dm()
        mf(1,1,1)
        dm()
    vS = [V.alloc(4,4), V.alloc(4,4)]; vC = V.alloc(4,4); vSo = V.alloc(); vCo = V.alloc()
    stt = S.alloc(); sdt = S.alloc(); sdb = S.alloc(); stb = S.alloc(); sd0 = S.alloc(); st0 = S.alloc()
    vW2f = V.alloc(2,2)
    def ld_stats():
        for tb in range(2):
            a(f"buffer_load_dwordx4 {vr(vS[tb],4)}, {vr(vSo)}, {sr(sWS,4)}, 0 offen offset:{512*tb} sc1")
        a(f"buffer_load_dwordx4 {vr(vC,4)}, {vr(vCo)}, {sr(sWS,4)}, 0 offen sc1")
    def hook_stats():
        a(f"s_lshl_b32 s{st[0]}, s{si}, 7\nv_add_u32 {vr(vSo)}, s{st[0]}, {vr(vT)}\nv_lshlrev_b32 {vr(vSo)}, 4, {vr(vSo)}\nv_add_u32 {vr(vSo)}, {WS_STATS}, {vr(vSo)}")
        a(f"v_and_b32 {vr(vCo)}, 31, {vr(vl)}\ns_lshl_b32 s{st[0]}, s{sj}, 6\ns_lshl_b32 s{st[1]}, s{swf}, 5\ns_add_u32 s{st[0]}, s{st[0]}, s{st[1]}\nv_add_u32 {vr(vCo)}, s{st[0]}, {vr(vCo)}\nv_lshlrev_b32 {vr(vCo)}, 4, {vr(vCo)}\nv_add_u32 {vr(vCo)}, {WS_CS}, {vr(vCo)}")
        ld_stats()
        a(f"s_and_b32 s{st[0]}, s{sid}, 7\ns_lshl_b32 s{st[0]}, s{st[0]}, 2\ns_bfe_u32 s{st[1]}, s{sid}, 0x20003\ns_add_u32 s{stt}, s{st[0]}, s{st[1]}\ns_lshr_b32 s{sdt}, s{sid}, 5\ns_lshr_b32 s{sdb}, s{sw}, 1\ns_and_b32 s{stb}, s{sw}, 1")
        a(f"s_lshl_b32 s{sd0}, s{sdt}, 6\ns_lshl_b32 s{st[0]}, s{sdb}, 5\ns_add_u32 s{sd0}, s{sd0}, s{st[0]}")
        a(f"s_lshl_b32 s{st0}, s{stt}, 6\ns_lshl_b32 s{st[0]}, s{stb}, 5\ns_add_u32 s{st0}, s{st0}, s{st[0]}")
    def hook_xb2():
        sB2 = sB1
        srd(a, sB2, pB2, 896)
        a(f"v_and_b32 {vr(vt0)}, 31, {vr(vl)}\nv_lshrrev_b32 {vr(vt1)}, 5, {vr(vl)}")
        a(f"v_add_u32 {vr(vt2)}, s{st0}, {vr(vt0)}\nv_mul_u32_u24 {vr(vt2)}, 896, {vr(vt2)}\nv_lshl_add_u32 {vr(vt2)}, {vr(vt1)}, 3, {vr(vt2)}\ns_lshl_b32 s{st[0]}, s{sd0}, 1\nv_add_u32 {vr(vXo2)}, s{st[0]}, {vr(vt2)}")
        for g in range(4): a(f"buffer_load_dwordx2 {vr(vx+2*g,2)}, {vr(vXo2)}, {sr(sX,4)}, 0 offen offset:{16*g}")
        a(f"v_lshlrev_b32 {vr(vt2)}, 3, {vr(vt1)}\nv_add_u32 {vr(vt2)}, s{st[0]}, {vr(vt2)}")
        for g in range(4): a(f"buffer_load_dwordx2 {vr(vb2+2*g,2)}, {vr(vt2)}, {sr(sB2,4)}, 0 offen offset:{16*g}")
        for _ in range(8): vm.append("xb")
    NST = 3
    for s_ in range(14):
        if s_ == opts.get('ststage', 9):
            def hk():
                hook_stats()
                for _ in range(NST): vm.append("st")
            stage(s_, hk)
        elif s_ == 12: stage(s_, hook_xb2)
        else: stage(s_)
    ST.stamp()
    wait_tags(["st", "n", "b"])
    nonce_finish(a, vN, vz, sDB, sN, st[2])
    tag_check_loop(a, [(vS[0]+2, vS[0]+3), (vS[1]+2, vS[1]+3), (vC+2, vC+3)], ld_stats, sN, st[2])
    ST.stamp()
    sTch = S.alloc(); vTch = V.alloc()
    if opts.get("w2touch", 0):
        a(f"s_and_b32 s{st[0]}, s{stt}, 3\ns_mul_i32 s{st[0]}, s{st[0]}, 448\ns_mul_i32 s{st[1]}, s{sw}, 112\ns_add_u32 s{st[0]}, s{st[0]}, s{st[1]}\ns_mul_i32 s{st[0]}, s{st[0]}, 896\ns_lshl_b32 s{st[1]}, s{sdt}, 7\ns_add_u32 s{sTch}, s{st[0]}, s{st[1]}")
        a(f"v_mul_u32_u24 {vr(vTch)}, 896, {vr(vl)}\nv_cmp_gt_u32 vcc, 28, {vr(vl)}\nv_mov_b32 {vr(vt1)}, 0x7ff00000\ns_nop 0\nv_cndmask_b32 {vr(vTch)}, {vr(vt1)}, {vr(vTch)}, vcc")
    a(f"v_and_b32 {vr(vt0)}, 31, {vr(vl)}\nv_lshlrev_b32 {vr(vt0)}, 3, {vr(vt0)}\ns_lshl_b32 s{st[0]}, s{sw}, 10\ns_add_u32 s{st[0]}, s{st[0]}, 16384\nv_add_u32 {vr(vt0)}, s{st[0]}, {vr(vt0)}")
    a(f"ds_write_b64 {vr(vt0)}, {vr(vC,2)}")
    a(f"v_lshlrev_b32 {vr(vt2)}, 16, {vr(vB1)}\nv_and_b32 {vr(vt3)}, 0xffff0000, {vr(vB1)}\nds_write_b64 {vr(vt0)}, {vr(vt2,2)} offset:256")
    vcs = V.alloc(32,4); vb1 = V.alloc(32,4)
    a(f"v_lshrrev_b32 {vr(vt0)}, 5, {vr(vl)}\nv_lshlrev_b32 {vr(vt0)}, 4, {vr(vt0)}\nv_add_u32 {vr(vt0)}, s{st[0]}, {vr(vt0)}")
    for q in range(8):
        a(f"ds_read_b128 {vr(vcs+4*q,4)}, {vr(vt0)} offset:{32*q}\nds_read_b128 {vr(vb1+4*q,4)}, {vr(vt0)} offset:{256+32*q}")
    vHo = V.alloc(); sH = S.alloc()
    a(f"s_lshl_b32 s{st[0]}, s{si}, 2\ns_lshl_b32 s{st[1]}, s{swt}, 1\ns_add_u32 s{st[0]}, s{st[0]}, s{st[1]}\ns_mul_i32 s{st[0]}, s{st[0]}, 113\ns_lshl_b32 s{st[1]}, s{sj}, 3\ns_add_u32 s{st[0]}, s{st[0]}, s{st[1]}\ns_lshl_b32 s{st[1]}, s{swf}, 2\ns_add_u32 s{st[0]}, s{st[0]}, s{st[1]}\ns_lshl_b32 s{sH}, s{st[0]}, 10")
    a(f"v_lshlrev_b32 {vr(vHo)}, 4, {vr(vl)}")
    vK = V.alloc(4,2); vC0 = vK; vC1 = vK+1; vOne = vK+2; vMR = V.alloc(2,2); vMr = vMR; vRs = vMR+1
    a(f"v_mov_b32 {vr(vC0)}, {fhex(GELU_C0)}\nv_mov_b32 {vr(vC1)}, {fhex(GELU_C1)}\nv_mov_b32 {vr(vOne)}, 1.0\nv_mov_b32 {vr(vMr)}, {vr(vS[0])}\nv_mov_b32 {vr(vRs)}, {vr(vS[0]+1)}")
    hv = frbase; p = frbase+8; vH = [frbase+16, frbase+20]
    sIt = S.alloc(); sIa = S.alloc(); sIc = S.alloc()
    a(f"s_mov_b32 s{sIt}, 0\ns_mov_b32 s{sIa}, 0\ns_mov_b32 s{sIc}, 0\ns_waitcnt lgkmcnt(0)")
    gl = a.newlabel("G1_ge")
    a.label(gl)
    for half in range(2):
        a(f"s_set_gpr_idx_on s{sIc}, gpr_idx(SRC1,SRC2)" + ("\ns_nop 0" if opts.get("idxnop", 0) else ""))
        for e in range(0,8,2): a(f"v_pk_fma_f32 {vr(hv+e,2)}, {vr(vMR,2)}, {vr(vcs+e,2)}, {vr(vb1+e,2)} op_sel:[0,0,0] op_sel_hi:[0,1,1] neg_lo:[1,0,0] neg_hi:[1,0,0]")
        a(f"s_set_gpr_idx_on s{sIa}, gpr_idx(SRC0)" + ("\ns_nop 0" if opts.get("idxnop", 0) else ""))
        for e in range(0,8,2): a(f"v_pk_fma_f32 {vr(hv+e,2)}, {vr(acc+e,2)}, {vr(vMR,2)}, {vr(hv+e,2)} op_sel:[0,1,0] op_sel_hi:[1,1,1]")
        a("s_set_gpr_idx_off" + ("\ns_nop 0" if opts.get("idxnop", 0) else ""))
        for e in range(0,8,2): a(f"v_pk_mul_f32 {vr(p+e,2)}, {vr(hv+e,2)}, {vr(hv+e,2)}")
        for e in range(0,8,2): a(f"v_pk_fma_f32 {vr(p+e,2)}, {vr(p+e,2)}, {vr(vK,2)}, {vr(vK,2)} op_sel:[0,1,0] op_sel_hi:[1,1,0]")
        for e in range(0,8,2): a(f"v_pk_mul_f32 {vr(p+e,2)}, {vr(p+e,2)}, {vr(hv+e,2)}")
        for e in range(8): a(f"v_exp_f32 {vr(p+e)}, {vr(p+e)}")
        for e in range(0,8,2): a(f"v_pk_add_f32 {vr(p+e,2)}, {vr(p+e,2)}, {vr(vK+2,2)} op_sel:[0,0] op_sel_hi:[1,0]")
        for e in range(8): a(f"v_rcp_f32 {vr(p+e)}, {vr(p+e)}")
        for e in range(0,8,2): a(f"v_pk_mul_f32 {vr(hv+e,2)}, {vr(hv+e,2)}, {vr(p+e,2)}")
        for q in range(4): a(f"v_cvt_pk_bf16_f32 {vr(vH[half]+q)}, {vr(hv+2*q)}, {vr(hv+2*q+1)}")
        a(f"buffer_store_dwordx4 {vr(vH[half],4)}, {vr(vHo)}, {sr(sWS,4)}, s{sH} offen sc1")
        a(f"s_add_u32 s{sH}, s{sH}, 1024\ns_add_u32 s{sIa}, s{sIa}, 8\ns_add_u32 s{sIc}, s{sIc}, 8")
    if opts.get("w2touch", 0):
        a(f"buffer_load_dword {vr(vW2f)}, {vr(vTch)}, {sr(sW2,4)}, s{sTch} offen\ns_add_u32 s{sTch}, s{sTch}, {28*896}")
    lnt = a.newlabel("G1_nt")
    a(f"s_add_u32 s{sIt}, s{sIt}, 2\ns_cmp_lg_u32 s{sIt}, 4\ns_cbranch_scc1 {lnt}")
    a(f"s_mov_b32 s{sIc}, 0\ns_add_u32 s{sH}, s{sH}, {FSTR-4096}\nv_mov_b32 {vr(vMr)}, {vr(vS[1])}\nv_mov_b32 {vr(vRs)}, {vr(vS[1]+1)}")
    a.label(lnt)
    a(f"s_cmp_lt_u32 s{sIt}, 8\ns_cbranch_scc1 {gl}")
    a(f"s_setprio {opts.get('gprio2', 0)}")
    ST.stamp()
    hiV = V.hi
    V.n = persist
    gA = [V.alloc(), V.alloc()]; gB = [V.alloc(), V.alloc()]; gWo = V.alloc()
    vYo = V.alloc(); vFo = V.alloc(); vFl = V.alloc(2,2); vF2 = V.alloc(2,2); vF2o = V.alloc()
    sO = sW1
    srd(a, sO, pO, X_BYTES)
    LW = 0; WSL = 8; LEAD = opts.get('lead', 6)
    sLW = S.alloc(); sWk = S.alloc()
    a(f"v_lshrrev_b32 {vr(vt0)}, 3, {vr(vl)}\nv_bfe_u32 {vr(vt1)}, {vr(vl)}, 4, 1\nv_lshlrev_b32 {vr(vt1)}, 2, {vr(vt1)}\nv_and_b32 {vr(vt2)}, 7, {vr(vl)}\nv_xor_b32 {vr(vt1)}, {vr(vt1)}, {vr(vt2)}")
    a(f"v_mul_u32_u24 {vr(vt0)}, 896, {vr(vt0)}\nv_lshl_add_u32 {vr(vt0)}, {vr(vt1)}, 4, {vr(vt0)}\ns_lshl_b32 s{st[0]}, s{sdt}, 7\ns_mul_i32 s{st[1]}, s{sw}, {448*896}\ns_add_u32 s{st[0]}, s{st[0]}, s{st[1]}\nv_add_u32 {vr(gWo)}, s{st[0]}, {vr(vt0)}")
    a(f"s_lshl_b32 s{sLW}, s{sw}, 14")
    a(f"v_lshrrev_b32 {vr(vt0)}, 5, {vr(vl)}\nv_lshlrev_b32 {vr(vt0)}, 2, {vr(vt0)}\nv_bfe_u32 {vr(vt1)}, {vr(vl)}, 2, 2\nv_add_u32 {vr(vt0)}, {vr(vt0)}, {vr(vt1)}\nv_lshlrev_b32 {vr(vt0)}, 7, {vr(vt0)}")
    a(f"v_lshrrev_b32 {vr(vt1)}, 1, {vr(vt1)}\nv_xor_b32 {vr(vt1)}, s{sdb}, {vr(vt1)}\nv_lshl_add_u32 {vr(vt0)}, {vr(vt1)}, 6, {vr(vt0)}\nv_bfe_u32 {vr(vt1)}, {vr(vl)}, 4, 1\nv_lshl_add_u32 {vr(vt0)}, {vr(vt1)}, 5, {vr(vt0)}")
    a(f"v_and_b32 {vr(vt1)}, 3, {vr(vl)}\nv_lshl_add_u32 {vr(vt0)}, {vr(vt1)}, 3, {vr(vt0)}\nv_add_u32 {vr(gA[0])}, s{sLW}, {vr(vt0)}\nv_xor_b32 {vr(gA[1])}, 64, {vr(gA[0])}")
    a(f"v_lshlrev_b32 {vr(vt0)}, 4, {vr(vl)}\ns_mul_i32 s{st[0]}, s{sw}, {28*1024}")
    for i in range(2):
        a(f"s_xor_b32 s{st[1]}, s{stb}, {i}\ns_lshl_b32 s{st[2]}, s{stt}, 1\ns_add_u32 s{st[1]}, s{st[1]}, s{st[2]}\ns_mul_i32 s{st[1]}, s{st[1]}, {FSTR}\ns_add_u32 s{st[1]}, s{st[1]}, s{st[0]}")
        a(f"v_add_u32 {vr(gB[i])}, s{st[1]}, {vr(vt0)}")
    a(f"v_and_b32 {vr(vt0)}, 31, {vr(vl)}\nv_lshrrev_b32 {vr(vt1)}, 5, {vr(vl)}")
    a(f"v_and_b32 {vr(vt2)}, 30, {vr(vt0)}\nv_lshlrev_b32 {vr(vt2)}, 1, {vr(vt2)}\nv_lshl_add_u32 {vr(vt2)}, {vr(vt1)}, 9, {vr(vt2)}")
    a(f"s_mul_i32 s{st[0]}, s{stt}, 57344\ns_lshl_b32 s{st[1]}, s{sd0}, 7\ns_add_u32 s{st[0]}, s{st[0]}, s{st[1]}\ns_lshl_b32 s{st[1]}, s{stb}, 6\ns_add_u32 s{st[0]}, s{st[0]}, s{st[1]}\ns_add_u32 s{st[0]}, s{st[0]}, {WS_Y}")
    a(f"v_add_u32 {vr(vYo)}, s{st[0]}, {vr(vt2)}")
    a(f"v_add_u32 {vr(vt2)}, s{sd0}, {vr(vt0)}\nv_lshrrev_b32 {vr(vt2)}, 1, {vr(vt2)}\nv_lshlrev_b32 {vr(vt2)}, 3, {vr(vt2)}\nv_add_u32 {vr(vF2o)}, {F_YF}, {vr(vt2)}")
    a(f"s_lshr_b32 s{st[0]}, s{stt}, 1\ns_mul_i32 s{st[0]}, s{st[0]}, {14*128}\ns_add_u32 s{st[0]}, s{st[0]}, {WS_HF}\nv_min_u32 {vr(vt2)}, 13, {vr(vl)}\nv_lshlrev_b32 {vr(vt2)}, 7, {vr(vt2)}\nv_add_u32 {vr(vt2)}, s{st[0]}, {vr(vt2)}")
    a(f"v_mov_b32 {vr(vFo)}, {vr(vt2)}")
    vm2 = []
    def w_dma(k, u):
        a(f"s_add_u32 m0, s{sLW}, {(k % WSL)*2048 + 1024*u}\ns_mov_b32 s{sWk}, {(16*k + 8*u)*896}\nbuffer_load_dwordx4 {vr(gWo)}, {sr(sW2,4)}, s{sWk} offen lds"); vm2.append(("w",k))
    a("s_waitcnt vmcnt(0)\ns_barrier")
    lpub = a.newlabel("G_pub"); lpol = a.newlabel("G_pol")
    a(f"s_cmp_lg_u32 s{sw}, 3\ns_cbranch_scc1 {lpub}")
    a(f"s_mul_i32 s{st[0]}, s{si}, 14\ns_add_u32 s{st[0]}, s{st[0]}, s{sj}\ns_lshl_b32 s{st[0]}, s{st[0]}, 7\ns_add_u32 s{st[0]}, s{st[0]}, {WS_HF}")
    a(f"v_mov_b32 {vr(vt0)}, s{sN}\nv_mov_b32 {vr(vt1)}, s{sN+1}\nv_cmp_eq_u32 vcc, 0, {vr(vl)}\nv_mov_b32 {vr(vt2)}, 0x7ff00000\nv_mov_b32 {vr(vt3)}, 0\ns_nop 0\nv_cndmask_b32 {vr(vt2)}, {vr(vt2)}, {vr(vt3)}, vcc")
    a(f"buffer_store_dwordx2 {vr(vt,2)}, {vr(vt2)}, {sr(sWS,4)}, s{st[0]} offen sc1")
    a.label(lpub)
    for k in range(LEAD):
        w_dma(k, 0); w_dma(k, 1)
    ST.stamp()
    if opts.get("skip_g2"): a(f"s_waitcnt vmcnt(0)\ns_branch {end}")
    def ld_hf(): a(f"buffer_load_dwordx2 {vr(vFl,2)}, {vr(vFo)}, {sr(sWS,4)}, 0 offen sc1")
    base = V.alloc(16,4); tmp = V.alloc(4,4); vsh = V.alloc()
    def base0_lines():
        B = Asm()
        for g in range(4):
            B(f"v_lshlrev_b32 {vr(base+4*g)}, 16, {vr(vx+2*g)}\nv_and_b32 {vr(base+4*g+1)}, 0xffff0000, {vr(vx+2*g)}\nv_lshlrev_b32 {vr(base+4*g+2)}, 16, {vr(vx+2*g+1)}\nv_and_b32 {vr(base+4*g+3)}, 0xffff0000, {vr(vx+2*g+1)}")
            B(f"v_lshlrev_b32 {vr(tmp)}, 16, {vr(vb2+2*g)}\nv_and_b32 {vr(tmp+1)}, 0xffff0000, {vr(vb2+2*g)}\nv_lshlrev_b32 {vr(tmp+2)}, 16, {vr(vb2+2*g+1)}\nv_and_b32 {vr(tmp+3)}, 0xffff0000, {vr(vb2+2*g+1)}")
            for i in range(4): B(f"v_add_f32 {vr(base+4*g+i)}, {vr(base+4*g+i)}, {vr(tmp+i)}")
        B(f"v_and_b32 {vr(vsh)}, 1, {vr(vl)}\nv_xor_b32 {vr(vsh)}, 1, {vr(vsh)}\nv_lshlrev_b32 {vr(vsh)}, 4, {vr(vsh)}")
        return [l.strip() for l in B.lines]
    lnt2 = a.newlabel("G_nt2")
    if opts.get("w2wait", 0):
        a(f"s_cmp_eq_u32 s{sw}, 0\ns_cbranch_scc1 {lnt2}")
        a(f"s_and_b32 s{st[0]}, s{stt}, 3\ns_mul_i32 s{st[0]}, s{st[0]}, 448\ns_sub_u32 s{st[1]}, s{sw}, 1\ns_mul_i32 s{st[1]}, s{st[1]}, 150\ns_add_u32 s{st[0]}, s{st[0]}, s{st[1]}\ns_mul_i32 s{st[0]}, s{st[0]}, 896\ns_lshl_b32 s{st[1]}, s{sdt}, 7\ns_add_u32 s{st[0]}, s{st[0]}, s{st[1]}")
        a(f"v_mul_u32_u24 {vr(vt0)}, 896, {vr(vl)}")
        for q in range(3):
            if q == 2: a(f"v_cmp_gt_u32 vcc, 22, {vr(vl)}\nv_mov_b32 {vr(vt1)}, 0x7ff00000\ns_nop 0\nv_cndmask_b32 {vr(vt0)}, {vr(vt1)}, {vr(vt0)}, vcc")
            a(f"buffer_load_dword {vr(tmp+q)}, {vr(vt0)}, {sr(sW2,4)}, s{st[0]} offen\ns_add_u32 s{st[0]}, s{st[0]}, {64*896}")
        a("s_waitcnt vmcnt(0)")
        a.label(lnt2)
    for l in base0_lines(): a(l)
    a(f"s_cmp_lg_u32 s{sw}, 0\ns_cbranch_scc1 {lpol}")
    if opts.get("ppoll", 1):
        vFl2 = V.alloc(2,2)
        lp0 = a.newlabel("G_pp"); lp1 = a.newlabel("G_ppo")
        def chk(r):
            a(f"v_cmp_ne_u32 vcc, s{sN}, {vr(r)}\ns_nop 1\ns_mov_b64 s[98:99], vcc\nv_cmp_ne_u32 vcc, s{sN+1}, {vr(r+1)}\ns_nop 1\ns_or_b64 s[98:99], s[98:99], vcc\ns_cmp_eq_u64 s[98:99], 0\ns_cbranch_scc1 {lp1}")
        a(f"s_mov_b32 s{st[2]}, {SPIN}")
        ld_hf()
        a.label(lp0)
        a(f"buffer_load_dwordx2 {vr(vFl2,2)}, {vr(vFo)}, {sr(sWS,4)}, 0 offen sc1\ns_waitcnt vmcnt(1)")
        chk(vFl)
        a(f"buffer_load_dwordx2 {vr(vFl,2)}, {vr(vFo)}, {sr(sWS,4)}, 0 offen sc1\ns_waitcnt vmcnt(1)")
        chk(vFl2)
        a(f"s_sub_u32 s{st[2]}, s{st[2]}, 1\ns_cmp_lg_u32 s{st[2]}, 0\ns_cbranch_scc1 {lp0}")
        a.label(lp1)
    else:
        ld_hf()
        a("s_waitcnt vmcnt(0)")
        if not opts.get("nohwait"): tag_check_loop(a, [(vFl, vFl+1)], ld_hf, sN, st[2])
    a.label(lpol)
    a("s_barrier")
    ST.stamp()
    DH = LEAD + 1
    hring = [V.alloc(8,4) for _ in range(DH)]; afr = [V.alloc(8,4), V.alloc(8,4)]
    gacc = [[V.alloc(16,4) for _ in range(2)] for _ in range(2)]
    vy = V.alloc(16,4)
    pad = V.alloc(max(0, 48 - (8*DH + 16)), 4) if 8*DH + 16 < 48 else None
    ring = [hring[0], hring[0]+16, hring[0]+32]
    sK = S.alloc(); sLate = S.alloc()
    def h_loads(k):
        r = hring[k % DH]; off = (k % 4)*1024
        if k % 4 == 0: a(f"s_mov_b32 s{sK}, {(k//4)*4096}")
        for q in range(2):
            a(f"buffer_load_dwordx4 {vr(r+4*q,4)}, {vr(gB[q])}, {sr(sWS,4)}, s{sK} offen offset:{off} sc1"); vm2.append(("h",k))
    def wait_for(tags):
        if not isinstance(tags, list): tags = [tags]
        last = max(i for i,e in enumerate(vm2) if e in tags)
        a(f"s_waitcnt vmcnt({len(vm2)-1-last})")
    def a_reads(k):
        d = afr[k & 1]; o = (k % WSL)*2048
        for i in range(2):
            a(f"ds_read_b64_tr_b16 {vr(d+4*i,2)}, {vr(gA[i])} offset:{o}\nds_read_b64_tr_b16 {vr(d+4*i+2,2)}, {vr(gA[i])} offset:{o+1024}")
    for k in range(LEAD): h_loads(k)
    wait_for(("w",0)); a_reads(0)
    first = [[True,True],[True,True]]
    NK = 28
    def ld_yf(): a(f"buffer_load_dwordx2 {vr(vF2,2)}, {vr(vF2o)}, {sr(sWS,4)}, 0 offen sc1")
    def ld_y():
        for g in range(4):
            for i in range(4):
                a(f"buffer_load_dword {vr(vy+4*g+i)}, {vr(vYo)}, {sr(sWS,4)}, 0 offen offset:{(8*g+i)*128} sc1")
    KF, KY = opts.get("kf", NK-LEAD-1), opts.get("ky", NK-3)
    def base_lines():
        B = Asm()
        for e in range(16):
            B(f"v_lshlrev_b32 {vr(vy+e)}, {vr(vsh)}, {vr(vy+e)}\nv_and_b32 {vr(vy+e)}, 0xffff0000, {vr(vy+e)}")
            if e & 1: B(f"v_pk_add_f32 {vr(base+e-1,2)}, {vr(base+e-1,2)}, {vr(vy+e-1,2)}")
        return [l.strip() for l in B.lines]
    BL = base_lines()
    def btake(n):
        for _ in range(n):
            if BL: a(BL.pop(0))
    KB = KY + 4
    for k in range(NK):
        tags = [("h",k)] + ([("w",k+1)] if k+1 < NK else [])
        wait_for(tags)
        if k+1 < NK:
            a_reads(k+1); a("s_waitcnt lgkmcnt(4)")
        else: a("s_waitcnt lgkmcnt(0)")
        A_ = afr[k & 1]; Bh = hring[k % DH]
        n = 0
        for i in range(2):
            for j in range(2):
                c = "0" if first[i][j] else vr(gacc[i][j],16)
                first[i][j] = False
                a(f"v_mfma_f32_32x32x16_bf16 {vr(gacc[i][j],16)}, {vr(A_+4*i,4)}, {vr(Bh+4*j,4)}, {c}")
                if k + LEAD < NK:
                    if n == 0: w_dma(k+LEAD, 0)
                    if n == 1: w_dma(k+LEAD, 1)
                    if n == 2: h_loads(k+LEAD)
                n += 1
        if opts.get("g2st") and k in (6, 13, 20): ST.stamp()
        if k == KF:
            ld_yf(); vm2.append("fl")
        if k == KY:
            wait_for("fl")
            a(f"v_cmp_ne_u32 vcc, s{sN}, {vr(vF2)}\ns_nop 1\ns_mov_b64 s[98:99], vcc\nv_cmp_ne_u32 vcc, s{sN+1}, {vr(vF2+1)}\ns_nop 1\ns_or_b64 s[98:99], s[98:99], vcc\ns_cmp_lg_u64 s[98:99], 0\ns_cselect_b32 s{sLate}, 1, 0")
            ld_y()
            for _ in range(16): vm2.append("y")
    ST.stamp()
    ST_late = True
    vXw = V.alloc(); vXr = V.alloc()
    a(f"v_lshlrev_b32 {vr(vt0)}, 4, {vr(vl)}\ns_barrier\ns_nop 5")
    for (i,j) in ((0,1),(1,0),(1,1)):
        sl = 2*i+j
        a(f"s_xor_b32 s{st[0]}, s{sw}, {sl}\ns_mul_i32 s{st[0]}, s{st[0]}, 12288\ns_add_u32 s{st[0]}, s{st[0]}, {(sl-1)*4096}\nv_add_u32 {vr(vXw)}, s{st[0]}, {vr(vt0)}")
        for q in range(4):
            a(f"ds_write_b128 {vr(vXw)}, {vr(gacc[i][j]+4*q,4)} offset:{1024*q}")
    a(f"s_mul_i32 s{st[0]}, s{sw}, 12288\nv_add_u32 {vr(vXr)}, s{st[0]}, {vr(vt0)}")
    lok = a.newlabel("G2_yok")
    a(f"s_cmp_eq_u32 s{sLate}, 0\ns_cbranch_scc1 {lok}")
    if not opts.get("skip_aux"):
        a("s_waitcnt vmcnt(0)")
        ld_yf(); a("s_waitcnt vmcnt(0)")
        tag_check_loop(a, [(vF2, vF2+1)], ld_yf, sN, st[2])
        ld_y()
    a.label(lok)
    a("s_waitcnt lgkmcnt(0)\ns_barrier")
    xr = ring
    for sl in range(3):
        for q in range(4):
            a(f"ds_read_b128 {vr(xr[sl]+4*q,4)}, {vr(vXr)} offset:{sl*4096+1024*q}")
    ST.stamp()
    o = gacc[0][0]
    a("s_waitcnt vmcnt(0)")
    btake(1000)
    for e in range(0,16,2): a(f"v_pk_add_f32 {vr(o+e,2)}, {vr(o+e,2)}, {vr(base+e,2)}")
    for sl in range(3):
        a(f"s_waitcnt lgkmcnt({4*(2-sl)})")
        for e in range(0,16,2): a(f"v_pk_add_f32 {vr(o+e,2)}, {vr(o+e,2)}, {vr(xr[sl]+e,2)}")
    tmp = base
    for g in range(4):
        a(f"v_cvt_pk_bf16_f32 {vr(tmp+2*g)}, {vr(o+4*g)}, {vr(o+4*g+1)}\nv_cvt_pk_bf16_f32 {vr(tmp+2*g+1)}, {vr(o+4*g+2)}, {vr(o+4*g+3)}")
        a(f"buffer_store_dwordx2 {vr(tmp+2*g,2)}, {vr(vXo2)}, {sr(sO,4)}, 0 offen offset:{16*g} {opts.get('ofl','')}")
    a("s_waitcnt vmcnt(0)")
    ST.stamp()
    ST.flush(sWS, WS_STAMP, vt0, 2*((st[0]+1)//2), 2)
    a(f"s_branch {end}")
    return V.hi, S.hi
```

```python
from asm import *
from common import *

def get_nonce(a, V, S, sDB, vtmp2, sN, write=False, screg=None):
    pass

def nonce_issue(a, vN, vz, sDB):
    a(f"v_mov_b32 {vr(vz)}, 0\nbuffer_load_dwordx2 {vr(vN,2)}, {vr(vz)}, {sr(sDB,4)}, 0 offen sc1")

def nonce_finish(a, vN, vz, sDB, sN, scnt):
    l0 = a.newlabel("NC_l"); l1 = a.newlabel("NC_ok")
    a(f"s_mov_b32 s{scnt}, {SPIN}")
    a.label(l0)
    a(f"v_readfirstlane_b32 s{sN}, {vr(vN)}\nv_readfirstlane_b32 s{sN+1}, {vr(vN+1)}\ns_nop 1\ns_cmp_lg_u32 s{sN}, 0\ns_cbranch_scc1 {l1}")
    a(f"s_sub_u32 s{scnt}, s{scnt}, 1\ns_cmp_eq_u32 s{scnt}, 0\ns_cbranch_scc1 {l1}")
    a(f"s_sleep 1\nbuffer_load_dwordx2 {vr(vN,2)}, {vr(vz)}, {sr(sDB,4)}, 0 offen sc1\ns_waitcnt vmcnt(0)\ns_branch {l0}")
    a.label(l1)

def tag_check_loop(a, tags, reload, sN, scnt):
    l0 = a.newlabel("TG_l"); l1 = a.newlabel("TG_ok")
    a(f"s_mov_b32 s{scnt}, {SPIN}")
    a.label(l0)
    first = True
    for (lo, hi) in tags:
        for r, s in ((lo, sN), (hi, sN+1)):
            if first: a(f"v_cmp_ne_u32 vcc, s{s}, {vr(r)}\ns_nop 1\ns_mov_b64 s[98:99], vcc"); first = False
            else: a(f"v_cmp_ne_u32 vcc, s{s}, {vr(r)}\ns_nop 1\ns_or_b64 s[98:99], s[98:99], vcc")
    a(f"s_cmp_eq_u64 s[98:99], 0\ns_cbranch_scc1 {l1}")
    a(f"s_sub_u32 s{scnt}, s{scnt}, 1\ns_cmp_eq_u32 s{scnt}, 0\ns_cbranch_scc1 {l1}")
    a("s_sleep 1")
    reload()
    a(f"s_waitcnt vmcnt(0)\ns_branch {l0}")
    a.label(l1)

def set_flag(a, vt, sWS, soff_expr_sreg, sN, vl, sw):
    l = a.newlabel("FL_s")
    a(f"s_cmp_lg_u32 s{sw}, 0\ns_cbranch_scc1 {l}")
    a(f"v_mov_b32 {vr(vt)}, s{sN}\nv_mov_b32 {vr(vt+1)}, s{sN+1}\nv_cmp_eq_u32 vcc, 0, {vr(vl)}\nv_mov_b32 {vr(vt+2)}, 0x7ff00000\nv_mov_b32 {vr(vt+3)}, 0\ns_nop 0\nv_cndmask_b32 {vr(vt+2)}, {vr(vt+2)}, {vr(vt+3)}, vcc")
    a(f"buffer_store_dwordx2 {vr(vt,2)}, {vr(vt+2)}, {sr(sWS,4)}, s{soff_expr_sreg} offen sc1")
    a.label(l)

def role_ln(a, s0, ST, end, opts={}):
    V = Regs("v", 1, 256); S = Regs("s", s0, 96)
    sX = S.alloc(4,4); sWS = S.alloc(4,4); sDB = S.alloc(4,4)
    pX = S.alloc(2,2); pWS = S.alloc(2,2); pDB = S.alloc(2,2); sN = S.alloc(2,2)
    sw = S.alloc(); st = [S.alloc() for _ in range(6)]
    a("s_setprio 2")
    a(f"s_load_dwordx2 {sr(pX,2)}, s[0:1], 0\ns_load_dwordx2 {sr(pWS,2)}, s[0:1], 128\ns_load_dwordx2 {sr(pDB,2)}, s[0:1], 120")
    vl = V.alloc(); vt = V.alloc(4,2); vt0, vt1, vt2, vt3 = vt, vt+1, vt+2, vt+3
    vXo = V.alloc(); vR = V.alloc(); vP = V.alloc(); vN = V.alloc(2,2); vz = V.alloc()
    a(f"v_lshrrev_b32 {vr(vt0)}, 6, v0\nv_and_b32 {vr(vl)}, 63, v0\nv_readfirstlane_b32 s{sw}, {vr(vt0)}")
    a(f"v_lshrrev_b32 {vr(vR)}, 2, {vr(vl)}\nv_and_b32 {vr(vP)}, 3, {vr(vl)}")
    a(f"s_lshl_b32 s{st[0]}, s2, 6\ns_lshl_b32 s{st[1]}, s{sw}, 4\ns_add_u32 s{st[0]}, s{st[0]}, s{st[1]}")
    a(f"v_add_u32 {vr(vt0)}, s{st[0]}, {vr(vR)}\nv_mul_u32_u24 {vr(vt0)}, 896, {vr(vt0)}\nv_lshl_add_u32 {vr(vXo)}, {vr(vP)}, 4, {vr(vt0)}")
    a("s_waitcnt lgkmcnt(0)")
    srd(a, sX, pX, X_BYTES); srd(a, sDB, pDB, 256)
    vx = V.alloc(56,4)
    for m in range(14):
        a(f"buffer_load_dwordx4 {vr(vx+4*m,4)}, {vr(vXo)}, {sr(sX,4)}, 0 offen offset:{64*m}")
    ln = a.newlabel("LN_nn")
    a(f"s_or_b32 s{st[1]}, s2, s{sw}\ns_cmp_lg_u32 s{st[1]}, 0\ns_cbranch_scc1 {ln}")
    a(f"s_memrealtime {sr(sN,2)}\ns_waitcnt lgkmcnt(0)\ns_or_b32 s{sN}, s{sN}, 1\nv_mov_b32 {vr(vN)}, s{sN}\nv_mov_b32 {vr(vN+1)}, s{sN+1}\nv_mov_b32 {vr(vz)}, 0")
    a(f"buffer_store_dwordx2 {vr(vN,2)}, {vr(vz)}, {sr(sDB,4)}, 0 offen sc1\ns_waitcnt vmcnt(0)")
    a.label(ln)
    nonce_issue(a, vN, vz, sDB)
    srd(a, sWS, pWS, WS_SIZE)
    ST.stamp()
    sOnes = S.alloc()
    a(f"s_mov_b32 s{sOnes}, 0x3f803f80")
    v1 = [V.alloc(), V.alloc()]; v2 = [V.alloc(), V.alloc()]
    for r in v1+v2: a(f"v_mov_b32 {vr(r)}, 0")
    LX = 0; L_MS = 64*912
    vLw = V.alloc()
    a(f"s_lshl_b32 s{st[1]}, s{sw}, 4\nv_add_u32 {vr(vt0)}, s{st[1]}, {vr(vR)}\nv_mul_u32_u24 {vr(vt0)}, 912, {vr(vt0)}\nv_lshl_add_u32 {vr(vLw)}, {vr(vP)}, 4, {vr(vt0)}")
    for m in range(14):
        a(f"s_waitcnt vmcnt({14-m})")
        for q in range(4):
            a(f"v_dot2c_f32_bf16 {vr(v2[q&1])}, {vr(vx+4*m+q)}, {vr(vx+4*m+q)}")
            a(f"v_dot2c_f32_bf16 {vr(v1[q&1])}, s{sOnes}, {vr(vx+4*m+q)}")
        a(f"ds_write_b128 {vr(vLw)}, {vr(vx+4*m,4)} offset:{LX+64*m}")
    a("s_nop 3")
    a(f"v_add_f32 {vr(v1[0])}, {vr(v1[0])}, {vr(v1[1])}\nv_add_f32 {vr(v2[0])}, {vr(v2[0])}, {vr(v2[1])}\ns_nop 1")
    for ctl in ("quad_perm:[1,0,3,2]", "quad_perm:[2,3,0,1]"):
        a(f"v_add_f32_dpp {vr(v1[0])}, {vr(v1[0])}, {vr(v1[0])} {ctl} row_mask:0xf bank_mask:0xf")
        a(f"v_add_f32_dpp {vr(v2[0])}, {vr(v2[0])}, {vr(v2[0])} {ctl} row_mask:0xf bank_mask:0xf")
        a("s_nop 1")
    vMean = v1[0]; vE2 = v2[0]
    g = V.alloc(4,4); vMr = g; vRstd = g+1
    inv = fhex(1.0/448)
    a(f"v_mul_f32 {vr(vMean)}, {inv}, {vr(vMean)}\nv_mul_f32 {vr(vE2)}, {inv}, {vr(vE2)}")
    a(f"v_fma_f32 {vr(vE2)}, -{vr(vMean)}, {vr(vMean)}, {vr(vE2)}\nv_max_f32 {vr(vE2)}, 0, {vr(vE2)}")
    a(f"v_cvt_pk_bf16_f32 {vr(vt2)}, {vr(vMean)}, {vr(vE2)}")
    a(f"v_lshlrev_b32 {vr(vMean)}, 16, {vr(vt2)}\nv_and_b32 {vr(vE2)}, 0xffff0000, {vr(vt2)}")
    a(f"v_add_f32 {vr(vE2)}, {fhex(1e-5)}, {vr(vE2)}\nv_cvt_pk_bf16_f32 {vr(vE2)}, {vr(vE2)}, {vr(vE2)}\nv_lshlrev_b32 {vr(vE2)}, 16, {vr(vE2)}")
    a(f"v_sqrt_f32 {vr(vE2)}, {vr(vE2)}\ns_nop 0\nv_cvt_pk_bf16_f32 {vr(vE2)}, {vr(vE2)}, {vr(vE2)}\nv_lshlrev_b32 {vr(vE2)}, 16, {vr(vE2)}")
    a(f"v_rcp_f32 {vr(vRstd)}, {vr(vE2)}\ns_nop 0\nv_mul_f32 {vr(vMr)}, {vr(vMean)}, {vr(vRstd)}")
    a("s_waitcnt vmcnt(0)")
    nonce_finish(a, vN, vz, sDB, sN, st[2])
    a(f"v_mov_b32 {vr(g+2)}, s{sN}\nv_mov_b32 {vr(g+3)}, s{sN+1}")
    a(f"v_add_u32 {vr(vt0)}, s{st[0]}, {vr(vR)}\nv_lshlrev_b32 {vr(vt0)}, 4, {vr(vt0)}")
    a(f"v_cmp_eq_u32 vcc, 0, {vr(vP)}\nv_mov_b32 {vr(vt1)}, 0x7ff00000\ns_nop 0\nv_cndmask_b32 {vr(vt0)}, {vr(vt1)}, {vr(vt0)}, vcc")
    a(f"s_mov_b32 s{st[3]}, {WS_STATS}\nbuffer_store_dwordx4 {vr(g,4)}, {vr(vt0)}, {sr(sWS,4)}, s{st[3]} offen sc1")
    ST.stamp()
    a(f"s_lshl_b32 s{st[1]}, s{sw}, 4\nv_add_u32 {vr(vt0)}, s{st[1]}, {vr(vR)}\nv_lshlrev_b32 {vr(vt0)}, 3, {vr(vt0)}\nds_write_b64 {vr(vt0)}, {vr(g,2)} offset:{L_MS}")
    a("s_waitcnt lgkmcnt(0)\ns_barrier")
    ms = V.alloc(32,4)
    a(f"v_lshrrev_b32 {vr(vt0)}, 4, {vr(vl)}\nv_lshlrev_b32 {vr(vt0)}, 6, {vr(vt0)}")
    for v in range(2):
        for q in range(4): a(f"ds_read_b128 {vr(ms+16*v+4*q,4)}, {vr(vt0)} offset:{L_MS + 256*v + 16*q}")
    vA = V.alloc(); vO = V.alloc(); vSw = V.alloc(); vSr = V.alloc()
    a(f"v_lshrrev_b32 {vr(vt0)}, 4, {vr(vl)}\nv_lshlrev_b32 {vr(vt0)}, 3, {vr(vt0)}\nv_bfe_u32 {vr(vt1)}, {vr(vl)}, 2, 2\nv_add_u32 {vr(vt0)}, {vr(vt0)}, {vr(vt1)}\nv_mul_u32_u24 {vr(vt0)}, 912, {vr(vt0)}")
    a(f"v_and_b32 {vr(vt1)}, 3, {vr(vl)}\nv_lshl_add_u32 {vr(vt0)}, {vr(vt1)}, 3, {vr(vt0)}\ns_lshl_b32 s{st[1]}, s{sw}, 5\nv_add_u32 {vr(vA)}, s{st[1]}, {vr(vt0)}")
    L_SG = L_MS + 512
    a(f"v_and_b32 {vr(vt0)}, 15, {vr(vl)}\nv_and_b32 {vr(vt1)}, 7, {vr(vl)}\nv_lshrrev_b32 {vr(vt2)}, 4, {vr(vl)}\nv_xor_b32 {vr(vt1)}, {vr(vt1)}, {vr(vt2)}\nv_lshlrev_b32 {vr(vt1)}, 4, {vr(vt1)}\nv_lshl_add_u32 {vr(vt0)}, {vr(vt0)}, 7, {vr(vt1)}")
    a(f"s_lshl_b32 s{st[1]}, s{sw}, 11\ns_add_u32 s{st[1]}, s{st[1]}, {L_SG}\nv_add_u32 {vr(vSw)}, s{st[1]}, {vr(vt0)}\nv_lshlrev_b32 {vr(vt0)}, 4, {vr(vl)}\nv_add_u32 {vr(vSr)}, s{st[1]}, {vr(vt0)}")
    a(f"v_lshrrev_b32 {vr(vt0)}, 3, {vr(vl)}\nv_and_b32 {vr(vt1)}, 7, {vr(vl)}\nv_xor_b32 {vr(vt1)}, {vr(vt1)}, {vr(vt0)}\nv_lshlrev_b32 {vr(vt1)}, 4, {vr(vt1)}\nv_lshl_add_u32 {vr(vt0)}, {vr(vt0)}, 7, {vr(vt1)}")
    a(f"s_mul_i32 s{st[1]}, s2, 57344\ns_lshl_b32 s{st[2]}, s{sw}, 11\ns_add_u32 s{st[1]}, s{st[1]}, s{st[2]}\ns_add_u32 s{st[1]}, s{st[1]}, {WS_XNT}\nv_add_u32 {vr(vO)}, s{st[1]}, {vr(vt0)}")
    raw = V.alloc(8,2); nxt = V.alloc(8,2); tmp = V.alloc(8,2); pk = V.alloc(8,2); ob = V.alloc(8,2)
    sn = S.alloc(); so = S.alloc()
    def trs(dst):
        for v in range(2):
            for u in range(2):
                a(f"ds_read_b64_tr_b16 {vr(dst+4*v+2*u,2)}, {vr(vA)} offset:{LX + (32*v+4*u)*912}")
    a(f"s_mov_b32 s{sn}, 7\ns_mov_b32 s{so}, 0")
    trs(nxt)
    lp = a.newlabel("LN_lp")
    a.label(lp)
    a("s_waitcnt lgkmcnt(0)")
    for e in range(8): a(f"v_mov_b32 {vr(raw+e)}, {vr(nxt+e)}")
    a(f"v_add_u32 {vr(vA)}, 128, {vr(vA)}")
    trs(nxt)
    for v in range(2):
        for q in range(4):
            a(f"v_lshlrev_b32 {vr(tmp+2*q)}, 16, {vr(raw+4*v+q)}\nv_and_b32 {vr(tmp+2*q+1)}, 0xffff0000, {vr(raw+4*v+q)}")
        for e in range(8): a(f"v_fma_f32 {vr(tmp+e)}, {vr(tmp+e)}, {vr(ms+16*v+2*e+1)}, -{vr(ms+16*v+2*e)}")
        for q in range(4): a(f"v_cvt_pk_bf16_f32 {vr(pk+4*v+q)}, {vr(tmp+2*q)}, {vr(tmp+2*q+1)}")
        if v == 0: a(f"ds_write_b128 {vr(vSw)}, {vr(pk,4)}")
        else: a(f"v_xor_b32 {vr(vt0)}, 64, {vr(vSw)}\nds_write_b128 {vr(vt0)}, {vr(pk+4,4)}")
    a(f"ds_read_b128 {vr(ob,4)}, {vr(vSr)}\nds_read_b128 {vr(ob+4,4)}, {vr(vSr)} offset:1024")
    a("s_waitcnt lgkmcnt(0)")
    XF = opts.get("lnfl", "sc1")
    if not opts.get("lnnost"): a(f"buffer_store_dwordx4 {vr(ob,4)}, {vr(vO)}, {sr(sWS,4)}, s{so} offen {XF}\nbuffer_store_dwordx4 {vr(ob+4,4)}, {vr(vO)}, {sr(sWS,4)}, s{so} offen offset:1024 {XF}")
    a(f"s_add_u32 s{so}, s{so}, {64*128}\ns_sub_u32 s{sn}, s{sn}, 1\ns_cmp_lg_u32 s{sn}, 0\ns_cbranch_scc1 {lp}")
    if opts.get("lnwb"): a("s_waitcnt vmcnt(0)\nbuffer_wbl2 sc1")
    a("s_waitcnt vmcnt(0)\ns_barrier")
    a(f"s_lshl_b32 s{st[1]}, s2, 3\ns_add_u32 s{st[1]}, s{st[1]}, {F_XF}")
    set_flag(a, vt, sWS, st[1], sN, vl, sw)
    a("s_waitcnt vmcnt(0)")
    ST.stamp()
    ST.flush(sWS, WS_STAMP, vt0, 2*((st[0]+1)//2), 2)
    a(f"s_branch {end}")
    return V.hi, S.hi

def role_cs(a, s0, ST, end, opts={}):
    V = Regs("v", 1, 256); S = Regs("s", s0, 96)
    sW1 = S.alloc(4,4); sWS = S.alloc(4,4); sDB = S.alloc(4,4); sW2 = S.alloc(4,4)
    pW1 = S.alloc(2,2); pWS = S.alloc(2,2); pDB = S.alloc(2,2); pW2 = S.alloc(2,2); sN = S.alloc(2,2)
    sw = S.alloc(); sq = S.alloc(); st = [S.alloc() for _ in range(6)]
    a("s_setprio 2")
    a(f"s_load_dwordx2 {sr(pW1,2)}, s[0:1], 80\ns_load_dwordx2 {sr(pWS,2)}, s[0:1], 128\ns_load_dwordx2 {sr(pDB,2)}, s[0:1], 120\ns_load_dwordx2 {sr(pW2,2)}, s[0:1], 96")
    vl = V.alloc(); vt = V.alloc(4,2); vt0, vt1, vt2, vt3 = vt, vt+1, vt+2, vt+3
    vWo = V.alloc(); vR = V.alloc(); vP = V.alloc(); vN = V.alloc(2,2); vz = V.alloc(); vW2o = V.alloc()
    a(f"v_lshrrev_b32 {vr(vt0)}, 6, v0\nv_and_b32 {vr(vl)}, 63, v0\nv_readfirstlane_b32 s{sw}, {vr(vt0)}")
    a(f"s_sub_u32 s{sq}, s2, {ID_CS}")
    a(f"v_lshrrev_b32 {vr(vR)}, 3, {vr(vl)}\nv_and_b32 {vr(vP)}, 7, {vr(vl)}")
    a(f"s_mul_i32 s{st[1]}, s{sw}, 112\nv_add_u32 {vr(vt0)}, s{st[1]}, {vr(vR)}\nv_mul_u32_u24 {vr(vt0)}, 3584, {vr(vt0)}\nv_lshl_add_u32 {vr(vt0)}, {vr(vP)}, 4, {vr(vt0)}")
    a(f"s_lshl_b32 s{st[2]}, s{sq}, 7\nv_add_u32 {vr(vWo)}, s{st[2]}, {vr(vt0)}")
    sKap = S.alloc(); sDb = S.alloc()
    a(f"s_lshr_b32 s{sDb}, s{sq}, 1\ns_and_b32 s{sKap}, s{sq}, 1\ns_mul_i32 s{sKap}, s{sKap}, 56\ns_mul_i32 s{st[1]}, s{sw}, 14\ns_add_u32 s{sKap}, s{sKap}, s{st[1]}")
    a(f"v_lshrrev_b32 {vr(vt0)}, 2, {vr(vl)}\ns_lshl_b32 s{st[1]}, s{sKap}, 4\nv_add_u32 {vr(vt0)}, s{st[1]}, {vr(vt0)}\nv_mul_u32_u24 {vr(vt0)}, 896, {vr(vt0)}")
    a(f"v_and_b32 {vr(vt1)}, 3, {vr(vl)}\nv_lshl_add_u32 {vr(vt0)}, {vr(vt1)}, 4, {vr(vt0)}\ns_lshl_b32 s{st[1]}, s{sDb}, 6\nv_add_u32 {vr(vW2o)}, s{st[1]}, {vr(vt0)}")
    a("s_waitcnt lgkmcnt(0)")
    srd(a, sW1, pW1, W_BYTES); srd(a, sDB, pDB, 256)
    vw = V.alloc(56,4)
    for m in range(14):
        a(f"s_mov_b32 s{st[3]}, {m*8*3584}\nbuffer_load_dwordx4 {vr(vw+4*m,4)}, {vr(vWo)}, {sr(sW1,4)}, s{st[3]} offen")
    nonce_issue(a, vN, vz, sDB)
    srd(a, sWS, pWS, WS_SIZE)
    ST.stamp()
    sLo = S.alloc(); sHi = S.alloc()
    a(f"s_mov_b32 s{sLo}, 0x00003f80\ns_mov_b32 s{sHi}, 0x3f800000")
    vc = V.alloc(8,4)
    for e in range(8): a(f"v_mov_b32 {vr(vc+e)}, 0")
    for m in range(14):
        a(f"s_waitcnt vmcnt({13-m+1})")
        for q in range(4):
            a(f"v_dot2c_f32_bf16 {vr(vc+2*q)}, s{sLo}, {vr(vw+4*m+q)}")
            a(f"v_dot2c_f32_bf16 {vr(vc+2*q+1)}, s{sHi}, {vr(vw+4*m+q)}")
    a(f"s_lshl_b32 s{st[1]}, s{sw}, 3\nv_add_u32 {vr(vt0)}, s{st[1]}, {vr(vR)}\nv_lshlrev_b32 {vr(vt0)}, 8, {vr(vt0)}\nv_lshl_add_u32 {vr(vt0)}, {vr(vP)}, 5, {vr(vt0)}")
    a(f"s_nop 1\nds_write_b128 {vr(vt0)}, {vr(vc,4)}\nds_write_b128 {vr(vt0)}, {vr(vc+4,4)} offset:16")
    a("s_waitcnt lgkmcnt(0)\ns_barrier")
    vs = V.alloc(8,4)
    a(f"s_lshl_b32 s{st[1]}, s{sw}, 11\nv_lshlrev_b32 {vr(vt0)}, 2, {vr(vl)}\nv_add_u32 {vr(vt1)}, s{st[1]}, {vr(vt0)}")
    for k in range(8): a(f"ds_read_b32 {vr(vs+k)}, {vr(vt1)} offset:{256*k}")
    a("s_waitcnt lgkmcnt(0)")
    for k in (0,2,4,6): a(f"v_add_f32 {vr(vs+k)}, {vr(vs+k)}, {vr(vs+k+1)}")
    a(f"v_add_f32 {vr(vs)}, {vr(vs)}, {vr(vs+2)}\nv_add_f32 {vr(vs+4)}, {vr(vs+4)}, {vr(vs+6)}\nv_add_f32 {vr(vs)}, {vr(vs)}, {vr(vs+4)}")
    a(f"s_lshl_b32 s{st[1]}, s{sw}, 8\nv_add_u32 {vr(vt1)}, s{st[1]}, {vr(vt0)}\nds_write_b32 {vr(vt1)}, {vr(vs)} offset:8192")
    a(f"s_waitcnt vmcnt(0) lgkmcnt(0)\ns_barrier")
    nonce_finish(a, vN, vz, sDB, sN, st[2])
    l1 = a.newlabel("CS_w0")
    a(f"s_cmp_lg_u32 s{sw}, 0\ns_cbranch_scc1 {l1}")
    a(f"v_and_b32 {vr(vt0)}, 31, {vr(vl)}\nv_lshlrev_b32 {vr(vt1)}, 3, {vr(vt0)}")
    for k in range(4): a(f"ds_read_b64 {vr(vs+2*k,2)}, {vr(vt1)} offset:{8192+256*k}")
    a("s_waitcnt lgkmcnt(0)")
    for e in range(2):
        a(f"v_add_f32 {vr(vs+e)}, {vr(vs+e)}, {vr(vs+2+e)}\nv_add_f32 {vr(vs+4+e)}, {vr(vs+4+e)}, {vr(vs+6+e)}\nv_add_f32 {vr(vs+e)}, {vr(vs+e)}, {vr(vs+4+e)}")
    a(f"v_mov_b32 {vr(vs+2)}, s{sN}\nv_mov_b32 {vr(vs+3)}, s{sN+1}\nv_lshlrev_b32 {vr(vt0)}, 4, {vr(vt0)}\ns_lshl_b32 s{st[1]}, s{sq}, 9\ns_add_u32 s{st[1]}, s{st[1]}, {WS_CS}")
    a(f"buffer_store_dwordx4 {vr(vs,4)}, {vr(vt0)}, {sr(sWS,4)}, s{st[1]} offen sc1")
    a.label(l1)
    ST.stamp()
    if opts.get("csw2", 0):
        srd(a, sW2, pW2, W_BYTES)
        a(f"v_lshlrev_b32 {vr(vt0)}, 7, {vr(vl)}\ns_mul_i32 s{st[1]}, s{sq}, {64*896}\ns_mul_i32 s{st[2]}, s{sw}, {16*896}\ns_add_u32 s{st[1]}, s{st[1]}, s{st[2]}")
        a(f"buffer_load_dword {vr(vt1)}, {vr(vt0)}, {sr(sW2,4)}, s{st[1]} offen")
        a(f"v_cmp_gt_u32 vcc, 48, {vr(vl)}\nv_add_u32 {vr(vt0)}, 8192, {vr(vt0)}\nv_mov_b32 {vr(vt2)}, 0x7ff00000\ns_nop 0\nv_cndmask_b32 {vr(vt0)}, {vr(vt2)}, {vr(vt0)}, vcc")
        a(f"buffer_load_dword {vr(vt3)}, {vr(vt0)}, {sr(sW2,4)}, s{st[1]} offen")
    a("s_waitcnt vmcnt(0)")
    ST.stamp()
    ST.flush(sWS, WS_STAMP, vt0, 2*((st[0]+1)//2), 2)
    a(f"s_branch {end}")
    return V.hi, S.hi
```

```python
from asm import *
from common import *
from roles_small import nonce_issue, nonce_finish, tag_check_loop, set_flag

def role_g(a, s0, ST, end, depth=5, opts={}):
    depth = opts.get('depth', depth)
    V = Regs("v", 1, 256); S = Regs("s", s0, 96)
    sX = S.alloc(4,4); sW1 = S.alloc(4,4); sWS = S.alloc(4,4); sB1 = S.alloc(4,4); sDB = S.alloc(4,4)
    pB2 = S.alloc(2,2); pO = S.alloc(2,2); sN = S.alloc(2,2); sW2 = S.alloc(4,4)
    sw = S.alloc(); swf = S.alloc(); swt = S.alloc(); si = S.alloc(); sj = S.alloc(); sid = S.alloc()
    st = [S.alloc() for _ in range(6)]
    a(f"s_setprio {opts.get('gprio', 3)}")
    a(f"s_load_dwordx2 {sr(sX,2)}, s[0:1], 0\ns_load_dwordx2 {sr(sW1,2)}, s[0:1], 80")
    vl = V.alloc(); vt = V.alloc(4,2); vt0, vt1, vt2, vt3 = vt, vt+1, vt+2, vt+3
    a(f"v_lshrrev_b32 {vr(vt0)}, 6, v0\nv_and_b32 {vr(vl)}, 63, v0\nv_readfirstlane_b32 s{sw}, {vr(vt0)}")
    a(f"s_sub_u32 s{sid}, s2, {ID_G}")
    a(f"s_and_b32 s{st[0]}, s{sid}, 7\ns_lshr_b32 s{st[1]}, s{sid}, 3")
    a(f"s_lshr_b32 s{st[2]}, s{st[0]}, 1\ns_lshl_b32 s{st[2]}, s{st[2]}, 2\ns_and_b32 s{st[3]}, s{st[1]}, 3\ns_add_u32 s{si}, s{st[2]}, s{st[3]}")
    a(f"s_and_b32 s{st[2]}, s{st[0]}, 1\ns_mul_i32 s{st[2]}, s{st[2]}, 7\ns_lshr_b32 s{st[3]}, s{st[1]}, 2\ns_add_u32 s{sj}, s{st[2]}, s{st[3]}")
    vXo = [V.alloc(), V.alloc()]; vWo = [V.alloc(), V.alloc()]
    a(f"v_lshrrev_b32 {vr(vt0)}, 3, {vr(vl)}\nv_and_b32 {vr(vt1)}, 7, {vr(vl)}\nv_lshrrev_b32 {vr(vt2)}, 4, {vr(vl)}\nv_xor_b32 {vr(vt1)}, {vr(vt1)}, {vr(vt2)}")
    a(f"s_lshl_b32 s{st[0]}, s{sw}, 4\ns_lshl_b32 s{st[1]}, s{si}, 7\ns_add_u32 s{st[0]}, s{st[0]}, s{st[1]}")
    a(f"v_add_u32 {vr(vt0)}, s{st[0]}, {vr(vt0)}\nv_mul_u32_u24 {vr(vt0)}, 896, {vr(vt0)}\nv_lshl_add_u32 {vr(vXo[0])}, {vr(vt1)}, 4, {vr(vt0)}")
    a(f"v_xor_b32 {vr(vt1)}, 4, {vr(vt1)}\nv_lshl_add_u32 {vr(vXo[1])}, {vr(vt1)}, 4, {vr(vt0)}\nv_add_u32 {vr(vXo[1])}, {8*896}, {vr(vXo[1])}")
    sM0 = S.alloc(); sSo = S.alloc()
    XR, WR = 0, 49152
    a(f"s_lshl_b32 s{sM0}, s{sw}, 11")
    a(f"s_and_b32 s{swf}, s{sw}, 1\ns_lshr_b32 s{swt}, s{sw}, 1")
    ROT = opts.get("rot", 0)
    sRot = [S.alloc() for _ in range(7)]
    if ROT:
        a(f"s_and_b32 s{st[2]}, s{si}, 3\ns_lshl_b32 s{st[2]}, s{st[2]}, 1\ns_add_u32 s{st[2]}, s{st[2]}, s{sj}")
        a(f"s_mul_i32 s{st[3]}, s{st[2]}, 37\ns_lshr_b32 s{st[3]}, s{st[3]}, 8\ns_mul_i32 s{st[3]}, s{st[3]}, 7\ns_sub_u32 s{st[2]}, s{st[2]}, s{st[3]}")
        a(f"s_lshl_b32 s{sRot[0]}, s{st[2]}, 7")
        a(f"s_add_u32 s{sRot[1]}, s{sRot[0]}, 128\ns_cmp_eq_u32 s{sRot[1]}, 896\ns_cselect_b32 s{sRot[1]}, 0, s{sRot[1]}")
    if opts.get("prost"): ST.stamp()
    a("s_waitcnt lgkmcnt(0)")
    if opts.get("prost"): ST.stamp()
    srd_fix(a, sX, X_BYTES); srd_fix(a, sW1, W_BYTES)
    vN = V.alloc(2,2); vz = V.alloc(); vB1 = V.alloc()
    vm = []
    def dma_x(c, half):
        o = XR + (c % 3)*16384 + half*8192
        so = f"s_add_u32 s{sSo}, s{sRot[c]}, {half*64*896}" if ROT else f"s_mov_b32 s{sSo}, {c*128 + half*64*896}"
        return [(f"s_add_u32 m0, s{sM0}, {o+1024*u}", so, f"buffer_load_dwordx4 {vr(vXo[u])}, {sr(sX,4)}, s{sSo} offen {opts.get('xfl','')} lds", ("x",c)) for u in range(2)]
    def dma_w(s_):
        o = WR + (s_ % 4)*8192
        so = f"s_mul_i32 s{sSo}, s{sRot[s_//2]}, 1792\ns_add_u32 s{sSo}, s{sSo}, {(s_%2)*114688}" if ROT else f"s_mov_b32 s{sSo}, {s_*114688}"
        return [(f"s_add_u32 m0, s{sM0}, {o+1024*u}", so, f"buffer_load_dwordx4 {vr(vWo[u])}, {sr(sW1,4)}, s{sSo} offen {opts.get('wfl','')} lds", ("w",s_)) for u in range(2)]
    def emit_dma(d):
        a(d[0]); a(d[1]); a(d[2]); vm.append(d[3])
    def wait_tags(tags):
        last = max(i for i,e in enumerate(vm) if e in tags)
        a(f"s_waitcnt vmcnt({len(vm)-1-last})")
    vA = [V.alloc(), V.alloc()]; vB = [V.alloc() for _ in range(4)]
    vT = V.alloc()
    vx = V.alloc(8,2); vb2 = V.alloc(8,2); vXo2 = V.alloc()
    persist = V.mark()
    acc = V.alloc(64,4)
    fill = Asm(); f = fill
    vg = vt0; vr_ = vt1; vcq = vt2
    f(f"v_lshrrev_b32 {vr(vg)}, 4, {vr(vl)}\nv_bfe_u32 {vr(vr_)}, {vr(vl)}, 2, 2\nv_and_b32 {vr(vcq)}, 3, {vr(vl)}")
    f(f"v_and_b32 {vr(vt3)}, 1, {vr(vg)}\nv_lshlrev_b32 {vr(vt3)}, 1, {vr(vt3)}\nv_lshrrev_b32 {vr(vA[0])}, 1, {vr(vcq)}\nv_add_u32 {vr(vt3)}, {vr(vt3)}, {vr(vA[0])}")
    f(f"s_lshl_b32 s{st[0]}, s{swf}, 3\nv_add_u32 {vr(vt3)}, s{st[0]}, {vr(vt3)}")
    f(f"v_lshlrev_b32 {vr(vA[0])}, 2, {vr(vr_)}\nv_xor_b32 {vr(vt3)}, {vr(vt3)}, {vr(vA[0])}")
    f(f"v_lshlrev_b32 {vr(vt3)}, 4, {vr(vt3)}")
    f(f"v_and_b32 {vr(vcq)}, 1, {vr(vcq)}\nv_lshl_add_u32 {vr(vt3)}, {vr(vcq)}, 3, {vr(vt3)}")
    f(f"v_lshrrev_b32 {vr(vg)}, 1, {vr(vg)}\nv_lshl_add_u32 {vr(vg)}, {vr(vg)}, 3, {vr(vr_)}")
    f(f"v_lshl_add_u32 {vr(vt3)}, {vr(vg)}, 8, {vr(vt3)}")
    f(f"v_add_u32 {vr(vA[0])}, {WR}, {vr(vt3)}\nv_xor_b32 {vr(vA[1])}, 64, {vr(vA[0])}")
    f(f"v_and_b32 {vr(vT)}, 31, {vr(vl)}\ns_lshl_b32 s{st[0]}, s{swt}, 6\nv_add_u32 {vr(vT)}, s{st[0]}, {vr(vT)}")
    f(f"v_bfe_u32 {vr(vt0)}, {vr(vT)}, 1, 3\nv_lshrrev_b32 {vr(vt1)}, 5, {vr(vl)}\nv_xor_b32 {vr(vt0)}, {vr(vt0)}, {vr(vt1)}\nv_lshlrev_b32 {vr(vt0)}, 4, {vr(vt0)}")
    f(f"v_lshl_add_u32 {vr(vB[0])}, {vr(vT)}, 7, {vr(vt0)}")
    for k in range(1,4): f(f"v_xor_b32 {vr(vB[k])}, {32*k}, {vr(vB[0])}")
    for i in range(64): f(f"v_mov_b32 {vr(acc+i)}, 0")
    FL = [l.strip() for l in fill.lines]
    if ROT:
        FL = [f"s_add_u32 s{sRot[n]}, s{sRot[n-1]}, 128\ns_cmp_eq_u32 s{sRot[n]}, 896\ns_cselect_b32 s{sRot[n]}, 0, s{sRot[n]}" for n in range(2,7)] + FL
    def take(n):
        for _ in range(n):
            if FL: a(FL.pop(0))
    pro = dma_x(0,0) + dma_x(0,1) + dma_w(0) + dma_w(1) + dma_x(1,0) + dma_x(1,1) + dma_w(2)
    for n, d in enumerate(pro):
        emit_dma(d)
        if n == 1:
            a(f"s_load_dwordx2 {sr(sB1,2)}, s[0:1], 88\ns_load_dwordx2 {sr(sWS,2)}, s[0:1], 128\ns_load_dwordx2 {sr(sDB,2)}, s[0:1], 120")
            a(f"s_load_dwordx2 {sr(pB2,2)}, s[0:1], 104\ns_load_dwordx2 {sr(pO,2)}, s[0:1], 112\ns_load_dwordx2 {sr(sW2,2)}, s[0:1], 96")
            a(f"v_and_b32 {vr(vt1)}, 15, {vr(vl)}\nv_lshlrev_b32 {vr(vt3)}, 2, {vr(vt2)}\nv_xor_b32 {vr(vt1)}, {vr(vt1)}, {vr(vt3)}")
            a(f"s_lshl_b32 s{st[0]}, s{sw}, 3\nv_add_u32 {vr(vt2)}, s{st[0]}, {vr(vt2)}\nv_mul_u32_u24 {vr(vt2)}, 3584, {vr(vt2)}\nv_lshl_add_u32 {vr(vWo[0])}, {vr(vt1)}, 4, {vr(vt2)}")
            a(f"s_lshl_b32 s{st[1]}, s{sj}, 8\nv_add_u32 {vr(vWo[0])}, s{st[1]}, {vr(vWo[0])}\nv_add_u32 {vr(vWo[1])}, 14336, {vr(vWo[0])}")
        if n == 5: a("s_waitcnt lgkmcnt(0)")
        if n >= 6: take(10)
        if n == 5:
            if opts.get("prost"): ST.stamp()
            srd_fix(a, sDB, 256); srd_fix(a, sB1, 3584)
            a(f"v_and_b32 {vr(vB1)}, 31, {vr(vl)}\nv_lshlrev_b32 {vr(vB1)}, 2, {vr(vB1)}\ns_lshl_b32 s{st[4]}, s{sj}, 8\ns_lshl_b32 s{st[5]}, s{swf}, 7\ns_add_u32 s{st[4]}, s{st[4]}, s{st[5]}")
            a(f"buffer_load_dword {vr(vB1)}, {vr(vB1)}, {sr(sB1,4)}, s{st[4]} offen"); vm.append("b")
    take(1000)
    srd_fix(a, sWS, WS_SIZE); srd_fix(a, sW2, W_BYTES)
    if opts.get("tlb", 0):
        vtl = V.alloc(2,2)
        a(f"v_min_u32 {vr(vt0)}, 6, {vr(vl)}\nv_lshlrev_b32 {vr(vt0)}, 21, {vr(vt0)}\nbuffer_load_dword {vr(vtl)}, {vr(vt0)}, {sr(sWS,4)}, 0 offen"); vm.append("t")
        a(f"v_mov_b32 {vr(vt0)}, 0\nbuffer_load_dword {vr(vtl+1)}, {vr(vt0)}, {sr(sW2,4)}, 0 offen"); vm.append("t")
    frbase = V.alloc(32,4)
    fr = [dict(A=[frbase+16*k, frbase+16*k+4], B=[frbase+16*k+8, frbase+16*k+12]) for k in range(2)]
    def rd_list(s_, ks, k):
        if opts.get('g1_nords'): return ["s_nop 0"]*6
        f_ = fr[k]; L = []
        oa = (s_ % 4)*8192 + ks*4096; c = s_//2; ks4 = 2*(s_ % 2) + ks; ob = (c % 3)*16384
        for fb in range(2):
            L.append(f"ds_read_b64_tr_b16 {vr(f_['A'][fb],2)}, {vr(vA[fb])} offset:{oa}")
            L.append(f"ds_read_b64_tr_b16 {vr(f_['A'][fb]+2,2)}, {vr(vA[fb])} offset:{oa+1024}")
            L.append(f"ds_read_b128 {vr(f_['B'][fb],4)}, {vr(vB[ks4])} offset:{ob+fb*4096}")
        return L
    def mf(k, fb, tb):
        f_ = fr[k]; d = acc + 32*tb + 16*fb
        if opts.get('g1_nomf'): return
        a(f"v_mfma_f32_32x32x16_bf16 {vr(d,16)}, {vr(f_['A'][fb],4)}, {vr(f_['B'][tb],4)}, {vr(d,16)}")
    ST.stamp()
    wait_tags([("x",0), ("w",0)])
    a("s_barrier")
    ST.stamp()
    for l in rd_list(0, 0, 0): a(l)
    def stage(s_, hook=None):
        last = (s_ == 13)
        R1 = rd_list(s_, 1, 1); R0 = rd_list(s_+1, 0, 0) if not last else []
        D = []
        if not opts.get('g1_nodma'):
            if s_ + 3 <= 13: D += dma_w(s_+3)
            if s_//2 + 2 <= 6: D += dma_x(s_//2 + 2, s_ % 2)
        D = list(D)
        def dm():
            if D: emit_dma(D.pop(0))
        a("s_waitcnt lgkmcnt(3)"); mf(0,0,0)
        a(R1[0]); a(R1[1]); a(R1[2])
        a("s_waitcnt lgkmcnt(4)"); mf(0,1,0)
        a(R1[3]); a(R1[4]); a(R1[5])
        a("s_waitcnt lgkmcnt(6)"); mf(0,0,1)
        dm()
        mf(0,1,1)
        if hook: hook()
        dm()
        a("s_waitcnt lgkmcnt(0)")
        if not last and not opts.get('g1_nodma'):
            wait_tags([("w", s_+1)] + ([("x", (s_+1)//2)] if (s_+1) % 2 == 0 else []))
        mf(1,0,0)
        if not last:
            a("s_barrier")
            if opts.get("stg") and s_ in (3,7,11): ST.stamp()
            a(R0[0]); a(R0[1]); a(R0[2])
        mf(1,1,0)
        if not last: a(R0[3]); a(R0[4]); a(R0[5])
        mf(1,0,1)
        dm()
        mf(1,1,1)
        dm()
    vS = [V.alloc(4,4), V.alloc(4,4)]; vC = V.alloc(4,4); vSo = V.alloc(); vCo = V.alloc()
    stt = S.alloc(); sdt = S.alloc(); sdb = S.alloc(); stb = S.alloc(); sd0 = S.alloc(); st0 = S.alloc()
    vW2f = V.alloc(2,2)
    def ld_stats():
        for tb in range(2):
            a(f"buffer_load_dwordx4 {vr(vS[tb],4)}, {vr(vSo)}, {sr(sWS,4)}, 0 offen offset:{512*tb} sc1")
        a(f"buffer_load_dwordx4 {vr(vC,4)}, {vr(vCo)}, {sr(sWS,4)}, 0 offen sc1")
    def hook_stats():
        a(f"s_lshl_b32 s{st[0]}, s{si}, 7\nv_add_u32 {vr(vSo)}, s{st[0]}, {vr(vT)}\nv_lshlrev_b32 {vr(vSo)}, 4, {vr(vSo)}\nv_add_u32 {vr(vSo)}, {WS_STATS}, {vr(vSo)}")
        a(f"v_and_b32 {vr(vCo)}, 31, {vr(vl)}\ns_lshl_b32 s{st[0]}, s{sj}, 6\ns_lshl_b32 s{st[1]}, s{swf}, 5\ns_add_u32 s{st[0]}, s{st[0]}, s{st[1]}\nv_add_u32 {vr(vCo)}, s{st[0]}, {vr(vCo)}\nv_lshlrev_b32 {vr(vCo)}, 4, {vr(vCo)}\nv_add_u32 {vr(vCo)}, {WS_CS}, {vr(vCo)}")
        ld_stats()
        a(f"s_and_b32 s{st[0]}, s{sid}, 7\ns_lshl_b32 s{st[0]}, s{st[0]}, 2\ns_bfe_u32 s{st[1]}, s{sid}, 0x20003\ns_add_u32 s{stt}, s{st[0]}, s{st[1]}\ns_lshr_b32 s{sdt}, s{sid}, 5\ns_lshr_b32 s{sdb}, s{sw}, 1\ns_and_b32 s{stb}, s{sw}, 1")
        a(f"s_lshl_b32 s{sd0}, s{sdt}, 6\ns_lshl_b32 s{st[0]}, s{sdb}, 5\ns_add_u32 s{sd0}, s{sd0}, s{st[0]}")
        a(f"s_lshl_b32 s{st0}, s{stt}, 6\ns_lshl_b32 s{st[0]}, s{stb}, 5\ns_add_u32 s{st0}, s{st0}, s{st[0]}")
    def hook_xb2():
        sB2 = sB1
        srd(a, sB2, pB2, 896)
        a(f"v_and_b32 {vr(vt0)}, 31, {vr(vl)}\nv_lshrrev_b32 {vr(vt1)}, 5, {vr(vl)}")
        a(f"v_add_u32 {vr(vt2)}, s{st0}, {vr(vt0)}\nv_mul_u32_u24 {vr(vt2)}, 896, {vr(vt2)}\nv_lshl_add_u32 {vr(vt2)}, {vr(vt1)}, 3, {vr(vt2)}\ns_lshl_b32 s{st[0]}, s{sd0}, 1\nv_add_u32 {vr(vXo2)}, s{st[0]}, {vr(vt2)}")
        for g in range(4): a(f"buffer_load_dwordx2 {vr(vx+2*g,2)}, {vr(vXo2)}, {sr(sX,4)}, 0 offen offset:{16*g}")
        a(f"v_lshlrev_b32 {vr(vt2)}, 3, {vr(vt1)}\nv_add_u32 {vr(vt2)}, s{st[0]}, {vr(vt2)}")
        for g in range(4): a(f"buffer_load_dwordx2 {vr(vb2+2*g,2)}, {vr(vt2)}, {sr(sB2,4)}, 0 offen offset:{16*g}")
        for _ in range(8): vm.append("xb")
    NST = 3
    for s_ in range(14):
        if s_ == opts.get('ststage', 10):
            def hk():
                nonce_issue(a, vN, vz, sDB); vm.append("n")
                hook_stats()
                for _ in range(NST): vm.append("st")
            stage(s_, hk)
        elif s_ == 12: stage(s_, hook_xb2)
        else: stage(s_)
    ST.stamp()
    wait_tags(["st", "n", "b"])
    if opts.get("stst"): ST.stamp()
    nonce_finish(a, vN, vz, sDB, sN, st[2])
    if opts.get("stst"): ST.stamp()
    tag_check_loop(a, [(vS[0]+2, vS[0]+3), (vS[1]+2, vS[1]+3), (vC+2, vC+3)], ld_stats, sN, st[2])
    ST.stamp()
    sTch = S.alloc(); vTch = V.alloc()
    if opts.get("w2touch", 0):
        a(f"s_and_b32 s{st[0]}, s{stt}, 3\ns_mul_i32 s{st[0]}, s{st[0]}, 448\ns_mul_i32 s{st[1]}, s{sw}, 112\ns_add_u32 s{st[0]}, s{st[0]}, s{st[1]}\ns_mul_i32 s{st[0]}, s{st[0]}, 896\ns_lshl_b32 s{st[1]}, s{sdt}, 7\ns_add_u32 s{sTch}, s{st[0]}, s{st[1]}")
        a(f"v_mul_u32_u24 {vr(vTch)}, 896, {vr(vl)}\nv_cmp_gt_u32 vcc, 28, {vr(vl)}\nv_mov_b32 {vr(vt1)}, 0x7ff00000\ns_nop 0\nv_cndmask_b32 {vr(vTch)}, {vr(vt1)}, {vr(vTch)}, vcc")
    a(f"v_and_b32 {vr(vt0)}, 31, {vr(vl)}\nv_lshlrev_b32 {vr(vt0)}, 3, {vr(vt0)}\ns_lshl_b32 s{st[0]}, s{sw}, 10\ns_add_u32 s{st[0]}, s{st[0]}, 16384\nv_add_u32 {vr(vt0)}, s{st[0]}, {vr(vt0)}")
    a(f"ds_write_b64 {vr(vt0)}, {vr(vC,2)}")
    a(f"v_lshlrev_b32 {vr(vt2)}, 16, {vr(vB1)}\nv_and_b32 {vr(vt3)}, 0xffff0000, {vr(vB1)}\nds_write_b64 {vr(vt0)}, {vr(vt2,2)} offset:256")
    vcs = V.alloc(32,4); vb1 = V.alloc(32,4)
    a(f"v_lshrrev_b32 {vr(vt0)}, 5, {vr(vl)}\nv_lshlrev_b32 {vr(vt0)}, 4, {vr(vt0)}\nv_add_u32 {vr(vt0)}, s{st[0]}, {vr(vt0)}")
    for q in range(8):
        a(f"ds_read_b128 {vr(vcs+4*q,4)}, {vr(vt0)} offset:{32*q}\nds_read_b128 {vr(vb1+4*q,4)}, {vr(vt0)} offset:{256+32*q}")
    vHo = V.alloc(); sH = S.alloc()
    a(f"s_lshl_b32 s{st[0]}, s{si}, 2\ns_lshl_b32 s{st[1]}, s{swt}, 1\ns_add_u32 s{st[0]}, s{st[0]}, s{st[1]}\ns_mul_i32 s{st[0]}, s{st[0]}, 113\ns_lshl_b32 s{st[1]}, s{sj}, 3\ns_add_u32 s{st[0]}, s{st[0]}, s{st[1]}\ns_lshl_b32 s{st[1]}, s{swf}, 2\ns_add_u32 s{st[0]}, s{st[0]}, s{st[1]}\ns_lshl_b32 s{sH}, s{st[0]}, 10")
    a(f"v_lshlrev_b32 {vr(vHo)}, 4, {vr(vl)}")
    vK = V.alloc(4,2); vC0 = vK; vC1 = vK+1; vOne = vK+2; vMR = V.alloc(2,2); vMr = vMR; vRs = vMR+1
    a(f"v_mov_b32 {vr(vC0)}, {fhex(GELU_C0)}\nv_mov_b32 {vr(vC1)}, {fhex(GELU_C1)}\nv_mov_b32 {vr(vOne)}, 1.0\nv_mov_b32 {vr(vMr)}, {vr(vS[0])}\nv_mov_b32 {vr(vRs)}, {vr(vS[0]+1)}")
    hv = frbase; p = frbase+8; vH = [frbase+16, frbase+20]
    sIt = S.alloc(); sIa = S.alloc(); sIc = S.alloc()
    a(f"s_mov_b32 s{sIt}, 0\ns_mov_b32 s{sIa}, 0\ns_mov_b32 s{sIc}, 0\ns_waitcnt lgkmcnt(0)")
    gl = a.newlabel("G1_ge")
    a.label(gl)
    for half in range(2):
        a(f"s_set_gpr_idx_on s{sIc}, gpr_idx(SRC1,SRC2)" + ("\ns_nop 0" if opts.get("idxnop", 0) else ""))
        for e in range(0,8,2): a(f"v_pk_fma_f32 {vr(hv+e,2)}, {vr(vMR,2)}, {vr(vcs+e,2)}, {vr(vb1+e,2)} op_sel:[0,0,0] op_sel_hi:[0,1,1] neg_lo:[1,0,0] neg_hi:[1,0,0]")
        a(f"s_set_gpr_idx_on s{sIa}, gpr_idx(SRC0)" + ("\ns_nop 0" if opts.get("idxnop", 0) else ""))
        for e in range(0,8,2): a(f"v_pk_fma_f32 {vr(hv+e,2)}, {vr(acc+e,2)}, {vr(vMR,2)}, {vr(hv+e,2)} op_sel:[0,1,0] op_sel_hi:[1,1,1]")
        a("s_set_gpr_idx_off" + ("\ns_nop 0" if opts.get("idxnop", 0) else ""))
        for e in range(0,8,2): a(f"v_pk_mul_f32 {vr(p+e,2)}, {vr(hv+e,2)}, {vr(hv+e,2)}")
        for e in range(0,8,2): a(f"v_pk_fma_f32 {vr(p+e,2)}, {vr(p+e,2)}, {vr(vK,2)}, {vr(vK,2)} op_sel:[0,1,0] op_sel_hi:[1,1,0]")
        for e in range(0,8,2): a(f"v_pk_mul_f32 {vr(p+e,2)}, {vr(p+e,2)}, {vr(hv+e,2)}")
        for e in range(8): a(f"v_exp_f32 {vr(p+e)}, {vr(p+e)}")
        for e in range(0,8,2): a(f"v_pk_add_f32 {vr(p+e,2)}, {vr(p+e,2)}, {vr(vK+2,2)} op_sel:[0,0] op_sel_hi:[1,0]")
        for e in range(8): a(f"v_rcp_f32 {vr(p+e)}, {vr(p+e)}")
        for e in range(0,8,2): a(f"v_pk_mul_f32 {vr(hv+e,2)}, {vr(hv+e,2)}, {vr(p+e,2)}")
        for q in range(4): a(f"v_cvt_pk_bf16_f32 {vr(vH[half]+q)}, {vr(hv+2*q)}, {vr(hv+2*q+1)}")
        a(f"buffer_store_dwordx4 {vr(vH[half],4)}, {vr(vHo)}, {sr(sWS,4)}, s{sH} offen sc1")
        a(f"s_add_u32 s{sH}, s{sH}, 1024\ns_add_u32 s{sIa}, s{sIa}, 8\ns_add_u32 s{sIc}, s{sIc}, 8")
    if opts.get("w2touch", 0):
        a(f"buffer_load_dword {vr(vW2f)}, {vr(vTch)}, {sr(sW2,4)}, s{sTch} offen\ns_add_u32 s{sTch}, s{sTch}, {28*896}")
    lnt = a.newlabel("G1_nt")
    a(f"s_add_u32 s{sIt}, s{sIt}, 2\ns_cmp_lg_u32 s{sIt}, 4\ns_cbranch_scc1 {lnt}")
    a(f"s_mov_b32 s{sIc}, 0\ns_add_u32 s{sH}, s{sH}, {FSTR-4096}\nv_mov_b32 {vr(vMr)}, {vr(vS[1])}\nv_mov_b32 {vr(vRs)}, {vr(vS[1]+1)}")
    a.label(lnt)
    a(f"s_cmp_lt_u32 s{sIt}, 8\ns_cbranch_scc1 {gl}")
    a(f"s_setprio {opts.get('gprio2', 0)}")
    ST.stamp()
    hiV = V.hi
    V.n = persist
    gA = [V.alloc(), V.alloc()]; gB = [V.alloc(), V.alloc()]; gWo = V.alloc()
    vYo = V.alloc(); vFo = V.alloc(); vFl = V.alloc(2,2); vF2 = V.alloc(2,2); vF2o = V.alloc()
    sO = sW1
    srd(a, sO, pO, X_BYTES)
    LW = 0; WSL = 8; LEAD = opts.get('lead', 6)
    sLW = S.alloc(); sWk = S.alloc()
    a(f"v_lshrrev_b32 {vr(vt0)}, 3, {vr(vl)}\nv_bfe_u32 {vr(vt1)}, {vr(vl)}, 4, 1\nv_lshlrev_b32 {vr(vt1)}, 2, {vr(vt1)}\nv_and_b32 {vr(vt2)}, 7, {vr(vl)}\nv_xor_b32 {vr(vt1)}, {vr(vt1)}, {vr(vt2)}")
    a(f"v_mul_u32_u24 {vr(vt0)}, 896, {vr(vt0)}\nv_lshl_add_u32 {vr(vt0)}, {vr(vt1)}, 4, {vr(vt0)}\ns_lshl_b32 s{st[0]}, s{sdt}, 7\ns_mul_i32 s{st[1]}, s{sw}, {448*896}\ns_add_u32 s{st[0]}, s{st[0]}, s{st[1]}\nv_add_u32 {vr(gWo)}, s{st[0]}, {vr(vt0)}")
    a(f"s_lshl_b32 s{sLW}, s{sw}, 14")
    a(f"v_lshrrev_b32 {vr(vt0)}, 5, {vr(vl)}\nv_lshlrev_b32 {vr(vt0)}, 2, {vr(vt0)}\nv_bfe_u32 {vr(vt1)}, {vr(vl)}, 2, 2\nv_add_u32 {vr(vt0)}, {vr(vt0)}, {vr(vt1)}\nv_lshlrev_b32 {vr(vt0)}, 7, {vr(vt0)}")
    a(f"v_lshrrev_b32 {vr(vt1)}, 1, {vr(vt1)}\nv_xor_b32 {vr(vt1)}, s{sdb}, {vr(vt1)}\nv_lshl_add_u32 {vr(vt0)}, {vr(vt1)}, 6, {vr(vt0)}\nv_bfe_u32 {vr(vt1)}, {vr(vl)}, 4, 1\nv_lshl_add_u32 {vr(vt0)}, {vr(vt1)}, 5, {vr(vt0)}")
    a(f"v_and_b32 {vr(vt1)}, 3, {vr(vl)}\nv_lshl_add_u32 {vr(vt0)}, {vr(vt1)}, 3, {vr(vt0)}\nv_add_u32 {vr(gA[0])}, s{sLW}, {vr(vt0)}\nv_xor_b32 {vr(gA[1])}, 64, {vr(gA[0])}")
    a(f"v_lshlrev_b32 {vr(vt0)}, 4, {vr(vl)}\ns_mul_i32 s{st[0]}, s{sw}, {28*1024}")
    for i in range(2):
        a(f"s_xor_b32 s{st[1]}, s{stb}, {i}\ns_lshl_b32 s{st[2]}, s{stt}, 1\ns_add_u32 s{st[1]}, s{st[1]}, s{st[2]}\ns_mul_i32 s{st[1]}, s{st[1]}, {FSTR}\ns_add_u32 s{st[1]}, s{st[1]}, s{st[0]}")
        a(f"v_add_u32 {vr(gB[i])}, s{st[1]}, {vr(vt0)}")
    a(f"v_and_b32 {vr(vt0)}, 31, {vr(vl)}\nv_lshrrev_b32 {vr(vt1)}, 5, {vr(vl)}")
    a(f"v_and_b32 {vr(vt2)}, 30, {vr(vt0)}\nv_lshlrev_b32 {vr(vt2)}, 1, {vr(vt2)}\nv_lshl_add_u32 {vr(vt2)}, {vr(vt1)}, 9, {vr(vt2)}")
    a(f"s_mul_i32 s{st[0]}, s{stt}, 57344\ns_lshl_b32 s{st[1]}, s{sd0}, 7\ns_add_u32 s{st[0]}, s{st[0]}, s{st[1]}\ns_lshl_b32 s{st[1]}, s{stb}, 6\ns_add_u32 s{st[0]}, s{st[0]}, s{st[1]}\ns_add_u32 s{st[0]}, s{st[0]}, {WS_Y}")
    a(f"v_add_u32 {vr(vYo)}, s{st[0]}, {vr(vt2)}")
    a(f"v_add_u32 {vr(vt2)}, s{sd0}, {vr(vt0)}\nv_lshrrev_b32 {vr(vt2)}, 1, {vr(vt2)}\nv_lshlrev_b32 {vr(vt2)}, 3, {vr(vt2)}\nv_add_u32 {vr(vF2o)}, {F_YF}, {vr(vt2)}")
    a(f"s_lshr_b32 s{st[0]}, s{stt}, 1\ns_mul_i32 s{st[0]}, s{st[0]}, {14*128}\ns_add_u32 s{st[0]}, s{st[0]}, {WS_HF}\nv_min_u32 {vr(vt2)}, 13, {vr(vl)}\nv_lshlrev_b32 {vr(vt2)}, 7, {vr(vt2)}\nv_add_u32 {vr(vt2)}, s{st[0]}, {vr(vt2)}")
    a(f"v_mov_b32 {vr(vFo)}, {vr(vt2)}")
    vm2 = []
    def w_dma(k, u):
        a(f"s_add_u32 m0, s{sLW}, {(k % WSL)*2048 + 1024*u}\ns_mov_b32 s{sWk}, {(16*k + 8*u)*896}\nbuffer_load_dwordx4 {vr(gWo)}, {sr(sW2,4)}, s{sWk} offen {opts.get('w2fl','')} lds"); vm2.append(("w",k))
    a("s_waitcnt vmcnt(0)\ns_barrier")
    lpub = a.newlabel("G_pub"); lpol = a.newlabel("G_pol")
    a(f"s_cmp_lg_u32 s{sw}, 3\ns_cbranch_scc1 {lpub}")
    a(f"s_mul_i32 s{st[0]}, s{si}, 14\ns_add_u32 s{st[0]}, s{st[0]}, s{sj}\ns_lshl_b32 s{st[0]}, s{st[0]}, 7\ns_add_u32 s{st[0]}, s{st[0]}, {WS_HF}")
    a(f"v_mov_b32 {vr(vt0)}, s{sN}\nv_mov_b32 {vr(vt1)}, s{sN+1}\nv_cmp_eq_u32 vcc, 0, {vr(vl)}\nv_mov_b32 {vr(vt2)}, 0x7ff00000\nv_mov_b32 {vr(vt3)}, 0\ns_nop 0\nv_cndmask_b32 {vr(vt2)}, {vr(vt2)}, {vr(vt3)}, vcc")
    a(f"buffer_store_dwordx2 {vr(vt,2)}, {vr(vt2)}, {sr(sWS,4)}, s{st[0]} offen sc1")
    a.label(lpub)
    for k in range(LEAD):
        w_dma(k, 0); w_dma(k, 1)
    ST.stamp()
    if opts.get("skip_g2"): a(f"s_waitcnt vmcnt(0)\ns_branch {end}")
    def ld_hf(): a(f"buffer_load_dwordx2 {vr(vFl,2)}, {vr(vFo)}, {sr(sWS,4)}, 0 offen sc1")
    base = V.alloc(16,4); tmp = V.alloc(4,4); vsh = V.alloc()
    def base0_lines():
        B = Asm()
        for g in range(4):
            B(f"v_lshlrev_b32 {vr(base+4*g)}, 16, {vr(vx+2*g)}\nv_and_b32 {vr(base+4*g+1)}, 0xffff0000, {vr(vx+2*g)}\nv_lshlrev_b32 {vr(base+4*g+2)}, 16, {vr(vx+2*g+1)}\nv_and_b32 {vr(base+4*g+3)}, 0xffff0000, {vr(vx+2*g+1)}")
            B(f"v_lshlrev_b32 {vr(tmp)}, 16, {vr(vb2+2*g)}\nv_and_b32 {vr(tmp+1)}, 0xffff0000, {vr(vb2+2*g)}\nv_lshlrev_b32 {vr(tmp+2)}, 16, {vr(vb2+2*g+1)}\nv_and_b32 {vr(tmp+3)}, 0xffff0000, {vr(vb2+2*g+1)}")
            for i in range(4): B(f"v_add_f32 {vr(base+4*g+i)}, {vr(base+4*g+i)}, {vr(tmp+i)}")
        B(f"v_and_b32 {vr(vsh)}, 1, {vr(vl)}\nv_xor_b32 {vr(vsh)}, 1, {vr(vsh)}\nv_lshlrev_b32 {vr(vsh)}, 4, {vr(vsh)}")
        return [l.strip() for l in B.lines]
    lnt2 = a.newlabel("G_nt2")
    if opts.get("w2wait", 0):
        a(f"s_cmp_eq_u32 s{sw}, 0\ns_cbranch_scc1 {lnt2}")
        a(f"s_and_b32 s{st[0]}, s{stt}, 3\ns_mul_i32 s{st[0]}, s{st[0]}, 448\ns_sub_u32 s{st[1]}, s{sw}, 1\ns_mul_i32 s{st[1]}, s{st[1]}, 150\ns_add_u32 s{st[0]}, s{st[0]}, s{st[1]}\ns_mul_i32 s{st[0]}, s{st[0]}, 896\ns_lshl_b32 s{st[1]}, s{sdt}, 7\ns_add_u32 s{st[0]}, s{st[0]}, s{st[1]}")
        a(f"v_mul_u32_u24 {vr(vt0)}, 896, {vr(vl)}")
        for q in range(3):
            if q == 2: a(f"v_cmp_gt_u32 vcc, 22, {vr(vl)}\nv_mov_b32 {vr(vt1)}, 0x7ff00000\ns_nop 0\nv_cndmask_b32 {vr(vt0)}, {vr(vt1)}, {vr(vt0)}, vcc")
            a(f"buffer_load_dword {vr(tmp+q)}, {vr(vt0)}, {sr(sW2,4)}, s{st[0]} offen\ns_add_u32 s{st[0]}, s{st[0]}, {64*896}")
        a("s_waitcnt vmcnt(0)")
        a.label(lnt2)
    for l in base0_lines(): a(l)
    a(f"s_cmp_lg_u32 s{sw}, 0\ns_cbranch_scc1 {lpol}")
    if opts.get("ppoll", 1):
        vFl2 = V.alloc(2,2)
        lp0 = a.newlabel("G_pp"); lp1 = a.newlabel("G_ppo")
        def chk(r):
            a(f"v_cmp_ne_u32 vcc, s{sN}, {vr(r)}\ns_nop 1\ns_mov_b64 s[98:99], vcc\nv_cmp_ne_u32 vcc, s{sN+1}, {vr(r+1)}\ns_nop 1\ns_or_b64 s[98:99], s[98:99], vcc\ns_cmp_eq_u64 s[98:99], 0\ns_cbranch_scc1 {lp1}")
        a(f"s_mov_b32 s{st[2]}, {SPIN}")
        ld_hf()
        a.label(lp0)
        a(f"buffer_load_dwordx2 {vr(vFl2,2)}, {vr(vFo)}, {sr(sWS,4)}, 0 offen sc1\ns_waitcnt vmcnt(1)")
        chk(vFl)
        a(f"buffer_load_dwordx2 {vr(vFl,2)}, {vr(vFo)}, {sr(sWS,4)}, 0 offen sc1\ns_waitcnt vmcnt(1)")
        chk(vFl2)
        a(f"s_sub_u32 s{st[2]}, s{st[2]}, 1\ns_cmp_lg_u32 s{st[2]}, 0\ns_cbranch_scc1 {lp0}")
        a.label(lp1)
    else:
        ld_hf()
        a("s_waitcnt vmcnt(0)")
        if not opts.get("nohwait"): tag_check_loop(a, [(vFl, vFl+1)], ld_hf, sN, st[2])
    a.label(lpol)
    a("s_barrier")
    ST.stamp()
    DH = LEAD + 1
    hring = [V.alloc(8,4) for _ in range(DH)]; afr = [V.alloc(8,4), V.alloc(8,4)]
    gacc = [[V.alloc(16,4) for _ in range(2)] for _ in range(2)]
    vy = V.alloc(16,4)
    pad = V.alloc(max(0, 48 - (8*DH + 16)), 4) if 8*DH + 16 < 48 else None
    ring = [hring[0], hring[0]+16, hring[0]+32]
    sK = S.alloc(); sLate = S.alloc()
    def h_loads(k):
        r = hring[k % DH]; off = (k % 4)*1024
        if k % 4 == 0: a(f"s_mov_b32 s{sK}, {(k//4)*4096}")
        for q in range(2):
            a(f"buffer_load_dwordx4 {vr(r+4*q,4)}, {vr(gB[q])}, {sr(sWS,4)}, s{sK} offen offset:{off} sc1"); vm2.append(("h",k))
    def wait_for(tags):
        if not isinstance(tags, list): tags = [tags]
        last = max(i for i,e in enumerate(vm2) if e in tags)
        a(f"s_waitcnt vmcnt({len(vm2)-1-last})")
    def a_reads(k):
        d = afr[k & 1]; o = (k % WSL)*2048
        for i in range(2):
            a(f"ds_read_b64_tr_b16 {vr(d+4*i,2)}, {vr(gA[i])} offset:{o}\nds_read_b64_tr_b16 {vr(d+4*i+2,2)}, {vr(gA[i])} offset:{o+1024}")
    for k in range(LEAD): h_loads(k)
    wait_for(("w",0)); a_reads(0)
    first = [[True,True],[True,True]]
    NK = 28
    def ld_yf(): a(f"buffer_load_dwordx2 {vr(vF2,2)}, {vr(vF2o)}, {sr(sWS,4)}, 0 offen sc1")
    def ld_y():
        for g in range(4):
            for i in range(4):
                a(f"buffer_load_dword {vr(vy+4*g+i)}, {vr(vYo)}, {sr(sWS,4)}, 0 offen offset:{(8*g+i)*128} sc1")
    KF, KY = opts.get("kf", NK-LEAD-1), opts.get("ky", NK-3)
    def base_lines():
        B = Asm()
        for e in range(16):
            B(f"v_lshlrev_b32 {vr(vy+e)}, {vr(vsh)}, {vr(vy+e)}\nv_and_b32 {vr(vy+e)}, 0xffff0000, {vr(vy+e)}")
            if e & 1: B(f"v_pk_add_f32 {vr(base+e-1,2)}, {vr(base+e-1,2)}, {vr(vy+e-1,2)}")
        return [l.strip() for l in B.lines]
    BL = base_lines()
    def btake(n):
        for _ in range(n):
            if BL: a(BL.pop(0))
    KB = KY + 4
    for k in range(NK):
        tags = [("h",k)] + ([("w",k+1)] if k+1 < NK else [])
        wait_for(tags)
        if k+1 < NK:
            a_reads(k+1); a("s_waitcnt lgkmcnt(4)")
        else: a("s_waitcnt lgkmcnt(0)")
        A_ = afr[k & 1]; Bh = hring[k % DH]
        n = 0
        for i in range(2):
            for j in range(2):
                c = "0" if first[i][j] else vr(gacc[i][j],16)
                first[i][j] = False
                a(f"v_mfma_f32_32x32x16_bf16 {vr(gacc[i][j],16)}, {vr(A_+4*i,4)}, {vr(Bh+4*j,4)}, {c}")
                if k + LEAD < NK:
                    if n == 0: w_dma(k+LEAD, 0)
                    if n == 1: w_dma(k+LEAD, 1)
                    if n == 2: h_loads(k+LEAD)
                n += 1
        if opts.get("g2st") and k in (6, 13, 20): ST.stamp()
        if k == KF:
            ld_yf(); vm2.append("fl")
        if k == KY:
            wait_for("fl")
            a(f"v_cmp_ne_u32 vcc, s{sN}, {vr(vF2)}\ns_nop 1\ns_mov_b64 s[98:99], vcc\nv_cmp_ne_u32 vcc, s{sN+1}, {vr(vF2+1)}\ns_nop 1\ns_or_b64 s[98:99], s[98:99], vcc\ns_cmp_lg_u64 s[98:99], 0\ns_cselect_b32 s{sLate}, 1, 0")
            ld_y()
            for _ in range(16): vm2.append("y")
    ST.stamp()
    ST_late = True
    vXw = V.alloc(); vXr = V.alloc()
    a(f"v_lshlrev_b32 {vr(vt0)}, 4, {vr(vl)}\ns_barrier\ns_nop 5")
    for (i,j) in ((0,1),(1,0),(1,1)):
        sl = 2*i+j
        a(f"s_xor_b32 s{st[0]}, s{sw}, {sl}\ns_mul_i32 s{st[0]}, s{st[0]}, 12288\ns_add_u32 s{st[0]}, s{st[0]}, {(sl-1)*4096}\nv_add_u32 {vr(vXw)}, s{st[0]}, {vr(vt0)}")
        for q in range(4):
            a(f"ds_write_b128 {vr(vXw)}, {vr(gacc[i][j]+4*q,4)} offset:{1024*q}")
    a(f"s_mul_i32 s{st[0]}, s{sw}, 12288\nv_add_u32 {vr(vXr)}, s{st[0]}, {vr(vt0)}")
    lok = a.newlabel("G2_yok")
    a(f"s_cmp_eq_u32 s{sLate}, 0\ns_cbranch_scc1 {lok}")
    if not opts.get("skip_aux"):
        a("s_waitcnt vmcnt(0)")
        ld_yf(); a("s_waitcnt vmcnt(0)")
        tag_check_loop(a, [(vF2, vF2+1)], ld_yf, sN, st[2])
        ld_y()
    a.label(lok)
    a("s_waitcnt lgkmcnt(0)\ns_barrier")
    xr = ring
    for sl in range(3):
        for q in range(4):
            a(f"ds_read_b128 {vr(xr[sl]+4*q,4)}, {vr(vXr)} offset:{sl*4096+1024*q}")
    ST.stamp()
    o = gacc[0][0]
    a("s_waitcnt vmcnt(0)")
    btake(1000)
    for e in range(0,16,2): a(f"v_pk_add_f32 {vr(o+e,2)}, {vr(o+e,2)}, {vr(base+e,2)}")
    for sl in range(3):
        a(f"s_waitcnt lgkmcnt({4*(2-sl)})")
        for e in range(0,16,2): a(f"v_pk_add_f32 {vr(o+e,2)}, {vr(o+e,2)}, {vr(xr[sl]+e,2)}")
    tmp = base
    for g in range(4):
        a(f"v_cvt_pk_bf16_f32 {vr(tmp+2*g)}, {vr(o+4*g)}, {vr(o+4*g+1)}\nv_cvt_pk_bf16_f32 {vr(tmp+2*g+1)}, {vr(o+4*g+2)}, {vr(o+4*g+3)}")
        a(f"buffer_store_dwordx2 {vr(tmp+2*g,2)}, {vr(vXo2)}, {sr(sO,4)}, 0 offen offset:{16*g} {opts.get('ofl','')}")
    a("s_waitcnt vmcnt(0)")
    ST.stamp()
    ST.flush(sWS, WS_STAMP, vt0, 2*((st[0]+1)//2), 2)
    a(f"s_branch {end}")
    return V.hi, S.hi
```

```python
from asm import *
from common import *

def get_nonce(a, V, S, sDB, vtmp2, sN, write=False, screg=None):
    pass

def nonce_issue(a, vN, vz, sDB):
    a(f"v_mov_b32 {vr(vz)}, 0\nbuffer_load_dwordx2 {vr(vN,2)}, {vr(vz)}, {sr(sDB,4)}, 0 offen sc1")

def nonce_finish(a, vN, vz, sDB, sN, scnt):
    l0 = a.newlabel("NC_l"); l1 = a.newlabel("NC_ok")
    a(f"s_mov_b32 s{scnt}, {SPIN}")
    a.label(l0)
    a(f"v_readfirstlane_b32 s{sN}, {vr(vN)}\nv_readfirstlane_b32 s{sN+1}, {vr(vN+1)}\ns_nop 1\ns_cmp_lg_u32 s{sN}, 0\ns_cbranch_scc1 {l1}")
    a(f"s_sub_u32 s{scnt}, s{scnt}, 1\ns_cmp_eq_u32 s{scnt}, 0\ns_cbranch_scc1 {l1}")
    a(f"s_sleep 1\nbuffer_load_dwordx2 {vr(vN,2)}, {vr(vz)}, {sr(sDB,4)}, 0 offen sc1\ns_waitcnt vmcnt(0)\ns_branch {l0}")
    a.label(l1)

def tag_check_loop(a, tags, reload, sN, scnt):
    l0 = a.newlabel("TG_l"); l1 = a.newlabel("TG_ok")
    a(f"s_mov_b32 s{scnt}, {SPIN}")
    a.label(l0)
    first = True
    for (lo, hi) in tags:
        for r, s in ((lo, sN), (hi, sN+1)):
            if first: a(f"v_cmp_ne_u32 vcc, s{s}, {vr(r)}\ns_nop 1\ns_mov_b64 s[98:99], vcc"); first = False
            else: a(f"v_cmp_ne_u32 vcc, s{s}, {vr(r)}\ns_nop 1\ns_or_b64 s[98:99], s[98:99], vcc")
    a(f"s_cmp_eq_u64 s[98:99], 0\ns_cbranch_scc1 {l1}")
    a(f"s_sub_u32 s{scnt}, s{scnt}, 1\ns_cmp_eq_u32 s{scnt}, 0\ns_cbranch_scc1 {l1}")
    a("s_sleep 1")
    reload()
    a(f"s_waitcnt vmcnt(0)\ns_branch {l0}")
    a.label(l1)

def set_flag(a, vt, sWS, soff_expr_sreg, sN, vl, sw):
    l = a.newlabel("FL_s")
    a(f"s_cmp_lg_u32 s{sw}, 0\ns_cbranch_scc1 {l}")
    a(f"v_mov_b32 {vr(vt)}, s{sN}\nv_mov_b32 {vr(vt+1)}, s{sN+1}\nv_cmp_eq_u32 vcc, 0, {vr(vl)}\nv_mov_b32 {vr(vt+2)}, 0x7ff00000\nv_mov_b32 {vr(vt+3)}, 0\ns_nop 0\nv_cndmask_b32 {vr(vt+2)}, {vr(vt+2)}, {vr(vt+3)}, vcc")
    a(f"buffer_store_dwordx2 {vr(vt,2)}, {vr(vt+2)}, {sr(sWS,4)}, s{soff_expr_sreg} offen sc1")
    a.label(l)

def role_ln(a, s0, ST, end, opts={}):
    V = Regs("v", 1, 256); S = Regs("s", s0, 96)
    sX = S.alloc(4,4); sWS = S.alloc(4,4); sDB = S.alloc(4,4)
    pX = S.alloc(2,2); pWS = S.alloc(2,2); pDB = S.alloc(2,2); sN = S.alloc(2,2)
    sw = S.alloc(); st = [S.alloc() for _ in range(6)]
    a("s_setprio 2")
    a(f"s_load_dwordx2 {sr(pX,2)}, s[0:1], 0\ns_load_dwordx2 {sr(pWS,2)}, s[0:1], 128\ns_load_dwordx2 {sr(pDB,2)}, s[0:1], 120\ns_memrealtime {sr(sN,2)}")
    vl = V.alloc(); vt = V.alloc(4,2); vt0, vt1, vt2, vt3 = vt, vt+1, vt+2, vt+3
    vXo = V.alloc(); vR = V.alloc(); vP = V.alloc(); vN = V.alloc(2,2); vz = V.alloc()
    a(f"v_lshrrev_b32 {vr(vt0)}, 6, v0\nv_and_b32 {vr(vl)}, 63, v0\nv_readfirstlane_b32 s{sw}, {vr(vt0)}")
    a(f"v_lshrrev_b32 {vr(vR)}, 2, {vr(vl)}\nv_and_b32 {vr(vP)}, 3, {vr(vl)}")
    a(f"s_lshl_b32 s{st[0]}, s2, 6\ns_lshl_b32 s{st[1]}, s{sw}, 4\ns_add_u32 s{st[0]}, s{st[0]}, s{st[1]}")
    a(f"v_add_u32 {vr(vt0)}, s{st[0]}, {vr(vR)}\nv_mul_u32_u24 {vr(vt0)}, 896, {vr(vt0)}\nv_lshl_add_u32 {vr(vXo)}, {vr(vP)}, 4, {vr(vt0)}")
    a("s_waitcnt lgkmcnt(0)")
    srd(a, sX, pX, X_BYTES); srd(a, sDB, pDB, 256)
    vx = V.alloc(56,4)
    ln = a.newlabel("LN_nn")
    a(f"s_or_b32 s{st[1]}, s2, s{sw}\ns_cmp_lg_u32 s{st[1]}, 0\ns_cbranch_scc1 {ln}")
    a(f"s_or_b32 s{sN}, s{sN}, 1\nv_mov_b32 {vr(vN)}, s{sN}\nv_mov_b32 {vr(vN+1)}, s{sN+1}\nv_mov_b32 {vr(vz)}, 0")
    a(f"buffer_store_dwordx2 {vr(vN,2)}, {vr(vz)}, {sr(sDB,4)}, 0 offen sc1\ns_nop 1")
    a.label(ln)
    for m in range(14):
        a(f"buffer_load_dwordx4 {vr(vx+4*m,4)}, {vr(vXo)}, {sr(sX,4)}, 0 offen offset:{64*m}")
    nonce_issue(a, vN, vz, sDB)
    srd(a, sWS, pWS, WS_SIZE)
    ST.stamp()
    sOnes = S.alloc()
    a(f"s_mov_b32 s{sOnes}, 0x3f803f80")
    v1 = [V.alloc(), V.alloc()]; v2 = [V.alloc(), V.alloc()]
    for r in v1+v2: a(f"v_mov_b32 {vr(r)}, 0")
    LX = 0; L_MS = 64*912
    vLw = V.alloc()
    a(f"s_lshl_b32 s{st[1]}, s{sw}, 4\nv_add_u32 {vr(vt0)}, s{st[1]}, {vr(vR)}\nv_mul_u32_u24 {vr(vt0)}, 912, {vr(vt0)}\nv_lshl_add_u32 {vr(vLw)}, {vr(vP)}, 4, {vr(vt0)}")
    vN2 = V.alloc(2,2)
    for m in range(14):
        a(f"s_waitcnt vmcnt({14-m+(1 if m > 3 else 0)})")
        for q in range(4):
            a(f"v_dot2c_f32_bf16 {vr(v2[q&1])}, {vr(vx+4*m+q)}, {vr(vx+4*m+q)}")
            a(f"v_dot2c_f32_bf16 {vr(v1[q&1])}, s{sOnes}, {vr(vx+4*m+q)}")
        a(f"ds_write_b128 {vr(vLw)}, {vr(vx+4*m,4)} offset:{LX+64*m}")
        if m == 3: a(f"buffer_load_dwordx2 {vr(vN2,2)}, {vr(vz)}, {sr(sDB,4)}, 0 offen sc1")
    a("s_nop 3")
    a(f"v_add_f32 {vr(v1[0])}, {vr(v1[0])}, {vr(v1[1])}\nv_add_f32 {vr(v2[0])}, {vr(v2[0])}, {vr(v2[1])}\ns_nop 1")
    for ctl in ("quad_perm:[1,0,3,2]", "quad_perm:[2,3,0,1]"):
        a(f"v_add_f32_dpp {vr(v1[0])}, {vr(v1[0])}, {vr(v1[0])} {ctl} row_mask:0xf bank_mask:0xf")
        a(f"v_add_f32_dpp {vr(v2[0])}, {vr(v2[0])}, {vr(v2[0])} {ctl} row_mask:0xf bank_mask:0xf")
        a("s_nop 1")
    vMean = v1[0]; vE2 = v2[0]
    g = V.alloc(4,4); vMr = g; vRstd = g+1
    inv = fhex(1.0/448)
    a(f"v_mul_f32 {vr(vMean)}, {inv}, {vr(vMean)}\nv_mul_f32 {vr(vE2)}, {inv}, {vr(vE2)}")
    a(f"v_fma_f32 {vr(vE2)}, -{vr(vMean)}, {vr(vMean)}, {vr(vE2)}\nv_max_f32 {vr(vE2)}, 0, {vr(vE2)}")
    a(f"v_cvt_pk_bf16_f32 {vr(vt2)}, {vr(vMean)}, {vr(vE2)}")
    a(f"v_lshlrev_b32 {vr(vMean)}, 16, {vr(vt2)}\nv_and_b32 {vr(vE2)}, 0xffff0000, {vr(vt2)}")
    a(f"v_add_f32 {vr(vE2)}, {fhex(1e-5)}, {vr(vE2)}\nv_cvt_pk_bf16_f32 {vr(vE2)}, {vr(vE2)}, {vr(vE2)}\nv_lshlrev_b32 {vr(vE2)}, 16, {vr(vE2)}")
    a(f"v_sqrt_f32 {vr(vE2)}, {vr(vE2)}\ns_nop 0\nv_cvt_pk_bf16_f32 {vr(vE2)}, {vr(vE2)}, {vr(vE2)}\nv_lshlrev_b32 {vr(vE2)}, 16, {vr(vE2)}")
    a(f"v_rcp_f32 {vr(vRstd)}, {vr(vE2)}\ns_nop 0\nv_mul_f32 {vr(vMr)}, {vr(vMean)}, {vr(vRstd)}")
    a("s_waitcnt vmcnt(0)")
    a(f"v_mov_b32 {vr(vN)}, {vr(vN2)}\nv_mov_b32 {vr(vN+1)}, {vr(vN2+1)}\ns_nop 0")
    nonce_finish(a, vN, vz, sDB, sN, st[2])
    a(f"v_mov_b32 {vr(g+2)}, s{sN}\nv_mov_b32 {vr(g+3)}, s{sN+1}")
    a(f"v_add_u32 {vr(vt0)}, s{st[0]}, {vr(vR)}\nv_lshlrev_b32 {vr(vt0)}, 4, {vr(vt0)}")
    a(f"v_cmp_eq_u32 vcc, 0, {vr(vP)}\nv_mov_b32 {vr(vt1)}, 0x7ff00000\ns_nop 0\nv_cndmask_b32 {vr(vt0)}, {vr(vt1)}, {vr(vt0)}, vcc")
    a(f"s_mov_b32 s{st[3]}, {WS_STATS}\nbuffer_store_dwordx4 {vr(g,4)}, {vr(vt0)}, {sr(sWS,4)}, s{st[3]} offen sc1")
    ST.stamp()
    a(f"s_lshl_b32 s{st[1]}, s{sw}, 4\nv_add_u32 {vr(vt0)}, s{st[1]}, {vr(vR)}\nv_lshlrev_b32 {vr(vt0)}, 3, {vr(vt0)}\nds_write_b64 {vr(vt0)}, {vr(g,2)} offset:{L_MS}")
    a("s_waitcnt lgkmcnt(0)\ns_barrier")
    ms = V.alloc(32,4)
    a(f"v_lshrrev_b32 {vr(vt0)}, 4, {vr(vl)}\nv_lshlrev_b32 {vr(vt0)}, 6, {vr(vt0)}")
    for v in range(2):
        for q in range(4): a(f"ds_read_b128 {vr(ms+16*v+4*q,4)}, {vr(vt0)} offset:{L_MS + 256*v + 16*q}")
    vA = V.alloc(); vO = V.alloc(); vSw = V.alloc(); vSr = V.alloc()
    a(f"v_lshrrev_b32 {vr(vt0)}, 4, {vr(vl)}\nv_lshlrev_b32 {vr(vt0)}, 3, {vr(vt0)}\nv_bfe_u32 {vr(vt1)}, {vr(vl)}, 2, 2\nv_add_u32 {vr(vt0)}, {vr(vt0)}, {vr(vt1)}\nv_mul_u32_u24 {vr(vt0)}, 912, {vr(vt0)}")
    a(f"v_and_b32 {vr(vt1)}, 3, {vr(vl)}\nv_lshl_add_u32 {vr(vt0)}, {vr(vt1)}, 3, {vr(vt0)}\ns_lshl_b32 s{st[1]}, s{sw}, 5\nv_add_u32 {vr(vA)}, s{st[1]}, {vr(vt0)}")
    L_SG = L_MS + 512
    a(f"v_and_b32 {vr(vt0)}, 15, {vr(vl)}\nv_and_b32 {vr(vt1)}, 7, {vr(vl)}\nv_lshrrev_b32 {vr(vt2)}, 4, {vr(vl)}\nv_xor_b32 {vr(vt1)}, {vr(vt1)}, {vr(vt2)}\nv_lshlrev_b32 {vr(vt1)}, 4, {vr(vt1)}\nv_lshl_add_u32 {vr(vt0)}, {vr(vt0)}, 7, {vr(vt1)}")
    a(f"s_lshl_b32 s{st[1]}, s{sw}, 11\ns_add_u32 s{st[1]}, s{st[1]}, {L_SG}\nv_add_u32 {vr(vSw)}, s{st[1]}, {vr(vt0)}\nv_lshlrev_b32 {vr(vt0)}, 4, {vr(vl)}\nv_add_u32 {vr(vSr)}, s{st[1]}, {vr(vt0)}")
    a(f"v_lshrrev_b32 {vr(vt0)}, 3, {vr(vl)}\nv_and_b32 {vr(vt1)}, 7, {vr(vl)}\nv_xor_b32 {vr(vt1)}, {vr(vt1)}, {vr(vt0)}\nv_lshlrev_b32 {vr(vt1)}, 4, {vr(vt1)}\nv_lshl_add_u32 {vr(vt0)}, {vr(vt0)}, 7, {vr(vt1)}")
    a(f"s_mul_i32 s{st[1]}, s2, 57344\ns_lshl_b32 s{st[2]}, s{sw}, 11\ns_add_u32 s{st[1]}, s{st[1]}, s{st[2]}\ns_add_u32 s{st[1]}, s{st[1]}, {WS_XNT}\nv_add_u32 {vr(vO)}, s{st[1]}, {vr(vt0)}")
    raw = V.alloc(8,2); nxt = V.alloc(8,2); tmp = V.alloc(8,2); pk = V.alloc(8,2); ob = V.alloc(8,2)
    sn = S.alloc(); so = S.alloc()
    def trs(dst):
        for v in range(2):
            for u in range(2):
                a(f"ds_read_b64_tr_b16 {vr(dst+4*v+2*u,2)}, {vr(vA)} offset:{LX + (32*v+4*u)*912}")
    a(f"s_mov_b32 s{sn}, 7\ns_mov_b32 s{so}, 0")
    trs(nxt)
    lp = a.newlabel("LN_lp")
    a.label(lp)
    a("s_waitcnt lgkmcnt(0)")
    for e in range(8): a(f"v_mov_b32 {vr(raw+e)}, {vr(nxt+e)}")
    a(f"v_add_u32 {vr(vA)}, 128, {vr(vA)}")
    trs(nxt)
    for v in range(2):
        for q in range(4):
            a(f"v_lshlrev_b32 {vr(tmp+2*q)}, 16, {vr(raw+4*v+q)}\nv_and_b32 {vr(tmp+2*q+1)}, 0xffff0000, {vr(raw+4*v+q)}")
        for e in range(8): a(f"v_fma_f32 {vr(tmp+e)}, {vr(tmp+e)}, {vr(ms+16*v+2*e+1)}, -{vr(ms+16*v+2*e)}")
        for q in range(4): a(f"v_cvt_pk_bf16_f32 {vr(pk+4*v+q)}, {vr(tmp+2*q)}, {vr(tmp+2*q+1)}")
        if v == 0: a(f"ds_write_b128 {vr(vSw)}, {vr(pk,4)}")
        else: a(f"v_xor_b32 {vr(vt0)}, 64, {vr(vSw)}\nds_write_b128 {vr(vt0)}, {vr(pk+4,4)}")
    a(f"ds_read_b128 {vr(ob,4)}, {vr(vSr)}\nds_read_b128 {vr(ob+4,4)}, {vr(vSr)} offset:1024")
    a("s_waitcnt lgkmcnt(0)")
    XF = opts.get("lnfl", "sc1")
    if not opts.get("lnnost"): a(f"buffer_store_dwordx4 {vr(ob,4)}, {vr(vO)}, {sr(sWS,4)}, s{so} offen {XF}\nbuffer_store_dwordx4 {vr(ob+4,4)}, {vr(vO)}, {sr(sWS,4)}, s{so} offen offset:1024 {XF}")
    a(f"s_add_u32 s{so}, s{so}, {64*128}\ns_sub_u32 s{sn}, s{sn}, 1\ns_cmp_lg_u32 s{sn}, 0\ns_cbranch_scc1 {lp}")
    if opts.get("lnwb"): a("s_waitcnt vmcnt(0)\nbuffer_wbl2 sc1")
    a("s_waitcnt vmcnt(0)\ns_barrier")
    a(f"s_lshl_b32 s{st[1]}, s2, 3\ns_add_u32 s{st[1]}, s{st[1]}, {F_XF}")
    set_flag(a, vt, sWS, st[1], sN, vl, sw)
    a("s_waitcnt vmcnt(0)")
    ST.stamp()
    ST.flush(sWS, WS_STAMP, vt0, 2*((st[0]+1)//2), 2)
    a(f"s_branch {end}")
    return V.hi, S.hi

def role_cs(a, s0, ST, end, opts={}):
    V = Regs("v", 1, 256); S = Regs("s", s0, 96)
    sW1 = S.alloc(4,4); sWS = S.alloc(4,4); sDB = S.alloc(4,4); sW2 = S.alloc(4,4)
    pW1 = S.alloc(2,2); pWS = S.alloc(2,2); pDB = S.alloc(2,2); pW2 = S.alloc(2,2); sN = S.alloc(2,2)
    sw = S.alloc(); sq = S.alloc(); st = [S.alloc() for _ in range(6)]
    a("s_setprio 2")
    a(f"s_load_dwordx2 {sr(pW1,2)}, s[0:1], 80\ns_load_dwordx2 {sr(pWS,2)}, s[0:1], 128\ns_load_dwordx2 {sr(pDB,2)}, s[0:1], 120")
    vl = V.alloc(); vt = V.alloc(4,2); vt0, vt1, vt2, vt3 = vt, vt+1, vt+2, vt+3
    vWo = V.alloc(); vR = V.alloc(); vP = V.alloc(); vN = V.alloc(2,2); vz = V.alloc(); vW2o = V.alloc()
    a(f"v_lshrrev_b32 {vr(vt0)}, 6, v0\nv_and_b32 {vr(vl)}, 63, v0\nv_readfirstlane_b32 s{sw}, {vr(vt0)}")
    a(f"s_sub_u32 s{sq}, s2, {ID_CS}")
    a(f"v_lshrrev_b32 {vr(vR)}, 3, {vr(vl)}\nv_and_b32 {vr(vP)}, 7, {vr(vl)}")
    a(f"s_mul_i32 s{st[1]}, s{sw}, 112\nv_add_u32 {vr(vt0)}, s{st[1]}, {vr(vR)}\nv_mul_u32_u24 {vr(vt0)}, 3584, {vr(vt0)}\nv_lshl_add_u32 {vr(vt0)}, {vr(vP)}, 4, {vr(vt0)}")
    a(f"s_lshl_b32 s{st[2]}, s{sq}, 7\nv_add_u32 {vr(vWo)}, s{st[2]}, {vr(vt0)}")
    a("s_waitcnt lgkmcnt(0)")
    srd(a, sW1, pW1, W_BYTES); srd(a, sDB, pDB, 256)
    vw = V.alloc(56,4)
    for m in range(14):
        a(f"s_mov_b32 s{st[3]}, {m*8*3584}\nbuffer_load_dwordx4 {vr(vw+4*m,4)}, {vr(vWo)}, {sr(sW1,4)}, s{st[3]} offen")
    nonce_issue(a, vN, vz, sDB)
    srd(a, sWS, pWS, WS_SIZE)
    ST.stamp()
    sLo = S.alloc(); sHi = S.alloc()
    a(f"s_mov_b32 s{sLo}, 0x00003f80\ns_mov_b32 s{sHi}, 0x3f800000")
    vc = V.alloc(8,4)
    for e in range(8): a(f"v_mov_b32 {vr(vc+e)}, 0")
    for m in range(14):
        a(f"s_waitcnt vmcnt({13-m+1+(1 if m > 3 else 0)})")
        for q in range(4):
            a(f"v_dot2c_f32_bf16 {vr(vc+2*q)}, s{sLo}, {vr(vw+4*m+q)}")
            a(f"v_dot2c_f32_bf16 {vr(vc+2*q+1)}, s{sHi}, {vr(vw+4*m+q)}")
        if m == 3: a(f"buffer_load_dwordx2 {vr(vN,2)}, {vr(vz)}, {sr(sDB,4)}, 0 offen sc1")
    a(f"s_lshl_b32 s{st[1]}, s{sw}, 3\nv_add_u32 {vr(vt0)}, s{st[1]}, {vr(vR)}\nv_lshlrev_b32 {vr(vt0)}, 8, {vr(vt0)}\nv_lshl_add_u32 {vr(vt0)}, {vr(vP)}, 5, {vr(vt0)}")
    a(f"s_nop 1\nds_write_b128 {vr(vt0)}, {vr(vc,4)}\nds_write_b128 {vr(vt0)}, {vr(vc+4,4)} offset:16")
    a("s_waitcnt lgkmcnt(0)\ns_barrier")
    vs = V.alloc(8,4)
    a(f"s_lshl_b32 s{st[1]}, s{sw}, 11\nv_lshlrev_b32 {vr(vt0)}, 2, {vr(vl)}\nv_add_u32 {vr(vt1)}, s{st[1]}, {vr(vt0)}")
    for k in range(8): a(f"ds_read_b32 {vr(vs+k)}, {vr(vt1)} offset:{256*k}")
    a("s_waitcnt lgkmcnt(0)")
    for k in (0,2,4,6): a(f"v_add_f32 {vr(vs+k)}, {vr(vs+k)}, {vr(vs+k+1)}")
    a(f"v_add_f32 {vr(vs)}, {vr(vs)}, {vr(vs+2)}\nv_add_f32 {vr(vs+4)}, {vr(vs+4)}, {vr(vs+6)}\nv_add_f32 {vr(vs)}, {vr(vs)}, {vr(vs+4)}")
    a(f"s_lshl_b32 s{st[1]}, s{sw}, 8\nv_add_u32 {vr(vt1)}, s{st[1]}, {vr(vt0)}\nds_write_b32 {vr(vt1)}, {vr(vs)} offset:8192")
    a(f"s_waitcnt vmcnt(0) lgkmcnt(0)\ns_barrier")
    nonce_finish(a, vN, vz, sDB, sN, st[2])
    l1 = a.newlabel("CS_w0")
    a(f"s_cmp_lg_u32 s{sw}, 0\ns_cbranch_scc1 {l1}")
    a(f"v_and_b32 {vr(vt0)}, 31, {vr(vl)}\nv_lshlrev_b32 {vr(vt1)}, 3, {vr(vt0)}")
    for k in range(4): a(f"ds_read_b64 {vr(vs+2*k,2)}, {vr(vt1)} offset:{8192+256*k}")
    a("s_waitcnt lgkmcnt(0)")
    for e in range(2):
        a(f"v_add_f32 {vr(vs+e)}, {vr(vs+e)}, {vr(vs+2+e)}\nv_add_f32 {vr(vs+4+e)}, {vr(vs+4+e)}, {vr(vs+6+e)}\nv_add_f32 {vr(vs+e)}, {vr(vs+e)}, {vr(vs+4+e)}")
    a(f"v_mov_b32 {vr(vs+2)}, s{sN}\nv_mov_b32 {vr(vs+3)}, s{sN+1}\nv_lshlrev_b32 {vr(vt0)}, 4, {vr(vt0)}\ns_lshl_b32 s{st[1]}, s{sq}, 9\ns_add_u32 s{st[1]}, s{st[1]}, {WS_CS}")
    a(f"buffer_store_dwordx4 {vr(vs,4)}, {vr(vt0)}, {sr(sWS,4)}, s{st[1]} offen sc1")
    a.label(l1)
    ST.stamp()
    a("s_waitcnt vmcnt(0)")
    ST.stamp()
    ST.flush(sWS, WS_STAMP, vt0, 2*((st[0]+1)//2), 2)
    a(f"s_branch {end}")
    return V.hi, S.hi
```

```python
from asm import *
from common import *
from roles_small import nonce_issue, nonce_finish, tag_check_loop, set_flag

def cmul(a, nr, ni, xr, xi, yr, yi, t):
    a(f"v_mul_f32 {vr(t)}, {vr(xi)}, {vr(yi)}")
    a(f"v_mul_f32 {vr(ni)}, {vr(xi)}, {vr(yr)}")
    a(f"v_fma_f32 {vr(nr)}, {vr(xr)}, {vr(yr)}, -{vr(t)}")
    a(f"v_fmac_f32 {vr(ni)}, {vr(xr)}, {vr(yi)}")

PKC = [0]
def cmul_l(nr, ni, xr, xi, yr, yi, t):
    if PKC[0]:
        assert ni == nr+1 and xi == xr+1 and yi == yr+1 and nr % 2 == 0 and xr % 2 == 0 and yr % 2 == 0
        return [f"v_pk_mul_f32 {vr(nr,2)}, {vr(xr,2)}, {vr(yr,2)} op_sel:[0,0] op_sel_hi:[0,1]",
                f"v_pk_fma_f32 {vr(nr,2)}, {vr(xr,2)}, {vr(yr,2)}, {vr(nr,2)} op_sel:[1,1,0] op_sel_hi:[1,0,1] neg_lo:[1,0,0]"]
    return [f"v_mul_f32 {vr(t)}, {vr(xi)}, {vr(yi)}", f"v_mul_f32 {vr(ni)}, {vr(xi)}, {vr(yr)}",
            f"v_fma_f32 {vr(nr)}, {vr(xr)}, {vr(yr)}, -{vr(t)}", f"v_fmac_f32 {vr(ni)}, {vr(xr)}, {vr(yi)}"]
def interleave(a, *lists):
    lists = [list(l) for l in lists]
    while any(lists):
        for l in lists:
            if l: a(l.pop(0))

def role_aux(a, s0, ST, end, opts={}):
    PKC[0] = opts.get("pkc", 0)
    V = Regs("v", 1, 256); S = Regs("s", s0, 98)
    USZ = 4608; L_U = 0; KS = 4160; KSZ = 4*KS; L_K = 2*USZ
    L_ST = L_K; STW = 32*288; L_T = L_ST + 4*STW; TS = 80; TSZ = 32*TS; L_X = L_T + 2*TSZ; L_W = L_X + 16384
    assert L_K + 2*KSZ <= L_T and L_W + 4*2048 <= LDS_BYTES
    sWS = S.alloc(4,4); sDB = S.alloc(4,4); sN = S.alloc(2,2)
    sw = S.alloc(); sa = S.alloc(); sch = S.alloc(); swi = S.alloc(); st = [S.alloc() for _ in range(6)]; sLd = S.alloc(); sDs = S.alloc()
    sLc = S.alloc(); sDc = S.alloc(); sjob = S.alloc(); sW2t = S.alloc(4,4)
    smark = S.mark()
    sP = [S.alloc(4,4) for _ in range(6)]; pDt = S.alloc(2,2); pDs = S.alloc(2,2)
    for k in range(6): a(f"s_load_dwordx2 {sr(sP[k],2)}, s[0:1], {8+8*k}")
    a(f"s_load_dwordx2 {sr(pDt,2)}, s[0:1], 56\ns_load_dwordx2 {sr(pDs,2)}, s[0:1], 64")
    a(f"s_load_dwordx2 {sr(sWS,2)}, s[0:1], 128\ns_load_dwordx2 {sr(sDB,2)}, s[0:1], 120\ns_load_dwordx2 {sr(sW2t,2)}, s[0:1], 96")
    vl = V.alloc(); vt = V.alloc(4,2); vt0, vt1, vt2, vt3 = vt, vt+1, vt+2, vt+3
    vN = V.alloc(2,2); vz0 = V.alloc()
    a(f"v_lshrrev_b32 {vr(vt0)}, 6, v0\nv_and_b32 {vr(vl)}, 63, v0\nv_readfirstlane_b32 s{sw}, {vr(vt0)}")
    a(f"s_sub_u32 s{sa}, s2, {ID_AUX}\ns_and_b32 s{st[0]}, s{sa}, 7\ns_mul_i32 s{st[0]}, s{st[0]}, 28\ns_lshr_b32 s{sa}, s{sa}, 3\ns_add_u32 s{sa}, s{sa}, s{st[0]}")
    vPo = V.alloc()
    a(f"s_lshr_b32 s{sch}, s{sw}, 1\ns_and_b32 s{swi}, s{sw}, 1\ns_lshl_b32 s{st[0]}, s{sa}, 10\ns_lshl_b32 s{st[1]}, s{sw}, 8\ns_add_u32 s{st[0]}, s{st[0]}, s{st[1]}")
    a(f"v_lshlrev_b32 {vr(vPo)}, 1, {vr(vl)}\nv_add_u32 {vr(vPo)}, s{st[0]}, {vr(vPo)}")
    a("s_waitcnt lgkmcnt(0)")
    NFIRST = opts.get("auxnonce", 0)
    if NFIRST:
        srd_fix(a, sDB, 256)
        nonce_issue(a, vN, vz0, sDB); a("s_waitcnt vmcnt(0)")
        nonce_finish(a, vN, vz0, sDB, sN, st[2])
    for k in range(6): srd_fix(a, sP[k], P_BYTES)
    vP = [[V.alloc() for _ in range(6)] for _ in range(2)]
    for job in range(2):
        for k in range(6): a(f"buffer_load_ushort {vr(vP[job][k])}, {vr(vPo)}, {sr(sP[k],4)}, 0 offen offset:{128*job} {opts.get('pfl','nt')}")
    a(f"s_lshl_b32 s{st[0]}, s{sa}, 2")
    a(f"s_load_dword s{sLd}, {sr(pDt,2)}, s{st[0]}\ns_load_dword s{sDs}, {sr(pDs,2)}, s{st[0]}")
    srd_fix(a, sWS, WS_SIZE); srd_fix(a, sW2t, W_BYTES)
    if not NFIRST: srd_fix(a, sDB, 256)
    vTo2 = V.alloc(); vTd2 = V.alloc()
    nonce_issue(a, vN, vz0, sDB)
    NTOUCH = 0
    if opts.get("auxw1", 0):
        NTOUCH += 2
        sXt2 = S.alloc(4,4); sW1t2 = S.alloc(4,4); vTo3 = V.alloc(); vTd3 = V.alloc(2,2)
        a(f"s_load_dwordx2 {sr(sXt2,2)}, s[0:1], 0\ns_load_dwordx2 {sr(sW1t2,2)}, s[0:1], 80")
        a(f"v_lshlrev_b32 {vr(vTo3)}, 7, {vr(vl)}\ns_cmp_eq_u32 s{sw}, 1\ns_cselect_b32 s{st[2]}, 0, 0x7ff00000\nv_or_b32 {vr(vt0)}, s{st[2]}, {vr(vTo3)}\ns_lshl_b32 s{st[3]}, s{sa}, 13\ns_waitcnt lgkmcnt(0)")
        srd_fix(a, sXt2, X_BYTES); srd_fix(a, sW1t2, W_BYTES)
        a(f"buffer_load_dword {vr(vTd3)}, {vr(vt0)}, {sr(sXt2,4)}, s{st[3]} offen")
        a(f"v_cmp_gt_u32 vcc, 56, {vr(vl)}\nv_mov_b32 {vr(vt1)}, 0x7ff00000\ns_cmp_eq_u32 s{sw}, 2\ns_cselect_b32 s{st[2]}, 0, 0x7ff00000\nv_cndmask_b32 {vr(vt0)}, {vr(vt1)}, {vr(vTo3)}, vcc\nv_or_b32 {vr(vt0)}, s{st[2]}, {vr(vt0)}\ns_mul_i32 s{st[3]}, s{sa}, 7168")
        a(f"buffer_load_dword {vr(vTd3+1)}, {vr(vt0)}, {sr(sW1t2,4)}, s{st[3]} offen")
    if opts.get("touch", 0):
        NTOUCH += 2
        sXt = S.alloc(4,4); sW1t = S.alloc(4,4); vTo = V.alloc(); vTd = V.alloc(2,2)
        a(f"s_load_dwordx2 {sr(sXt,2)}, s[0:1], 0\ns_load_dwordx2 {sr(sW1t,2)}, s[0:1], 80")
        a(f"s_and_b32 s{st[0]}, s{sa}, 7\ns_lshr_b32 s{st[1]}, s{sa}, 3")
        a(f"s_lshr_b32 s{st[2]}, s{st[0]}, 1\ns_mul_i32 s{st[2]}, s{st[2]}, {512*896}\ns_lshl_b32 s{st[3]}, s{st[1]}, 14\ns_add_u32 s{st[2]}, s{st[2]}, s{st[3]}\ns_lshl_b32 s{st[3]}, s{sw}, 12\ns_add_u32 s{st[2]}, s{st[2]}, s{st[3]}")
        a(f"v_lshlrev_b32 {vr(vTo)}, 7, {vr(vl)}\nv_cmp_gt_u32 vcc, 32, {vr(vl)}\nv_mov_b32 {vr(vt0)}, 0x7ff00000\ns_waitcnt lgkmcnt(0)\nv_cndmask_b32 {vr(vTo)}, {vr(vt0)}, {vr(vTo)}, vcc")
        srd_fix(a, sXt, X_BYTES); srd_fix(a, sW1t, W_BYTES)
        a(f"buffer_load_dword {vr(vTd)}, {vr(vTo)}, {sr(sXt,4)}, s{st[2]} offen")
        a(f"v_mul_u32_u24 {vr(vt0)}, 74, {vr(vl)}\nv_lshrrev_b32 {vr(vt0)}, 10, {vr(vt0)}\nv_mul_u32_u24 {vr(vt1)}, 14, {vr(vt0)}\nv_sub_u32 {vr(vt1)}, {vr(vl)}, {vr(vt1)}")
        a(f"v_mul_u32_u24 {vr(vt0)}, 3584, {vr(vt0)}\nv_lshl_add_u32 {vr(vt0)}, {vr(vt1)}, 7, {vr(vt0)}\nv_cmp_gt_u32 vcc, 56, {vr(vl)}\nv_mov_b32 {vr(vt1)}, 0x7ff00000\ns_nop 0\nv_cndmask_b32 {vr(vTo)}, {vr(vt1)}, {vr(vt0)}, vcc")
        a(f"s_lshl_b32 s{st[2]}, s{st[1]}, 4\ns_lshl_b32 s{st[3]}, s{sw}, 2\ns_add_u32 s{st[2]}, s{st[2]}, s{st[3]}\ns_mul_i32 s{st[2]}, s{st[2]}, 3584\ns_and_b32 s{st[3]}, s{st[0]}, 1\ns_mul_i32 s{st[3]}, s{st[3]}, 1792\ns_add_u32 s{st[2]}, s{st[2]}, s{st[3]}")
        a(f"buffer_load_dword {vr(vTd+1)}, {vr(vTo)}, {sr(sW1t,4)}, s{st[2]} offen")
    vz = V.alloc(4,4)
    for e in range(4): a(f"v_mov_b32 {vr(vz+e)}, 0")
    a(f"v_and_b32 {vr(vt1)}, 31, {vr(vl)}\nv_lshlrev_b32 {vr(vt1)}, 4, {vr(vt1)}\nv_lshrrev_b32 {vr(vt2)}, 5, {vr(vl)}\nv_mul_u32_u24 {vr(vt2)}, {USZ}, {vr(vt2)}\nv_add_u32 {vr(vt1)}, {vr(vt1)}, {vr(vt2)}\nds_write_b128 {vr(vt1)}, {vr(vz,4)} offset:{L_U}")
    ST.stamp()
    vSw = V.alloc(); vSr = V.alloc()
    a(f"s_mul_i32 s{st[0]}, s{sw}, {STW}\ns_add_u32 s{st[0]}, s{st[0]}, {L_ST}\nv_lshlrev_b32 {vr(vSw)}, 2, {vr(vl)}\nv_add_u32 {vr(vSw)}, s{st[0]}, {vr(vSw)}")
    a(f"v_and_b32 {vr(vt0)}, 15, {vr(vl)}\nv_mul_u32_u24 {vr(vt0)}, 288, {vr(vt0)}\nv_lshrrev_b32 {vr(vt1)}, 4, {vr(vl)}\nv_lshl_add_u32 {vr(vt0)}, {vr(vt1)}, 4, {vr(vt0)}\nv_add_u32 {vr(vSr)}, s{st[0]}, {vr(vt0)}")
    mark = V.mark()
    cur_p = [V.alloc() for _ in range(6)]
    a("s_waitcnt lgkmcnt(0)")
    S.reset(smark)
    a(f"s_lshl_b32 s{st[0]}, s{sch}, 4\ns_lshr_b32 s{sLc}, s{sLd}, s{st[0]}\ns_lshl_b32 s{sLc}, s{sLc}, 16\ns_lshr_b32 s{sDc}, s{sDs}, s{st[0]}\ns_lshl_b32 s{sDc}, s{sDc}, 16")
    vdt = V.alloc()
    a(f"v_mov_b32 {vr(vdt)}, s{sLc}\nv_mul_f32 {vr(vdt)}, {fhex(LOG2E)}, {vr(vdt)}\nv_exp_f32 {vr(vdt)}, {vr(vdt)}\ns_nop 0\nv_cvt_pk_bf16_f32 {vr(vdt)}, {vr(vdt)}, {vr(vdt)}\nv_lshlrev_b32 {vr(vdt)}, 16, {vr(vdt)}")
    kacc = V.alloc(16,4)
    for e in range(16): a(f"v_mov_b32 {vr(kacc+e)}, 0")
    a(f"s_mov_b32 s{sjob}, 0")
    a(f"s_waitcnt vmcnt({NTOUCH+1})")
    for k in range(6): a(f"v_lshlrev_b32 {vr(cur_p[k])}, 16, {vr(vP[0][k])}")
    lA = a.newlabel("AX_A")
    if opts.get("kdelay"):
        ld = a.newlabel("AX_dl")
        a(f"s_mov_b32 s{st[1]}, {opts['kdelay']}")
        a.label(ld)
        a(f"s_sleep 8\ns_sub_u32 s{st[1]}, s{st[1]}, 1\ns_cmp_lg_u32 s{st[1]}, 0\ns_cbranch_scc1 {ld}")
    a.label(lA)
    Are, Aim, Bre, Bim, Cre, Cim = cur_p
    vlr = V.alloc(); vli = V.alloc()
    a(f"v_mul_f32 {vr(vlr)}, {vr(vdt)}, {vr(Are)}\nv_mul_f32 {vr(vli)}, {vr(vdt)}, {vr(Aim)}\nv_mul_f32 {vr(Bre)}, {vr(vdt)}, {vr(Bre)}\nv_mul_f32 {vr(Bim)}, {vr(vdt)}, {vr(Bim)}")
    a(f"v_mul_f32 {vr(vlr)}, {fhex(LOG2E)}, {vr(vlr)}\nv_mul_f32 {vr(vli)}, {fhex(INV2PI)}, {vr(vli)}")
    cr = V.alloc(2,2); ci = cr+1
    cmul(a, cr, ci, Cre, Cim, Bre, Bim, vt0)
    E = {}
    for p in (8, 1, 256):
        er = V.alloc(2,2); ei = er+1; E[p] = (er, ei)
        if p == 1: a(f"v_exp_f32 {vr(vt0)}, {vr(vlr)}\nv_fract_f32 {vr(vt1)}, {vr(vli)}")
        else: a(f"v_mul_f32 {vr(vt0)}, {fhex(float(p))}, {vr(vlr)}\nv_mul_f32 {vr(vt1)}, {fhex(float(p))}, {vr(vli)}\nv_exp_f32 {vr(vt0)}, {vr(vt0)}\nv_fract_f32 {vr(vt1)}, {vr(vt1)}")
        a(f"s_nop 0\nv_cos_f32 {vr(er)}, {vr(vt1)}\nv_sin_f32 {vr(ei)}, {vr(vt1)}\ns_nop 0")
        a(f"v_mul_f32 {vr(er)}, {vr(er)}, {vr(vt0)}\nv_mul_f32 {vr(ei)}, {vr(ei)}, {vr(vt0)}")
    pk = [V.alloc(), V.alloc()]; t0_ = V.alloc(); t1_ = V.alloc()
    wr, wi = E[8]
    def cp():
        r = V.alloc(2,2); return (r, r+1)
    w2 = cp()
    ev = [cp(), cp()]; od = [cp(), cp()]
    vSb = V.alloc()
    zr, zi = E[1]; hr, hi = E[256]
    z2 = cp(); z4 = cp()
    interleave(a, cmul_l(w2[0], w2[1], wr, wi, wr, wi, t0_), cmul_l(z2[0], z2[1], zr, zi, zr, zi, t1_))
    a(f"v_mov_b32 {vr(pk[0])}, 0x00003f80\nv_cvt_pk_bf16_f32 {vr(pk[1])}, {vr(wr)}, {vr(wi)}\nds_write2_b32 {vr(vSw)}, {vr(pk[0])}, {vr(pk[1])} offset1:72")
    interleave(a, cmul_l(od[0][0], od[0][1], w2[0], w2[1], wr, wi, t0_), cmul_l(z4[0], z4[1], z2[0], z2[1], z2[0], z2[1], t1_))
    a(f"v_mov_b32 {vr(ev[0][0])}, {vr(w2[0])}\nv_mov_b32 {vr(ev[0][1])}, {vr(w2[1])}\nv_cvt_pk_bf16_f32 {vr(pk[0])}, {vr(w2[0])}, {vr(w2[1])}\nv_cvt_pk_bf16_f32 {vr(pk[1])}, {vr(od[0][0])}, {vr(od[0][1])}")
    a(f"v_add_u32 {vr(vSb)}, 576, {vr(vSw)}\ns_mov_b32 s{st[1]}, 7\nds_write2_b32 {vr(vSb)}, {vr(pk[0])}, {vr(pk[1])} offset1:72\nv_add_u32 {vr(vSb)}, 576, {vr(vSb)}")
    lB = a.newlabel("AX_B")
    a.label(lB)
    for h in range(2):
        src, dst = h, 1-h
        interleave(a, cmul_l(ev[dst][0], ev[dst][1], ev[src][0], ev[src][1], w2[0], w2[1], t0_), cmul_l(od[dst][0], od[dst][1], od[src][0], od[src][1], w2[0], w2[1], t1_))
        a(f"v_cvt_pk_bf16_f32 {vr(pk[0])}, {vr(ev[dst][0])}, {vr(ev[dst][1])}\nv_cvt_pk_bf16_f32 {vr(pk[1])}, {vr(od[dst][0])}, {vr(od[dst][1])}")
        if h == 1: a(f"s_sub_u32 s{st[1]}, s{st[1]}, 1")
        a(f"ds_write2_b32 {vr(vSb)}, {vr(pk[0])}, {vr(pk[1])} offset0:{144*h} offset1:{144*h+72}")
    a(f"v_add_u32 {vr(vSb)}, 1152, {vr(vSb)}\ns_cmp_lg_u32 s{st[1]}, 0\ns_cbranch_scc1 {lB}")
    fB = V.alloc(32,4); fA = V.alloc(32,4)
    for tb in range(2):
        for k4 in range(4):
            a(f"ds_read_b128 {vr(fB+16*tb+4*k4,4)}, {vr(vSr)} offset:{tb*16*288 + k4*64}")
    pA = [V.alloc(), V.alloc()]
    def wr_row(r, v, pkr): return [f"v_cvt_pk_bf16_f32 {vr(pkr)}, {vr(v[0])}, -{vr(v[1])}", f"ds_write_b32 {vr(vSw)}, {vr(pkr)} offset:{288*r}"]
    c0 = (cr, ci)
    P = wr_row(0, c0, pA[0]); cur = c0
    for i in range(1, 8):
        nx = ev[i&1]; P += cmul_l(nx[0], nx[1], cur[0], cur[1], zr, zi, t0_) + wr_row(i, nx, pA[0]); cur = nx
    y0 = cp(); y1 = cp()
    Q = cmul_l(y0[0], y0[1], cr, ci, hr, hi, t1_) + wr_row(8, y0, pA[1]); cur = y0
    for i in range(3):
        nx = od[i&1]; Q += cmul_l(nx[0], nx[1], cur[0], cur[1], z2[0], z2[1], t1_) + wr_row(9+i, nx, pA[1]); cur = nx
    Q += cmul_l(y1[0], y1[1], y0[0], y0[1], hr, hi, t1_) + wr_row(12, y1, pA[1])
    interleave(a, P, Q)
    S_ = cmul_l(y0[0], y0[1], y1[0], y1[1], hr, hi, t1_) + wr_row(14, y0, pA[1])
    R_ = cmul_l(ev[0][0], ev[0][1], y1[0], y1[1], z4[0], z4[1], t0_) + wr_row(13, ev[0], pA[0])
    interleave(a, R_, S_)
    R_ = cmul_l(ev[1][0], ev[1][1], y0[0], y0[1], z4[0], z4[1], t0_) + wr_row(15, ev[1], pA[0])
    cur, oth = y0, y1; S_ = []
    S_ += cmul_l(oth[0], oth[1], cur[0], cur[1], hr, hi, t1_) + wr_row(16, oth, pA[1])
    interleave(a, R_, S_)
    cur, oth = oth, od[0]
    tail = []
    for i in range(4):
        tail += cmul_l(oth[0], oth[1], cur[0], cur[1], hr, hi, t1_) + wr_row(17+i, oth, pA[1])
        cur, oth = oth, (od[1] if oth is od[0] else od[0])
    for l in tail: a(l)
    for ta in range(2):
        for k4 in range(4):
            a(f"ds_read_b128 {vr(fA+16*ta+4*k4,4)}, {vr(vSr)} offset:{ta*16*288 + k4*64}")
    for k in range(6): a(f"v_lshlrev_b32 {vr(cur_p[k])}, 16, {vr(vP[1][k])}")
    a("s_waitcnt lgkmcnt(0)")
    for k4 in range(4):
        for ta in range(2):
            for tb in range(2):
                d_ = kacc + 4*(2*ta+tb)
                a(f"v_mfma_f32_16x16x32_bf16 {vr(d_,4)}, {vr(fA+16*ta+4*k4,4)}, {vr(fB+16*tb+4*k4,4)}, {vr(d_,4)}")
    if opts.get("auxw2", 1):
        lw2 = a.newlabel("AX_w2")
        a(f"s_cmp_lg_u32 s{sjob}, {opts.get('w2job',0)}\ns_cbranch_scc1 {lw2}\ns_cmp_lg_u32 s{sw}, 3\ns_cbranch_scc1 {lw2}")
        a(f"v_lshlrev_b32 {vr(vTo2)}, 7, {vr(vl)}\nv_cmp_gt_u32 vcc, 56, {vr(vl)}\nv_mov_b32 {vr(vt0)}, 0x7ff00000\ns_mul_i32 s{st[2]}, s{sa}, {8*896}\nv_cndmask_b32 {vr(vTo2)}, {vr(vt0)}, {vr(vTo2)}, vcc")
        a(f"buffer_load_dword {vr(vTd2)}, {vr(vTo2)}, {sr(sW2t,4)}, s{st[2]} offen")
        a.label(lw2)
    a(f"s_cmp_lg_u32 s{sjob}, 0\ns_cbranch_scc1 AX_nn2")
    nonce_issue(a, vN, vz0, sDB)
    a.label("AX_nn2")
    a(f"s_add_u32 s{sjob}, s{sjob}, 1\ns_cmp_lt_u32 s{sjob}, 2\ns_cbranch_scc1 {lA}")
    a("s_waitcnt vmcnt(0)")
    nonce_finish(a, vN, vz0, sDB, sN, st[2])
    a(f"s_mul_i32 s{st[0]}, s{sw}, {STW}\ns_add_u32 s{st[0]}, s{st[0]}, {L_ST}\nv_lshlrev_b32 {vr(vt0)}, 4, {vr(vl)}\nv_add_u32 {vr(vt1)}, s{st[0]}, {vr(vt0)}\ns_nop 3")
    for t in range(4): a(f"ds_write_b128 {vr(vt1)}, {vr(kacc+4*t,4)} offset:{1024*t}")
    a("s_waitcnt lgkmcnt(0)\ns_barrier")
    a(f"v_lshlrev_b32 {vr(vt0)}, 4, {vr(vl)}\ns_lshl_b32 s{st[0]}, s{sch}, 1\ns_mul_i32 s{st[0]}, s{st[0]}, {STW}\ns_lshl_b32 s{st[1]}, s{swi}, 11\ns_add_u32 s{st[0]}, s{st[0]}, s{st[1]}\ns_add_u32 s{st[0]}, s{st[0]}, {L_ST}\nv_add_u32 {vr(vt1)}, s{st[0]}, {vr(vt0)}")
    pr = fA
    for tb in range(2):
        for w2 in range(2): a(f"ds_read_b128 {vr(pr+8*tb+4*w2,4)}, {vr(vt1)} offset:{STW*w2 + 1024*tb}")
    a(f"v_and_b32 {vr(vt1)}, 15, {vr(vl)}\nv_mul_u32_u24 {vr(vt1)}, {TS}, {vr(vt1)}\nv_lshrrev_b32 {vr(vt2)}, 4, {vr(vl)}\nv_lshl_add_u32 {vr(vt1)}, {vr(vt2)}, 3, {vr(vt1)}")
    a(f"s_lshl_b32 s{st[0]}, s{swi}, 5\ns_mul_i32 s{st[1]}, s{sch}, {TSZ}\ns_add_u32 s{st[0]}, s{st[0]}, s{st[1]}\ns_add_u32 s{st[0]}, s{st[0]}, {L_T}\nv_add_u32 {vr(vt1)}, s{st[0]}, {vr(vt1)}")
    a("s_waitcnt lgkmcnt(0)")
    for tb in range(2):
        for e in range(4): a(f"v_add_f32 {vr(pr+8*tb+e)}, {vr(pr+8*tb+e)}, {vr(pr+8*tb+4+e)}")
    a(f"v_mov_b32 {vr(vt2)}, s{sDc}\nv_lshl_add_u32 {vr(vt3)}, {vr(vl)}, 1, s{swi}\nv_cmp_eq_u32 vcc, 0, {vr(vt3)}\nv_mov_b32 {vr(vt3)}, 0\ns_nop 0\nv_cndmask_b32 {vr(vt2)}, {vr(vt3)}, {vr(vt2)}, vcc\nv_add_f32 {vr(pr)}, {vr(pr)}, {vr(vt2)}")
    for tb in range(2):
        b = pr+8*tb
        a(f"v_cvt_pk_bf16_f32 {vr(b)}, {vr(b)}, {vr(b+1)}\nv_cvt_pk_bf16_f32 {vr(b+1)}, {vr(b+2)}, {vr(b+3)}\nds_write_b64 {vr(vt1)}, {vr(b,2)} offset:{16*TS*tb}")
    ST.stamp()
    V.reset(mark)
    vFl = V.alloc(2,2); vFo = V.alloc()
    a(f"v_and_b32 {vr(vFo)}, 31, {vr(vl)}\nv_lshlrev_b32 {vr(vFo)}, 3, {vr(vFo)}\nv_add_u32 {vr(vFo)}, {F_XF}, {vr(vFo)}")
    def ld_xf(): a(f"buffer_load_dwordx2 {vr(vFl,2)}, {vr(vFo)}, {sr(sWS,4)}, 0 offen sc1")
    ld_xf()
    a("s_waitcnt lgkmcnt(0)\ns_barrier")
    LUTlo = 0 | (8<<8) | (12<<16) | (14<<24); LUThi = 16 | (17<<8) | (18<<16) | (19<<24)
    sLo = S.alloc(); vLh = V.alloc(); vp = V.alloc()
    R = [V.alloc(4,4), V.alloc(4,4)]; vF = [V.alloc(), V.alloc()]; o = [V.alloc(4,4), V.alloc(4,4)]
    sTb = S.alloc(); sKb = S.alloc()
    a(f"s_mov_b32 s{sLo}, {LUTlo}\nv_mov_b32 {vr(vLh)}, {LUThi}\ns_mul_i32 s{sTb}, s{sch}, {TSZ}\ns_add_u32 s{sTb}, s{sTb}, {L_T}\ns_mul_i32 s{sKb}, s{sch}, {KSZ}\ns_add_u32 s{sKb}, s{sKb}, {L_K}")
    a(f"s_lshl_b32 s{st[0]}, s{swi}, 7\nv_add_u32 {vr(vp)}, s{st[0]}, {vr(vl)}")
    for k in range(2):
        a(f"v_add_u32 {vr(vt0)}, {64*k}, {vr(vp)}\nv_lshrrev_b32 {vr(vt1)}, 5, {vr(vt0)}\nv_perm_b32 {vr(vt1)}, {vr(vLh)}, s{sLo}, {vr(vt1)}\nv_and_b32 {vr(vt1)}, 0x18, {vr(vt1)}")
        a(f"v_and_b32 {vr(vt2)}, 31, {vr(vt0)}\nv_mul_u32_u24 {vr(vt2)}, {TS}, {vr(vt2)}\nv_lshl_add_u32 {vr(vt2)}, {vr(vt1)}, 1, {vr(vt2)}\nv_add_u32 {vr(vt2)}, s{sTb}, {vr(vt2)}\nds_read_b128 {vr(R[k],4)}, {vr(vt2)}")
        a(f"v_add_u32 {vr(vt0)}, 1, {vr(vt0)}\nv_lshrrev_b32 {vr(vt2)}, 5, {vr(vt0)}\nv_min_u32 {vr(vt3)}, 7, {vr(vt2)}\nv_perm_b32 {vr(vt3)}, {vr(vLh)}, s{sLo}, {vr(vt3)}\nv_and_b32 {vr(vt3)}, 0xff, {vr(vt3)}\nv_lshrrev_b32 {vr(vt2)}, 3, {vr(vt2)}\nv_add_u32 {vr(vt3)}, {vr(vt3)}, {vr(vt2)}")
        a(f"v_and_b32 {vr(vt0)}, 31, {vr(vt0)}\nv_mul_u32_u24 {vr(vt0)}, {TS}, {vr(vt0)}\nv_lshl_add_u32 {vr(vt0)}, {vr(vt3)}, 1, {vr(vt0)}\nv_add_u32 {vr(vt0)}, s{sTb}, {vr(vt0)}\nds_read_u16 {vr(vF[k])}, {vr(vt0)}")
    a(f"v_bfe_u32 {vr(vt0)}, {vr(vl)}, 1, 2\nv_mul_u32_u24 {vr(vt0)}, {KS}, {vr(vt0)}\nv_and_b32 {vr(vt2)}, 1, {vr(vl)}\nv_lshl_add_u32 {vr(vt0)}, {vr(vt2)}, 4, {vr(vt0)}\nv_add_u32 {vr(vt0)}, s{sKb}, {vr(vt0)}\nds_write_b128 {vr(vt0)}, {vr(vz,4)}")
    sSel = [S.alloc() for _ in range(4)]
    a(f"s_mov_b32 s{sSel[0]}, 0x01000100\ns_mov_b32 s{sSel[1]}, 0x03020302\ns_mov_b32 s{sSel[2]}, 0x05040302\ns_mov_b32 s{sSel[3]}, 0x05040100")
    lw1 = a.newlabel("AX_w1"); lwe = a.newlabel("AX_we")
    a("s_waitcnt lgkmcnt(1)")
    a(f"s_cmp_eq_u32 s{swi}, 1\ns_cbranch_scc1 {lw1}")
    r0, f0, o0 = R[0], vF[0], o[0]
    a(f"v_perm_b32 {vr(o0)}, {vr(r0)}, {vr(r0)}, s{sSel[0]}\nv_perm_b32 {vr(o0+1)}, {vr(r0+1)}, {vr(r0)}, s{sSel[2]}\nv_perm_b32 {vr(o0+2)}, {vr(r0+1)}, {vr(r0+1)}, s{sSel[0]}\nv_perm_b32 {vr(o0+3)}, {vr(f0)}, {vr(r0+1)}, s{sSel[2]}")
    a(f"v_cmp_gt_u32 vcc, 32, {vr(vl)}\ns_nop 1")
    for e in range(4): a(f"v_cndmask_b32 {vr(o0+e)}, {vr(o0+e)}, {vr(r0+e)}, vcc")
    r1, f1, o1 = R[1], vF[1], o[1]
    a(f"v_cndmask_b32 {vr(vt0)}, {vr(r1+3)}, {vr(r1+2)}, vcc")
    a(f"v_perm_b32 {vr(o1)}, {vr(vt0)}, {vr(vt0)}, s{sSel[0]}\nv_mov_b32 {vr(o1+1)}, {vr(vt0)}\nv_perm_b32 {vr(o1+2)}, {vr(vt0)}, {vr(vt0)}, s{sSel[1]}\nv_perm_b32 {vr(o1+3)}, {vr(f1)}, {vr(f1)}, s{sSel[0]}")
    a(f"s_branch {lwe}")
    a.label(lw1)
    a(f"v_lshrrev_b32 {vr(vt1)}, 5, {vr(vl)}\nv_lshlrev_b32 {vr(vt1)}, 4, {vr(vt1)}\nv_and_b32 {vr(vt2)}, 1, {vr(vl)}\nv_cmp_eq_u32 vcc, 0, {vr(vt2)}")
    for k in range(2):
        a(f"v_lshrrev_b32 {vr(vt0)}, {vr(vt1)}, {vr(R[k]+k)}")
        a(f"v_perm_b32 {vr(o[k])}, {vr(vt0)}, {vr(vt0)}, s{sSel[0]}\nv_mov_b32 {vr(o[k]+1)}, {vr(o[k])}\nv_perm_b32 {vr(o[k]+3)}, {vr(vF[k])}, {vr(vF[k])}, s{sSel[0]}")
        a(f"v_cndmask_b32 {vr(vt3)}, {vr(vF[k])}, {vr(vt0)}, vcc\nv_perm_b32 {vr(o[k]+2)}, {vr(vF[k])}, {vr(vt3)}, s{sSel[3]}")
    a.label(lwe)
    vKw = V.alloc()
    a(f"v_lshlrev_b32 {vr(vKw)}, 4, {vr(vp)}\nv_add_u32 {vr(vKw)}, s{sKb}, {vr(vKw)}\nv_add_u32 {vr(vKw)}, 32, {vr(vKw)}")
    a(f"ds_write_b128 {vr(vKw)}, {vr(o[0],4)}\nds_write_b128 {vr(vKw)}, {vr(o[1],4)} offset:1024")
    a("s_waitcnt vmcnt(0)")
    tag_check_loop(a, [(vFl, vFl+1)], ld_xf, sN, st[2])
    vU = [V.alloc(4,4), V.alloc(4,4)]
    a(f"s_lshl_b32 s{st[0]}, s{swi}, 6\nv_add_u32 {vr(vt0)}, s{st[0]}, {vr(vl)}\nv_lshrrev_b32 {vr(vt1)}, 2, {vr(vt0)}\nv_mul_u32_u24 {vr(vt1)}, 57344, {vr(vt1)}\nv_and_b32 {vr(vt2)}, 3, {vr(vt0)}\nv_lshl_add_u32 {vr(vt1)}, {vr(vt2)}, 5, {vr(vt1)}")
    a(f"s_lshl_b32 s{st[0]}, s{sa}, 8\ns_lshl_b32 s{st[1]}, s{sch}, 7\ns_add_u32 s{st[0]}, s{st[0]}, s{st[1]}\ns_add_u32 s{st[0]}, s{st[0]}, {WS_XNT}")
    for k in range(2): a(f"buffer_load_dwordx4 {vr(vU[k],4)}, {vr(vt1)}, {sr(sWS,4)}, s{st[0]} offen offset:{16*k} sc1")
    vUw = V.alloc()
    a(f"v_lshlrev_b32 {vr(vUw)}, 5, {vr(vt0)}\ns_mul_i32 s{st[0]}, s{sch}, {USZ}\ns_add_u32 s{st[0]}, s{st[0]}, {L_U+512}\nv_add_u32 {vr(vUw)}, s{st[0]}, {vr(vUw)}")
    ST.stamp()
    a("s_waitcnt lgkmcnt(0)\ns_barrier")
    m0 = [V.alloc(2,2), V.alloc(2,2)]; cc_ = [(V.alloc(4,4), V.alloc(4,4), V.alloc(4,4)) for _ in range(2)]
    a(f"v_add_u32 {vr(vt0)}, -8, {vr(vKw)}\nds_read_b64 {vr(m0[0],2)}, {vr(vt0)}\nds_read_b64 {vr(m0[1],2)}, {vr(vt0)} offset:1024")
    for k in range(2):
        oo = o[k]; mm = m0[k]; c1, c2, c3 = cc_[k]
        a(f"v_alignbit_b32 {vr(c1+1)}, {vr(oo+1)}, {vr(oo)}, 16\nv_alignbit_b32 {vr(c1+2)}, {vr(oo+2)}, {vr(oo+1)}, 16\nv_alignbit_b32 {vr(c1+3)}, {vr(oo+3)}, {vr(oo+2)}, 16")
        a(f"v_mov_b32 {vr(c2+1)}, {vr(oo)}\nv_mov_b32 {vr(c2+2)}, {vr(oo+1)}\nv_mov_b32 {vr(c2+3)}, {vr(oo+2)}")
        a(f"v_mov_b32 {vr(c3+2)}, {vr(c1+1)}\nv_mov_b32 {vr(c3+3)}, {vr(c1+2)}")
        if k == 0: a("s_waitcnt lgkmcnt(0)")
        a(f"v_alignbit_b32 {vr(c1)}, {vr(oo)}, {vr(mm+1)}, 16\nv_mov_b32 {vr(c2)}, {vr(mm+1)}\nv_alignbit_b32 {vr(c3)}, {vr(mm+1)}, {vr(mm)}, 16\nv_mov_b32 {vr(c3+1)}, {vr(c1)}")
        a(f"ds_write_b128 {vr(vKw)}, {vr(c1,4)} offset:{KS+1024*k}\nds_write_b128 {vr(vKw)}, {vr(c2,4)} offset:{2*KS+1024*k}\nds_write_b128 {vr(vKw)}, {vr(c3,4)} offset:{3*KS+1024*k}")
    a("s_waitcnt vmcnt(0)")
    a(f"ds_write_b128 {vr(vUw)}, {vr(vU[0],4)}\nds_write_b128 {vr(vUw)}, {vr(vU[1],4)} offset:16")
    vKA = V.alloc(); vKB = V.alloc(); vYo = V.alloc(); vXw = V.alloc(); vXr = V.alloc()
    a(f"v_bfe_u32 {vr(vt0)}, {vr(vl)}, 2, 2\nv_mul_u32_u24 {vr(vt0)}, {KS}, {vr(vt0)}\nv_and_b32 {vr(vt1)}, 3, {vr(vl)}\nv_lshl_add_u32 {vr(vt0)}, {vr(vt1)}, 3, {vr(vt0)}")
    a(f"v_lshrrev_b32 {vr(vt1)}, 5, {vr(vl)}\nv_lshl_add_u32 {vr(vt0)}, {vr(vt1)}, 5, {vr(vt0)}\nv_bfe_u32 {vr(vt2)}, {vr(vl)}, 4, 1\nv_lshlrev_b32 {vr(vt2)}, 4, {vr(vt2)}\nv_sub_u32 {vr(vt0)}, {vr(vt0)}, {vr(vt2)}")
    a(f"s_lshl_b32 s{st[0]}, s{swi}, 8\ns_add_u32 s{st[1]}, s{st[0]}, s{sKb}\ns_add_u32 s{st[1]}, s{st[1]}, {32-8}\nv_add_u32 {vr(vKA)}, s{st[1]}, {vr(vt0)}")
    a(f"v_and_b32 {vr(vt0)}, 15, {vr(vl)}\nv_lshlrev_b32 {vr(vt0)}, 5, {vr(vt0)}\nv_lshlrev_b32 {vr(vt1)}, 5, {vr(vt1)}\nv_sub_u32 {vr(vt0)}, {vr(vt0)}, {vr(vt1)}\nv_add_u32 {vr(vt0)}, {vr(vt0)}, {vr(vt2)}")
    a(f"s_mul_i32 s{st[1]}, s{sch}, {USZ}\ns_add_u32 s{st[1]}, s{st[1]}, {L_U+512}\ns_sub_u32 s{st[1]}, s{st[1]}, s{st[0]}\nv_add_u32 {vr(vKB)}, s{st[1]}, {vr(vt0)}")
    a(f"v_bfe_u32 {vr(vt2)}, {vr(vl)}, 2, 2\nv_mul_u32_u24 {vr(vt2)}, 57344, {vr(vt2)}\nv_and_b32 {vr(vt3)}, 3, {vr(vl)}\nv_lshl_add_u32 {vr(vt2)}, {vr(vt3)}, 5, {vr(vt2)}\nv_lshrrev_b32 {vr(vt3)}, 4, {vr(vl)}\nv_lshl_add_u32 {vr(vYo)}, {vr(vt3)}, 3, {vr(vt2)}")
    a(f"v_lshlrev_b32 {vr(vt0)}, 4, {vr(vl)}\ns_lshl_b32 s{st[0]}, s{sw}, 12\ns_add_u32 s{st[0]}, s{st[0]}, {L_X}\nv_add_u32 {vr(vXw)}, s{st[0]}, {vr(vt0)}\ns_xor_b32 s{st[0]}, s{sw}, 1\ns_lshl_b32 s{st[0]}, s{st[0]}, 12\ns_add_u32 s{st[0]}, s{st[0]}, {L_X}\nv_add_u32 {vr(vXr)}, s{st[0]}, {vr(vt0)}")
    A = V.alloc(32,4); B = V.alloc(32,4); acc = V.alloc(32,4); own = V.alloc(16,4)
    for e in range(32): a(f"v_mov_b32 {vr(acc+e)}, 0")
    srs = S.alloc()
    a(f"s_mov_b32 s{srs}, 4")
    a("s_waitcnt lgkmcnt(0)\ns_barrier")
    if opts.get("auxfine"): ST.stamp()
    lC = a.newlabel("AX_C")
    a.label(lC)
    order = []
    def pairs(gg):
        prs = [(gg, h) for h in range(gg+1)] + [(ga, gg) for ga in range(gg)]
        for (ga, hb) in prs:
            if ga + hb <= 7:
                c = ga + hb; order.append((ga,hb))
                a(f"v_mfma_f32_16x16x32_bf16 {vr(acc+4*c,4)}, {vr(A+4*ga,4)}, {vr(B+4*hb,4)}, {vr(acc+4*c,4)}")
    def rd(g):
        a(f"ds_read_b64_tr_b16 {vr(A+4*g,2)}, {vr(vKA)} offset:{512*g + 8}")
        a(f"ds_read_b64_tr_b16 {vr(A+4*g+2,2)}, {vr(vKA)} offset:{512*g}")
        a(f"ds_read_b128 {vr(B+4*g,4)}, {vr(vKB)} offset:{512*g}")
    rd(0); rd(1)
    for g in range(2, 8):
        rd(g)
        a("s_waitcnt lgkmcnt(6)")
        pairs(g-2)
    a("s_waitcnt lgkmcnt(3)"); pairs(6)
    a("s_waitcnt lgkmcnt(0)"); pairs(7)
    assert len(order) == 36
    a(f"v_add_u32 {vr(vKA)}, 64, {vr(vKA)}\nv_add_u32 {vr(vKB)}, -64, {vr(vKB)}\ns_sub_u32 s{srs}, s{srs}, 1\ns_cmp_lg_u32 s{srs}, 0\ns_cbranch_scc1 {lC}")
    if opts.get("auxfine"): ST.stamp()
    lx1 = a.newlabel("AX_x1"); lxe = a.newlabel("AX_xe")
    a(f"s_nop 7\ns_cmp_eq_u32 s{swi}, 1\ns_cbranch_scc1 {lx1}")
    for c in range(4): a(f"ds_write_b128 {vr(vXw)}, {vr(acc+16+4*c,4)} offset:{1024*c}")
    for e in range(16): a(f"v_mov_b32 {vr(own+e)}, {vr(acc+e)}")
    a(f"s_branch {lxe}")
    a.label(lx1)
    for c in range(4): a(f"ds_write_b128 {vr(vXw)}, {vr(acc+4*c,4)} offset:{1024*c}")
    for e in range(16): a(f"v_mov_b32 {vr(own+e)}, {vr(acc+16+e)}")
    a.label(lxe)
    sY = S.alloc()
    a(f"s_lshl_b32 s{sY}, s{sa}, 8\ns_lshl_b32 s{st[1]}, s{sch}, 7\ns_add_u32 s{sY}, s{sY}, s{st[1]}\ns_mul_i32 s{st[1]}, s{swi}, {16*57344}\ns_add_u32 s{sY}, s{sY}, s{st[1]}\ns_add_u32 s{sY}, s{sY}, {WS_Y}")
    a("s_waitcnt lgkmcnt(0)\ns_barrier")
    for c in range(4): a(f"ds_read_b128 {vr(A+4*c,4)}, {vr(vXr)} offset:{1024*c}")
    for c in range(4):
        a(f"s_waitcnt lgkmcnt({3-c})")
        for e in range(4): a(f"v_add_f32 {vr(A+4*c+e)}, {vr(A+4*c+e)}, {vr(own+4*c+e)}")
        a(f"v_cvt_pk_bf16_f32 {vr(A+4*c)}, {vr(A+4*c)}, {vr(A+4*c+1)}\nv_cvt_pk_bf16_f32 {vr(A+4*c+1)}, {vr(A+4*c+2)}, {vr(A+4*c+3)}")
        a(f"buffer_store_dwordx2 {vr(A+4*c,2)}, {vr(vYo)}, {sr(sWS,4)}, s{sY} offen sc1")
        if c < 3: a(f"s_add_u32 s{sY}, s{sY}, {4*57344}")
    if opts.get("auxfine"): ST.stamp()
    ST.stamp()
    a("s_waitcnt vmcnt(0)\ns_barrier")
    a(f"s_lshl_b32 s{st[0]}, s{sa}, 3\ns_add_u32 s{st[0]}, s{st[0]}, {F_YF}")
    set_flag(a, vt, sWS, st[0], sN, vl, sw)
    a("s_waitcnt vmcnt(0)")
    ST.stamp()
    ST.flush(sWS, WS_STAMP, vt0, 2*((st[0]+1)//2), 2)
    a(f"s_branch {end}")
    return V.hi, S.hi
```

```python
from asm import *
from common import *

def get_nonce(a, V, S, sDB, vtmp2, sN, write=False, screg=None):
    pass

def nonce_issue(a, vN, vz, sDB):
    a(f"v_mov_b32 {vr(vz)}, 0\nbuffer_load_dwordx2 {vr(vN,2)}, {vr(vz)}, {sr(sDB,4)}, 0 offen sc1")

def nonce_finish(a, vN, vz, sDB, sN, scnt):
    l0 = a.newlabel("NC_l"); l1 = a.newlabel("NC_ok")
    a(f"s_mov_b32 s{scnt}, {SPIN}")
    a.label(l0)
    a(f"v_readfirstlane_b32 s{sN}, {vr(vN)}\nv_readfirstlane_b32 s{sN+1}, {vr(vN+1)}\ns_nop 1\ns_cmp_lg_u32 s{sN}, 0\ns_cbranch_scc1 {l1}")
    a(f"s_sub_u32 s{scnt}, s{scnt}, 1\ns_cmp_eq_u32 s{scnt}, 0\ns_cbranch_scc1 {l1}")
    a(f"s_sleep 1\nbuffer_load_dwordx2 {vr(vN,2)}, {vr(vz)}, {sr(sDB,4)}, 0 offen sc1\ns_waitcnt vmcnt(0)\ns_branch {l0}")
    a.label(l1)

def tag_check_loop(a, tags, reload, sN, scnt):
    l0 = a.newlabel("TG_l"); l1 = a.newlabel("TG_ok")
    a(f"s_mov_b32 s{scnt}, {SPIN}")
    a.label(l0)
    first = True
    for (lo, hi) in tags:
        for r, s in ((lo, sN), (hi, sN+1)):
            if first: a(f"v_cmp_ne_u32 vcc, s{s}, {vr(r)}\ns_nop 1\ns_mov_b64 s[98:99], vcc"); first = False
            else: a(f"v_cmp_ne_u32 vcc, s{s}, {vr(r)}\ns_nop 1\ns_or_b64 s[98:99], s[98:99], vcc")
    a(f"s_cmp_eq_u64 s[98:99], 0\ns_cbranch_scc1 {l1}")
    a(f"s_sub_u32 s{scnt}, s{scnt}, 1\ns_cmp_eq_u32 s{scnt}, 0\ns_cbranch_scc1 {l1}")
    a("s_sleep 1")
    reload()
    a(f"s_waitcnt vmcnt(0)\ns_branch {l0}")
    a.label(l1)

def set_flag(a, vt, sWS, soff_expr_sreg, sN, vl, sw):
    l = a.newlabel("FL_s")
    a(f"s_cmp_lg_u32 s{sw}, 0\ns_cbranch_scc1 {l}")
    a(f"v_mov_b32 {vr(vt)}, s{sN}\nv_mov_b32 {vr(vt+1)}, s{sN+1}\nv_cmp_eq_u32 vcc, 0, {vr(vl)}\nv_mov_b32 {vr(vt+2)}, 0x7ff00000\nv_mov_b32 {vr(vt+3)}, 0\ns_nop 0\nv_cndmask_b32 {vr(vt+2)}, {vr(vt+2)}, {vr(vt+3)}, vcc")
    a(f"buffer_store_dwordx2 {vr(vt,2)}, {vr(vt+2)}, {sr(sWS,4)}, s{soff_expr_sreg} offen sc1")
    a.label(l)

def role_ln(a, s0, ST, end, opts={}):
    V = Regs("v", 1, 256); S = Regs("s", s0, 96)
    sX = S.alloc(4,4); sWS = S.alloc(4,4); sDB = S.alloc(4,4); sW1 = S.alloc(4,4)
    pX = S.alloc(2,2); pWS = S.alloc(2,2); pDB = S.alloc(2,2); sN = S.alloc(2,2); pW1 = S.alloc(2,2)
    sw = S.alloc(); st = [S.alloc() for _ in range(6)]
    a("s_setprio 2")
    a(f"s_load_dwordx2 {sr(pX,2)}, s[0:1], 0\ns_load_dwordx2 {sr(pWS,2)}, s[0:1], 128\ns_load_dwordx2 {sr(pDB,2)}, s[0:1], 120\ns_memrealtime {sr(sN,2)}")
    if opts.get("lnw1", 0): a(f"s_load_dwordx2 {sr(pW1,2)}, s[0:1], 80")
    vl = V.alloc(); vt = V.alloc(4,2); vt0, vt1, vt2, vt3 = vt, vt+1, vt+2, vt+3
    vXo = V.alloc(); vR = V.alloc(); vP = V.alloc(); vN = V.alloc(2,2); vz = V.alloc()
    a(f"v_lshrrev_b32 {vr(vt0)}, 6, v0\nv_and_b32 {vr(vl)}, 63, v0\nv_readfirstlane_b32 s{sw}, {vr(vt0)}")
    a(f"v_lshrrev_b32 {vr(vR)}, 2, {vr(vl)}\nv_and_b32 {vr(vP)}, 3, {vr(vl)}")
    a(f"s_lshl_b32 s{st[0]}, s2, 6\ns_lshl_b32 s{st[1]}, s{sw}, 4\ns_add_u32 s{st[0]}, s{st[0]}, s{st[1]}")
    a(f"v_add_u32 {vr(vt0)}, s{st[0]}, {vr(vR)}\nv_mul_u32_u24 {vr(vt0)}, 896, {vr(vt0)}\nv_lshl_add_u32 {vr(vXo)}, {vr(vP)}, 4, {vr(vt0)}")
    a("s_waitcnt lgkmcnt(0)")
    srd(a, sX, pX, X_BYTES); srd(a, sDB, pDB, 256)
    vx = V.alloc(56,4)
    ln = a.newlabel("LN_nn")
    a(f"s_or_b32 s{st[1]}, s2, s{sw}\ns_cmp_lg_u32 s{st[1]}, 0\ns_cbranch_scc1 {ln}")
    a(f"s_or_b32 s{sN}, s{sN}, 1\nv_mov_b32 {vr(vN)}, s{sN}\nv_mov_b32 {vr(vN+1)}, s{sN+1}\nv_mov_b32 {vr(vz)}, 0")
    a(f"buffer_store_dwordx2 {vr(vN,2)}, {vr(vz)}, {sr(sDB,4)}, 0 offen sc1\ns_nop 1")
    a.label(ln)
    LW1 = opts.get("lnw1", 0)
    def w1_touch():
        a(f"s_mul_i32 s{st[1]}, s2, {392*128}\ns_mul_i32 s{st[2]}, s{sw}, {98*128}\ns_add_u32 s{st[1]}, s{st[1]}, s{st[2]}\nv_lshlrev_b32 {vr(vt0)}, 7, {vr(vl)}")
        a(f"buffer_load_dword {vr(vW1d)}, {vr(vt0)}, {sr(sW1,4)}, s{st[1]} offen")
        a(f"v_cmp_gt_u32 vcc, 34, {vr(vl)}\nv_add_u32 {vr(vt0)}, 8192, {vr(vt0)}\nv_mov_b32 {vr(vt1)}, 0x7ff00000\ns_nop 0\nv_cndmask_b32 {vr(vt0)}, {vr(vt1)}, {vr(vt0)}, vcc")
        a(f"buffer_load_dword {vr(vW1d+1)}, {vr(vt0)}, {sr(sW1,4)}, s{st[1]} offen")
    if LW1:
        vW1d = V.alloc(2,2)
        srd(a, sW1, pW1, W_BYTES)
    if LW1 == 1: w1_touch()
    for m in range(14):
        a(f"buffer_load_dwordx4 {vr(vx+4*m,4)}, {vr(vXo)}, {sr(sX,4)}, 0 offen offset:{64*m} {opts.get('lnxfl','')}")
    if LW1 == 2: w1_touch()
    XTRA = 2 if LW1 == 2 else 0
    nonce_issue(a, vN, vz, sDB)
    srd(a, sWS, pWS, WS_SIZE)
    ST.stamp()
    sOnes = S.alloc()
    a(f"s_mov_b32 s{sOnes}, 0x3f803f80")
    v1 = [V.alloc(), V.alloc()]; v2 = [V.alloc(), V.alloc()]
    for r in v1+v2: a(f"v_mov_b32 {vr(r)}, 0")
    LX = 0; L_MS = 64*912
    vLw = V.alloc()
    a(f"s_lshl_b32 s{st[1]}, s{sw}, 4\nv_add_u32 {vr(vt0)}, s{st[1]}, {vr(vR)}\nv_mul_u32_u24 {vr(vt0)}, 912, {vr(vt0)}\nv_lshl_add_u32 {vr(vLw)}, {vr(vP)}, 4, {vr(vt0)}")
    vN2 = V.alloc(2,2)
    for m in range(14):
        a(f"s_waitcnt vmcnt({14-m+XTRA+(1 if m > 3 else 0)})")
        for q in range(4):
            a(f"v_dot2c_f32_bf16 {vr(v2[q&1])}, {vr(vx+4*m+q)}, {vr(vx+4*m+q)}")
            a(f"v_dot2c_f32_bf16 {vr(v1[q&1])}, s{sOnes}, {vr(vx+4*m+q)}")
        a(f"ds_write_b128 {vr(vLw)}, {vr(vx+4*m,4)} offset:{LX+64*m}")
        if m == 3: a(f"buffer_load_dwordx2 {vr(vN2,2)}, {vr(vz)}, {sr(sDB,4)}, 0 offen sc1")
    a("s_nop 3")
    a(f"v_add_f32 {vr(v1[0])}, {vr(v1[0])}, {vr(v1[1])}\nv_add_f32 {vr(v2[0])}, {vr(v2[0])}, {vr(v2[1])}\ns_nop 1")
    for ctl in ("quad_perm:[1,0,3,2]", "quad_perm:[2,3,0,1]"):
        a(f"v_add_f32_dpp {vr(v1[0])}, {vr(v1[0])}, {vr(v1[0])} {ctl} row_mask:0xf bank_mask:0xf")
        a(f"v_add_f32_dpp {vr(v2[0])}, {vr(v2[0])}, {vr(v2[0])} {ctl} row_mask:0xf bank_mask:0xf")
        a("s_nop 1")
    vMean = v1[0]; vE2 = v2[0]
    g = V.alloc(4,4); vMr = g; vRstd = g+1
    inv = fhex(1.0/448)
    a(f"v_mul_f32 {vr(vMean)}, {inv}, {vr(vMean)}\nv_mul_f32 {vr(vE2)}, {inv}, {vr(vE2)}")
    a(f"v_fma_f32 {vr(vE2)}, -{vr(vMean)}, {vr(vMean)}, {vr(vE2)}\nv_max_f32 {vr(vE2)}, 0, {vr(vE2)}")
    a(f"v_cvt_pk_bf16_f32 {vr(vt2)}, {vr(vMean)}, {vr(vE2)}")
    a(f"v_lshlrev_b32 {vr(vMean)}, 16, {vr(vt2)}\nv_and_b32 {vr(vE2)}, 0xffff0000, {vr(vt2)}")
    a(f"v_add_f32 {vr(vE2)}, {fhex(1e-5)}, {vr(vE2)}\nv_cvt_pk_bf16_f32 {vr(vE2)}, {vr(vE2)}, {vr(vE2)}\nv_lshlrev_b32 {vr(vE2)}, 16, {vr(vE2)}")
    a(f"v_sqrt_f32 {vr(vE2)}, {vr(vE2)}\ns_nop 0\nv_cvt_pk_bf16_f32 {vr(vE2)}, {vr(vE2)}, {vr(vE2)}\nv_lshlrev_b32 {vr(vE2)}, 16, {vr(vE2)}")
    a(f"v_rcp_f32 {vr(vRstd)}, {vr(vE2)}\ns_nop 0\nv_mul_f32 {vr(vMr)}, {vr(vMean)}, {vr(vRstd)}")
    a("s_waitcnt vmcnt(0)")
    a(f"v_mov_b32 {vr(vN)}, {vr(vN2)}\nv_mov_b32 {vr(vN+1)}, {vr(vN2+1)}\ns_nop 0")
    nonce_finish(a, vN, vz, sDB, sN, st[2])
    a(f"v_mov_b32 {vr(g+2)}, s{sN}\nv_mov_b32 {vr(g+3)}, s{sN+1}")
    a(f"v_add_u32 {vr(vt0)}, s{st[0]}, {vr(vR)}\nv_lshlrev_b32 {vr(vt0)}, 4, {vr(vt0)}")
    a(f"v_cmp_eq_u32 vcc, 0, {vr(vP)}\nv_mov_b32 {vr(vt1)}, 0x7ff00000\ns_nop 0\nv_cndmask_b32 {vr(vt0)}, {vr(vt1)}, {vr(vt0)}, vcc")
    a(f"s_mov_b32 s{st[3]}, {WS_STATS}\nbuffer_store_dwordx4 {vr(g,4)}, {vr(vt0)}, {sr(sWS,4)}, s{st[3]} offen sc1")
    ST.stamp()
    a(f"s_lshl_b32 s{st[1]}, s{sw}, 4\nv_add_u32 {vr(vt0)}, s{st[1]}, {vr(vR)}\nv_lshlrev_b32 {vr(vt0)}, 3, {vr(vt0)}\nds_write_b64 {vr(vt0)}, {vr(g,2)} offset:{L_MS}")
    a("s_waitcnt lgkmcnt(0)\ns_barrier")
    ms = V.alloc(32,4)
    a(f"v_lshrrev_b32 {vr(vt0)}, 4, {vr(vl)}\nv_lshlrev_b32 {vr(vt0)}, 6, {vr(vt0)}")
    for v in range(2):
        for q in range(4): a(f"ds_read_b128 {vr(ms+16*v+4*q,4)}, {vr(vt0)} offset:{L_MS + 256*v + 16*q}")
    vA = V.alloc(); vO = V.alloc(); vSw = V.alloc(); vSr = V.alloc()
    a(f"v_lshrrev_b32 {vr(vt0)}, 4, {vr(vl)}\nv_lshlrev_b32 {vr(vt0)}, 3, {vr(vt0)}\nv_bfe_u32 {vr(vt1)}, {vr(vl)}, 2, 2\nv_add_u32 {vr(vt0)}, {vr(vt0)}, {vr(vt1)}\nv_mul_u32_u24 {vr(vt0)}, 912, {vr(vt0)}")
    a(f"v_and_b32 {vr(vt1)}, 3, {vr(vl)}\nv_lshl_add_u32 {vr(vt0)}, {vr(vt1)}, 3, {vr(vt0)}\ns_lshl_b32 s{st[1]}, s{sw}, 5\nv_add_u32 {vr(vA)}, s{st[1]}, {vr(vt0)}")
    L_SG = L_MS + 512
    a(f"v_and_b32 {vr(vt0)}, 15, {vr(vl)}\nv_and_b32 {vr(vt1)}, 7, {vr(vl)}\nv_lshrrev_b32 {vr(vt2)}, 4, {vr(vl)}\nv_xor_b32 {vr(vt1)}, {vr(vt1)}, {vr(vt2)}\nv_lshlrev_b32 {vr(vt1)}, 4, {vr(vt1)}\nv_lshl_add_u32 {vr(vt0)}, {vr(vt0)}, 7, {vr(vt1)}")
    a(f"s_lshl_b32 s{st[1]}, s{sw}, 11\ns_add_u32 s{st[1]}, s{st[1]}, {L_SG}\nv_add_u32 {vr(vSw)}, s{st[1]}, {vr(vt0)}\nv_lshlrev_b32 {vr(vt0)}, 4, {vr(vl)}\nv_add_u32 {vr(vSr)}, s{st[1]}, {vr(vt0)}")
    a(f"v_lshrrev_b32 {vr(vt0)}, 3, {vr(vl)}\nv_and_b32 {vr(vt1)}, 7, {vr(vl)}\nv_xor_b32 {vr(vt1)}, {vr(vt1)}, {vr(vt0)}\nv_lshlrev_b32 {vr(vt1)}, 4, {vr(vt1)}\nv_lshl_add_u32 {vr(vt0)}, {vr(vt0)}, 7, {vr(vt1)}")
    a(f"s_mul_i32 s{st[1]}, s2, 57344\ns_lshl_b32 s{st[2]}, s{sw}, 11\ns_add_u32 s{st[1]}, s{st[1]}, s{st[2]}\ns_add_u32 s{st[1]}, s{st[1]}, {WS_XNT}\nv_add_u32 {vr(vO)}, s{st[1]}, {vr(vt0)}")
    raw = V.alloc(8,2); nxt = V.alloc(8,2); tmp = V.alloc(8,2); pk = V.alloc(8,2); ob = V.alloc(8,2)
    sn = S.alloc(); so = S.alloc()
    def trs(dst):
        for v in range(2):
            for u in range(2):
                a(f"ds_read_b64_tr_b16 {vr(dst+4*v+2*u,2)}, {vr(vA)} offset:{LX + (32*v+4*u)*912}")
    a(f"s_mov_b32 s{sn}, 7\ns_mov_b32 s{so}, 0")
    trs(nxt)
    lp = a.newlabel("LN_lp")
    a.label(lp)
    a("s_waitcnt lgkmcnt(0)")
    for e in range(8): a(f"v_mov_b32 {vr(raw+e)}, {vr(nxt+e)}")
    a(f"v_add_u32 {vr(vA)}, 128, {vr(vA)}")
    trs(nxt)
    for v in range(2):
        for q in range(4):
            a(f"v_lshlrev_b32 {vr(tmp+2*q)}, 16, {vr(raw+4*v+q)}\nv_and_b32 {vr(tmp+2*q+1)}, 0xffff0000, {vr(raw+4*v+q)}")
        for e in range(8): a(f"v_fma_f32 {vr(tmp+e)}, {vr(tmp+e)}, {vr(ms+16*v+2*e+1)}, -{vr(ms+16*v+2*e)}")
        for q in range(4): a(f"v_cvt_pk_bf16_f32 {vr(pk+4*v+q)}, {vr(tmp+2*q)}, {vr(tmp+2*q+1)}")
        if v == 0: a(f"ds_write_b128 {vr(vSw)}, {vr(pk,4)}")
        else: a(f"v_xor_b32 {vr(vt0)}, 64, {vr(vSw)}\nds_write_b128 {vr(vt0)}, {vr(pk+4,4)}")
    a(f"ds_read_b128 {vr(ob,4)}, {vr(vSr)}\nds_read_b128 {vr(ob+4,4)}, {vr(vSr)} offset:1024")
    a("s_waitcnt lgkmcnt(0)")
    XF = opts.get("lnfl", "sc1")
    if not opts.get("lnnost"): a(f"buffer_store_dwordx4 {vr(ob,4)}, {vr(vO)}, {sr(sWS,4)}, s{so} offen {XF}\nbuffer_store_dwordx4 {vr(ob+4,4)}, {vr(vO)}, {sr(sWS,4)}, s{so} offen offset:1024 {XF}")
    a(f"s_add_u32 s{so}, s{so}, {64*128}\ns_sub_u32 s{sn}, s{sn}, 1\ns_cmp_lg_u32 s{sn}, 0\ns_cbranch_scc1 {lp}")
    if opts.get("lnwb"): a("s_waitcnt vmcnt(0)\nbuffer_wbl2 sc1")
    a("s_waitcnt vmcnt(0)\ns_barrier")
    a(f"s_lshl_b32 s{st[1]}, s2, 3\ns_add_u32 s{st[1]}, s{st[1]}, {F_XF}")
    set_flag(a, vt, sWS, st[1], sN, vl, sw)
    if opts.get("lnw2", 0):
        sW2 = S.alloc(4,4)
        a(f"s_load_dwordx2 {sr(sW2,2)}, s[0:1], 96\ns_lshr_b32 s{st[1]}, s2, 3\ns_mul_i32 s{st[1]}, s{st[1]}, {3136*128}\ns_mul_i32 s{st[2]}, s{sw}, {784*128}\ns_add_u32 s{st[1]}, s{st[1]}, s{st[2]}\nv_lshlrev_b32 {vr(vt0)}, 7, {vr(vl)}\ns_waitcnt lgkmcnt(0)")
        srd_fix(a, sW2, W_BYTES)
        for q in range(13):
            if q == 12: a(f"v_cmp_gt_u32 vcc, 16, {vr(vl)}\nv_mov_b32 {vr(vt1)}, 0x7ff00000\ns_nop 0\nv_cndmask_b32 {vr(vt0)}, {vr(vt1)}, {vr(vt0)}, vcc")
            a(f"buffer_load_dword {vr(vx+q)}, {vr(vt0)}, {sr(sW2,4)}, s{st[1]} offen\ns_add_u32 s{st[1]}, s{st[1]}, 8192")
    a("s_waitcnt vmcnt(0)")
    ST.stamp()
    ST.flush(sWS, WS_STAMP, vt0, 2*((st[0]+1)//2), 2)
    a(f"s_branch {end}")
    return V.hi, S.hi

def role_cs(a, s0, ST, end, opts={}):
    V = Regs("v", 1, 256); S = Regs("s", s0, 96)
    sW1 = S.alloc(4,4); sWS = S.alloc(4,4); sDB = S.alloc(4,4); sW2 = S.alloc(4,4)
    pW1 = S.alloc(2,2); pWS = S.alloc(2,2); pDB = S.alloc(2,2); pW2 = S.alloc(2,2); sN = S.alloc(2,2)
    sw = S.alloc(); sq = S.alloc(); st = [S.alloc() for _ in range(6)]
    a("s_setprio 2")
    a(f"s_load_dwordx2 {sr(pW1,2)}, s[0:1], 80\ns_load_dwordx2 {sr(pWS,2)}, s[0:1], 128\ns_load_dwordx2 {sr(pDB,2)}, s[0:1], 120")
    vl = V.alloc(); vt = V.alloc(4,2); vt0, vt1, vt2, vt3 = vt, vt+1, vt+2, vt+3
    vWo = V.alloc(); vR = V.alloc(); vP = V.alloc(); vN = V.alloc(2,2); vz = V.alloc(); vW2o = V.alloc()
    a(f"v_lshrrev_b32 {vr(vt0)}, 6, v0\nv_and_b32 {vr(vl)}, 63, v0\nv_readfirstlane_b32 s{sw}, {vr(vt0)}")
    a(f"s_sub_u32 s{sq}, s2, {ID_CS}")
    a(f"v_lshrrev_b32 {vr(vR)}, 3, {vr(vl)}\nv_and_b32 {vr(vP)}, 7, {vr(vl)}")
    a(f"s_mul_i32 s{st[1]}, s{sw}, 112\nv_add_u32 {vr(vt0)}, s{st[1]}, {vr(vR)}\nv_mul_u32_u24 {vr(vt0)}, 3584, {vr(vt0)}\nv_lshl_add_u32 {vr(vt0)}, {vr(vP)}, 4, {vr(vt0)}")
    a(f"s_lshl_b32 s{st[2]}, s{sq}, 7\nv_add_u32 {vr(vWo)}, s{st[2]}, {vr(vt0)}")
    a("s_waitcnt lgkmcnt(0)")
    srd(a, sW1, pW1, W_BYTES); srd(a, sDB, pDB, 256)
    vw = V.alloc(56,4)
    for m in range(14):
        a(f"s_mov_b32 s{st[3]}, {m*8*3584}\nbuffer_load_dwordx4 {vr(vw+4*m,4)}, {vr(vWo)}, {sr(sW1,4)}, s{st[3]} offen {opts.get('cswfl','')}")
    nonce_issue(a, vN, vz, sDB)
    srd(a, sWS, pWS, WS_SIZE)
    ST.stamp()
    sLo = S.alloc(); sHi = S.alloc()
    a(f"s_mov_b32 s{sLo}, 0x00003f80\ns_mov_b32 s{sHi}, 0x3f800000")
    vc = V.alloc(8,4)
    for e in range(8): a(f"v_mov_b32 {vr(vc+e)}, 0")
    for m in range(14):
        a(f"s_waitcnt vmcnt({13-m+1+(1 if m > 3 else 0)})")
        for q in range(4):
            a(f"v_dot2c_f32_bf16 {vr(vc+2*q)}, s{sLo}, {vr(vw+4*m+q)}")
            a(f"v_dot2c_f32_bf16 {vr(vc+2*q+1)}, s{sHi}, {vr(vw+4*m+q)}")
        if m == 3: a(f"buffer_load_dwordx2 {vr(vN,2)}, {vr(vz)}, {sr(sDB,4)}, 0 offen sc1")
    a(f"s_lshl_b32 s{st[1]}, s{sw}, 3\nv_add_u32 {vr(vt0)}, s{st[1]}, {vr(vR)}\nv_lshlrev_b32 {vr(vt0)}, 8, {vr(vt0)}\nv_lshl_add_u32 {vr(vt0)}, {vr(vP)}, 5, {vr(vt0)}")
    a(f"s_nop 1\nds_write_b128 {vr(vt0)}, {vr(vc,4)}\nds_write_b128 {vr(vt0)}, {vr(vc+4,4)} offset:16")
    a("s_waitcnt lgkmcnt(0)\ns_barrier")
    vs = V.alloc(8,4)
    a(f"s_lshl_b32 s{st[1]}, s{sw}, 11\nv_lshlrev_b32 {vr(vt0)}, 2, {vr(vl)}\nv_add_u32 {vr(vt1)}, s{st[1]}, {vr(vt0)}")
    for k in range(8): a(f"ds_read_b32 {vr(vs+k)}, {vr(vt1)} offset:{256*k}")
    a("s_waitcnt lgkmcnt(0)")
    for k in (0,2,4,6): a(f"v_add_f32 {vr(vs+k)}, {vr(vs+k)}, {vr(vs+k+1)}")
    a(f"v_add_f32 {vr(vs)}, {vr(vs)}, {vr(vs+2)}\nv_add_f32 {vr(vs+4)}, {vr(vs+4)}, {vr(vs+6)}\nv_add_f32 {vr(vs)}, {vr(vs)}, {vr(vs+4)}")
    a(f"s_lshl_b32 s{st[1]}, s{sw}, 8\nv_add_u32 {vr(vt1)}, s{st[1]}, {vr(vt0)}\nds_write_b32 {vr(vt1)}, {vr(vs)} offset:8192")
    a(f"s_waitcnt vmcnt(0) lgkmcnt(0)\ns_barrier")
    nonce_finish(a, vN, vz, sDB, sN, st[2])
    l1 = a.newlabel("CS_w0")
    a(f"s_cmp_lg_u32 s{sw}, 0\ns_cbranch_scc1 {l1}")
    a(f"v_and_b32 {vr(vt0)}, 31, {vr(vl)}\nv_lshlrev_b32 {vr(vt1)}, 3, {vr(vt0)}")
    for k in range(4): a(f"ds_read_b64 {vr(vs+2*k,2)}, {vr(vt1)} offset:{8192+256*k}")
    a("s_waitcnt lgkmcnt(0)")
    for e in range(2):
        a(f"v_add_f32 {vr(vs+e)}, {vr(vs+e)}, {vr(vs+2+e)}\nv_add_f32 {vr(vs+4+e)}, {vr(vs+4+e)}, {vr(vs+6+e)}\nv_add_f32 {vr(vs+e)}, {vr(vs+e)}, {vr(vs+4+e)}")
    a(f"v_mov_b32 {vr(vs+2)}, s{sN}\nv_mov_b32 {vr(vs+3)}, s{sN+1}\nv_lshlrev_b32 {vr(vt0)}, 4, {vr(vt0)}\ns_lshl_b32 s{st[1]}, s{sq}, 9\ns_add_u32 s{st[1]}, s{st[1]}, {WS_CS}")
    a(f"buffer_store_dwordx4 {vr(vs,4)}, {vr(vt0)}, {sr(sWS,4)}, s{st[1]} offen sc1")
    a.label(l1)
    ST.stamp()
    a("s_waitcnt vmcnt(0)")
    ST.stamp()
    ST.flush(sWS, WS_STAMP, vt0, 2*((st[0]+1)//2), 2)
    a(f"s_branch {end}")
    return V.hi, S.hi
```
